```python
import torch

def _softmax(x, axis=-1):
    return torch.softmax(x, dim=axis)
def _gelu(x):
    return torch.nn.functional.gelu(x, approximate="tanh")
def _silu(x):
    return torch.nn.functional.silu(x)
def _sigmoid(x):
    return torch.sigmoid(x)
def _layernorm(x, axis=-1, eps=1e-5):
    m = x.mean(dim=axis, keepdim=True)
    v = x.var(dim=axis, keepdim=True, unbiased=False)
    return (x - m) / torch.sqrt(v + eps)
def _scatter_add(tgt, idx, src, axis=0):
    return tgt.clone().index_add_(axis, idx, src)
def _segment_sum(src, seg, n):
    out = torch.zeros((n,) + src.shape[1:], dtype=src.dtype)
    return out.index_add_(0, seg, src)
def _pad(x, pw):
    flat = tuple(v for pair in reversed(pw) for v in pair)
    return torch.nn.functional.pad(x, flat)

kernel_name = 'concat_heads__sliding_local_dilated__linear_attn_block__prompt'

def setup_inputs():

    _w = (lambda a: (lambda t: t.to(torch.bfloat16) if t.is_floating_point() else t)(torch.as_tensor(a)))
    def _A_setup():
        B, S, D = 1, 2048, 512
        return {
            "x": _w((lambda *s: torch.randn(*s, dtype=torch.bfloat16) * 0.2)(B, S, D)),
            "wqkv": _w((lambda *s: torch.randn(*s, dtype=torch.bfloat16) * 0.2)(D, 3 * D)),
            "wo": _w((lambda *s: torch.randn(*s, dtype=torch.bfloat16) * 0.05)(D, D)),
        }
    _A_in = _A_setup()

    def _B_setup():
        B, S, D = 1, 2048, 512
        return {
            "x": _w((lambda *s: torch.randn(*s, dtype=torch.bfloat16) * 0.05)(B, S, D)),
            "wqkv": _w((lambda *s: torch.randn(*s, dtype=torch.bfloat16) * 1.6)(D, 3 * D)),
            "wo": _w((lambda *s: torch.randn(*s, dtype=torch.bfloat16) * 0.8)(D, D)),
        }
    _B_in = _B_setup()

    return {
        "A_x": _A_in["x"],
        "A_wqkv": _A_in["wqkv"],
        "A_wo": _A_in["wo"],
        "B_x": _B_in["x"],
        "B_wqkv": _B_in["wqkv"],
        "B_wo": _B_in["wo"],
    }

def reference(A_x, A_wqkv, A_wo, B_x, B_wqkv, B_wo):
    def _A_ref(x, wqkv, wo):
        B, S, D = x.shape
        H = 32; Dh = D // H
        W, dil = 8, 2
        qkv = (lambda x, *d: x.permute(*d))((x @ wqkv).reshape(B, S, 3, H, Dh), 2, 0, 3, 1, 4)
        q, k, v = qkv[0], qkv[1], qkv[2]
        scale = Dh ** -0.5
        pos = torch.arange(S)
        off = torch.arange(W) * dil
        idx = pos[:, None] - off[None, :]
        mask = idx >= 0
        idx_c = torch.where(mask, idx, 0).reshape(-1)
        kg = k[:, :, idx_c, :].reshape(B, H, S, W, Dh)
        vg = v[:, :, idx_c, :].reshape(B, H, S, W, Dh)
        logits = torch.einsum("bhsd,bhswd->bhsw", q, kg) * scale
        logits = torch.where(mask[None, None, :, :], logits, -1e9)
        attn = _softmax(logits, axis=-1)
        o = torch.einsum("bhsw,bhswd->bhsd", attn, vg)
        return (lambda x, *d: x.permute(*d))(o, 0, 2, 1, 3).reshape(B, S, D) @ wo

    def _B_ref(x, wqkv, wo):
        B, S, D = x.shape
        H = 32; Dh = D // H
        qkv = (lambda x, *d: x.permute(*d))((x @ wqkv).reshape(B, S, 3, H, Dh), 2, 0, 3, 1, 4)
        q, k, v = qkv[0], qkv[1], qkv[2]
        phi = lambda t: torch.where(t > 0, t + 1, torch.exp(t)) + 1e-6
        pq, pk = phi(q), phi(k)
        kv = torch.einsum("bhsd,bhse->bhde", pk, v)
        z = torch.einsum("bhsd->bhd", pk)
        num = torch.einsum("bhqd,bhde->bhqe", pq, kv)
        den = torch.einsum("bhqd,bhd->bhq", pq, z)[..., None] + 1e-6
        o = num / den
        return (lambda x, *d: x.permute(*d))(o, 0, 2, 1, 3).reshape(B, S, D) @ wo

    a = _A_ref(A_x, A_wqkv, A_wo)
    b = _B_ref(B_x, B_wqkv, B_wo)
    return torch.concatenate([a, b], axis=-1)
```

```python
import re

TRANS = ("v_exp_f32", "v_log_f32", "v_rcp_f32", "v_rsq_f32", "v_sqrt_f32", "v_sin_f32", "v_cos_f32")

def _regs(tok):
    tok = tok.strip()
    neg = tok.lstrip("-")
    if neg.startswith("abs(") or neg.startswith("|"):
        neg = neg.replace("abs(", "").replace(")", "").replace("|", "")
    m = re.fullmatch(r"([vas])(\d+)", neg)
    if m:
        return [(m.group(1), int(m.group(2)))]
    m = re.fullmatch(r"([vas])\[(\d+):(\d+)\]", neg)
    if m:
        return [(m.group(1), i) for i in range(int(m.group(2)), int(m.group(3)) + 1)]
    if neg == "vcc":
        return [("s", 106), ("s", 107)]
    if neg == "exec":
        return [("s", 126), ("s", 127)]
    if neg == "m0":
        return [("s", 124)]
    return []

class Ins:
    __slots__ = ("text", "op", "kind", "wr", "rd", "srcc", "is_label", "nops")
    def __init__(self, text):
        self.text = text
        t = text.split(";")[0].strip()
        self.is_label = t.endswith(":") or t.startswith(".") or t == ""
        self.wr = set(); self.rd = set(); self.srcc = set(); self.kind = "other"; self.op = ""
        self.nops = 0
        if self.is_label:
            return
        parts = t.split(None, 1)
        op = parts[0]; self.op = op
        ops = []
        if len(parts) > 1:
            ops = [o.strip() for o in re.split(r",(?![^\[]*\])", parts[1])]
            last = ops[-1].split()
            ops[-1] = last[0] if last else ""
            mods = last[1:]
        else:
            mods = []
        R = lambda i: _regs(ops[i]) if i < len(ops) else []
        if op == "s_nop":
            self.kind = "nop"; self.nops = int(ops[0], 0) + 1
        elif op.startswith("v_mfma"):
            self.kind = "mfma"
            self.wr = set(R(0)); self.rd = set(R(1)) | set(R(2)); self.srcc = set(R(3))
        elif op.startswith("v_cmp"):
            self.kind = "valu"; self.wr = set(R(0)); self.rd = set(R(1)) | set(R(2))
        elif op in ("v_readfirstlane_b32", "v_readlane_b32"):
            self.kind = "readlane"; self.wr = set(R(0)); self.rd = set(R(1)) | set(R(2))
        elif op.startswith("v_permlane") or op == "v_swap_b32":
            self.kind = "permlane" if op.startswith("v_permlane") else "valu"
            self.wr = set(R(0)) | set(R(1)); self.rd = set(R(0)) | set(R(1))
        elif op.startswith("v_"):
            self.kind = "trans" if op.split("_e")[0] in TRANS or op in TRANS else "valu"
            self.wr = set(R(0))
            start = 1
            if "_co_" in op:
                self.wr |= set(R(1)); start = 2
            for i in range(start, len(ops)):
                self.rd |= set(R(i))
            if op.startswith("v_fmac") or op.startswith("v_pk_fmac"):
                self.rd |= set(R(0))
            if any(m.startswith("row_") or m.startswith("quad_perm") for m in mods):
                self.kind = "dpp"
                self.rd |= set(R(0))
        elif op.startswith("ds_read") or op.startswith("ds_bpermute") or op.startswith("ds_swizzle"):
            self.kind = "dsr"; self.wr = set(R(0))
            for i in range(1, len(ops)): self.rd |= set(R(i))
        elif op.startswith("ds_write") or op.startswith("ds_add"):
            self.kind = "dsw"
            for i in range(len(ops)): self.rd |= set(R(i))
        elif op.startswith("buffer_load") or op.startswith("global_load"):
            if "lds" in mods:
                self.kind = "dma"
                for i in range(len(ops)): self.rd |= set(R(i))
                self.rd |= {("s", 124)}
            else:
                self.kind = "vload"; self.wr = set(R(0))
                for i in range(1, len(ops)): self.rd |= set(R(i))
        elif op.startswith("buffer_store") or op.startswith("global_store"):
            self.kind = "vstore"
            for i in range(len(ops)): self.rd |= set(R(i))
        elif op.startswith("buffer_atomic") or op.startswith("global_atomic"):
            self.kind = "vstore"
            for i in range(len(ops)): self.rd |= set(R(i))
            if "sc0" in mods: self.wr = set(R(0))
        elif op.startswith("s_"):
            self.kind = "salu"
            if op.startswith("s_cmp") or op.startswith("s_cbranch") or op in ("s_branch", "s_barrier", "s_waitcnt", "s_endpgm", "s_setprio", "s_sleep"):
                for i in range(len(ops)): self.rd |= set(R(i))
            else:
                self.wr = set(R(0))
                for i in range(1, len(ops)): self.rd |= set(R(i))
                if "saveexec" in op: self.wr |= {("s", 126), ("s", 127)}

def isV(r): return r[0] in "va"

def required(prod, cons):
    need = 0
    pk, ck = prod.kind, cons.kind
    valu_like = ("valu", "trans", "dpp", "permlane", "readlane")
    pw = prod.wr
    if pk in valu_like:
        vw = {r for r in pw if isV(r)}
        sw = {r for r in pw if r[0] == "s"}
        if ck == "mfma" and vw & (cons.rd | cons.srcc): need = max(need, 2)
        if ck == "permlane" and vw & cons.rd: need = max(need, 2)
        if ck == "dpp" and vw & cons.rd: need = max(need, 2)
        if ck == "readlane" and vw & cons.rd: need = max(need, 1)
        if pk == "trans" and ck in ("valu", "dpp", "permlane", "readlane", "mfma") and vw & (cons.rd | cons.srcc | cons.wr): need = max(need, 1)
        if sw:
            if ck in valu_like and sw & cons.rd: need = max(need, 4 if ck == "readlane" else 2)
            if ck in ("vload", "vstore", "dma") and sw & cons.rd: need = max(need, 5)
            if ck == "salu" and sw & cons.rd: need = max(need, 1)
            if ("s", 126) in sw and ck == "mfma": need = max(need, 4)
    if pk == "mfma":
        D = pw
        if ck == "mfma":
            if D & cons.rd: need = max(need, 8)
            if D & cons.srcc and cons.srcc != D: need = max(need, 6)
            if D & cons.srcc and cons.srcc == D and prod.op != cons.op: need = max(need, 6)
            if D & cons.wr and cons.srcc != D: need = max(need, 8)
        elif ck in valu_like or ck in ("dsr", "dsw", "vload", "vstore", "dma"):
            if D & (cons.rd | cons.wr): need = max(need, 8)
        if ck in valu_like and prod.srcc & cons.wr: need = max(need, 3)
        if ck in ("dsr", "vload") and prod.srcc & cons.wr: need = max(need, 3)
    if pk == "salu" and ("s", 124) in pw and ck == "dma": need = max(need, 1)
    if pk == "vstore" and ("x4" in prod.op or "x3" in prod.op):
        if {r for r in prod.rd if isV(r)} & cons.wr:
            need = max(need, 2 if ck in valu_like else 1)
    return need

def fix_hazards(lines):
    out = []
    hist = []
    nins = 0
    for ln in lines:
        ins = Ins(ln)
        if ins.is_label:
            out.append(ln); continue
        need_extra = 0
        dist = 0
        for prev in reversed(hist):
            r = required(prev, ins)
            if r > dist:
                need_extra = max(need_extra, r - dist)
            dist += prev.nops if prev.kind == "nop" else 1
            if dist >= 10: break
        if need_extra > 0:
            nop = Ins(f"s_nop {need_extra-1}")
            out.append(f"    s_nop {need_extra-1}")
            hist.append(nop); nins += 1
        out.append(ln)
        hist.append(ins)
        if len(hist) > 16: hist = hist[-16:]
    return out, nins

class VM:
    def __init__(self): self.q = []
    def add(self, tag): self.q.append(tag)
    def wait_n(self, tag):
        idx = max((i for i, t in enumerate(self.q) if t == tag), default=None)
        if idx is None: return None
        n = len(self.q) - 1 - idx
        self.q = self.q[idx + 1:]
        assert n <= 63, n
        return n
    def all(self):
        self.q = []
```

```python
import sys, argparse
from asmlib import fix_hazards, VM

NAME = "concat_heads__sliding_local_dilated__linear_attn_block__prompt"
STAGE = 34816
WOFF = 18432
XCH = 4 * STAGE
WS_O = 0
WS_KV = 0x400000
WS_Z = 0x480000
WS_STAMP = 0x8000000
NEG = 0xF149F2CA
LOG2E = 0x3FB8AA3B
CSC = 0x3EB8AA3B
NCSC = 0xBEB8AA3B
EPS = 0x358637BD

class G:
    def __init__(self, opt):
        self.L = []; self.opt = opt; self.nstamp = 0
    def A(self, s): self.L.append("    " + s)
    def label(self, s): self.L.append(s + ":")
    def stamp(self, i):
        if self.opt.stamps: self.A(f"s_memrealtime s[{72+2*i}:{73+2*i}]")

sX, sW, sWS, sDBG, sWO, sOUT = "s[24:27]", "s[28:31]", "s[32:35]", "s[36:39]", "s[40:43]", "s[44:47]"
S_BR, S_RB, S_HG, S_WV, S_RW, S_CW = 48, 49, 50, 51, 52, 53
S_XB, S_HB, S_WB, S_LW, S_T0, S_T1, S_T2, S_C, S_NC, S_L2E, S_EPS, S_WOB, S_LW2, S_LWH = 54, 55, 56, 57, 58, 59, 60, 61, 62, 63, 64, 65, 66, 67
V_L = 1
V_X0, V_X1, V_XH, V_W0, V_W1, V_WO = 10, 11, 12, 13, 14, 15
V_XR = 16
V_HR = 22
V_WR = 28
V_OR = 34
V_L16 = 46
V_L8 = 47
V_MOWN, V_MPREV, V_MHALO, V_BM, V_ONES = 48, 52, 56, 64, 66
V_ACC = 72
V_HACC = 136
V_WF = 144
V_HF = 176
V_QACC = 184
V_VP = 216
V_KP = 240
V_KPREV = 176

def vr(b, n=4, k="v"): return f"{k}[{b}:{b+n-1}]"

def ldsaddr(base_reg, const):
    b = const >> 16
    return f"v{base_reg + b}", const & 0xFFFF

def decode(g, two_kernel_second=False):
    A = g.A
    A("s_cmp_ge_u32 s2, 256")
    A("s_cbranch_scc1 L_end")
    A("s_load_dwordx16 s[4:19], s[0:1], 0")
    A("s_load_dwordx2 s[20:21], s[0:1], 64")
    A("v_lshrrev_b32 v2, 6, v0")
    A(f"v_and_b32 v{V_L}, 63, v0")
    A(f"v_readfirstlane_b32 s{S_WV}, v2")
    A("s_and_b32 s22, s2, 7")
    A("s_lshr_b32 s23, s2, 3")
    A(f"s_lshr_b32 s{S_BR}, s22, 2")
    A(f"s_bfe_u32 s{S_RB}, s22, 0x10001")
    A(f"s_lshl_b32 s{S_RB}, s{S_RB}, 3")
    A(f"s_and_b32 s{S_T0}, s23, 7")
    A(f"s_add_u32 s{S_RB}, s{S_RB}, s{S_T0}")
    A(f"s_and_b32 s{S_HG}, s22, 1")
    A(f"s_lshl_b32 s{S_HG}, s{S_HG}, 2")
    A(f"s_lshr_b32 s{S_T0}, s23, 3")
    A(f"s_add_u32 s{S_HG}, s{S_HG}, s{S_T0}")
    A(f"s_lshr_b32 s{S_RW}, s{S_WV}, 1")
    A(f"s_and_b32 s{S_CW}, s{S_WV}, 1")
    A("s_waitcnt lgkmcnt(0)")
    A(f"s_cmp_eq_u32 s{S_BR}, 0")
    A("s_cselect_b32 s24, s4, s10"); A("s_cselect_b32 s25, s5, s11"); A("s_mov_b32 s26, 0x200000"); A("s_mov_b32 s27, 0x20000")
    A("s_cselect_b32 s28, s6, s12"); A("s_cselect_b32 s29, s7, s13"); A("s_mov_b32 s30, 0x180000"); A("s_mov_b32 s31, 0x20000")
    A("s_cselect_b32 s40, s8, s14"); A("s_cselect_b32 s41, s9, s15"); A("s_mov_b32 s42, 0x80000"); A("s_mov_b32 s43, 0x20000")
    A("s_mov_b32 s32, s20"); A("s_mov_b32 s33, s21"); A("s_mov_b32 s34, 0x10000000"); A("s_mov_b32 s35, 0x20000")
    A("s_mov_b32 s36, s18"); A("s_mov_b32 s37, s19"); A("s_mov_b32 s38, 256"); A("s_mov_b32 s39, 0x20000")
    A("s_mov_b32 s44, s16"); A("s_mov_b32 s45, s17"); A("s_mov_b32 s46, 0x400000"); A("s_mov_b32 s47, 0x20000")

def dma_addr_setup(g):
    A = g.A
    l = f"v{V_L}"
    A(f"v_lshrrev_b32 v2, 3, {l}")
    A(f"v_and_b32 v3, 7, {l}")
    A(f"v_lshrrev_b32 v4, 4, {l}")
    A("v_xor_b32 v5, v3, v4")
    A("v_lshlrev_b32 v6, 11, v2")
    A(f"v_lshl_add_u32 v{V_X0}, v5, 4, v6")
    A(f"v_xor_b32 v{V_X1}, 64, v{V_X0}")
    A("v_and_b32 v5, 1, v4")
    A("v_lshlrev_b32 v5, 1, v5")
    A("v_xor_b32 v5, v3, v5")
    A("v_mul_u32_u24 v7, 3072, v2")
    A(f"v_lshl_add_u32 v{V_W0}, v5, 4, v7")
    A(f"v_xor_b32 v{V_W1}, 64, v{V_W0}")
    A(f"s_lshl_b32 s{S_T0}, s{S_WV}, 1")
    A(f"v_add_u32 v5, s{S_T0}, v4")
    A("v_xor_b32 v5, v3, v5")
    A(f"v_lshl_add_u32 v{V_XH}, v5, 4, v6")
    A(f"s_lshl_b32 s{S_XB}, s{S_RB}, 17")
    A(f"s_lshl_b32 s{S_T0}, s{S_WV}, 15")
    A(f"s_add_u32 s{S_XB}, s{S_XB}, s{S_T0}")
    A(f"s_lshl_b32 s{S_HB}, s{S_RB}, 7")
    A(f"s_sub_i32 s{S_HB}, s{S_HB}, 16")
    A(f"s_max_i32 s{S_HB}, s{S_HB}, 0")
    A(f"s_lshl_b32 s{S_T0}, s{S_CW}, 3")
    A(f"s_add_u32 s{S_HB}, s{S_HB}, s{S_T0}")
    A(f"s_add_u32 s{S_HB}, s{S_HB}, s{S_RW}")
    A(f"s_lshl_b32 s{S_HB}, s{S_HB}, 10")
    A(f"s_mul_i32 s{S_WB}, s{S_WV}, 49152")
    A(f"s_lshl_b32 s{S_T0}, s{S_HG}, 7")
    A(f"s_add_u32 s{S_WB}, s{S_WB}, s{S_T0}")
    A(f"s_lshl_b32 s{S_LW}, s{S_WV}, 12")
    A(f"s_lshl_b32 s{S_LW2}, s{S_WV}, 11")
    A(f"s_lshl_b32 s{S_LWH}, s{S_WV}, 9")

def wo_addr_setup(g):
    A = g.A
    l = f"v{V_L}"
    A(f"v_lshrrev_b32 v2, 3, {l}")
    A(f"v_and_b32 v3, 7, {l}")
    A(f"v_lshrrev_b32 v4, 4, {l}")
    A("v_lshlrev_b32 v5, 1, v4")
    A("v_xor_b32 v5, v3, v5")
    A("v_lshlrev_b32 v6, 10, v2")
    A(f"v_lshl_add_u32 v{V_WO}, v5, 4, v6")

def chunk_dmas(c, halo):
    st = (c % 4) * STAGE
    out = []
    if c < 8:
        for i in range(4):
            p, half = i >> 1, i & 1
            out.append([f"s_add_u32 m0, s{S_LW}, {st + i*1024}",
                        f"s_add_u32 s{S_T2}, s{S_XB}, {(p + 16*half)*1024 + c*128}",
                        f"buffer_load_dwordx4 v{V_X0+half}, {sX}, s{S_T2} offen lds"])
        for seg in range(2):
            for bb in range(2):
                out.append([f"s_add_u32 m0, s{S_LW2}, {st + WOFF + seg*8192 + bb*1024}",
                            f"s_add_u32 s{S_T2}, s{S_WB}, {(c*64 + 8*bb)*3072 + (seg+1)*1024}",
                            f"buffer_load_dwordx4 v{V_W0+bb}, {sW}, s{S_T2} offen lds"])
        if halo:
            out.append([f"s_add_u32 m0, s{S_LWH}, {st + 16384}",
                        f"s_add_u32 s{S_T2}, s{S_HB}, {c*128}",
                        "s_mov_b32 exec_hi, 0",
                        f"buffer_load_dwordx4 v{V_XH}, {sX}, s{S_T2} offen lds",
                        "s_mov_b32 exec_hi, -1"])
    elif c < 10:
        h = c - 8
        for cq in range(4):
            for bb in range(2):
                out.append([f"s_add_u32 m0, s{S_LW2}, {st + cq*8192 + bb*1024}",
                            f"s_add_u32 s{S_T2}, s{S_WB}, {((4*h+cq)*64 + 8*bb)*3072}",
                            f"buffer_load_dwordx4 v{V_W0+bb}, {sW}, s{S_T2} offen lds"])
    else:
        h = c - 10
        for b in range(8):
            out.append([f"s_add_u32 m0, s{S_WOB+ 3}, {st + b*1024}",
                        f"s_add_u32 s{S_T2}, s{S_WOB}, {(256*h + 8*b)*1024}",
                        f"buffer_load_dwordx4 v{V_WO}, {sWO}, s{S_T2} offen lds"])
    return out

def read_addr_setup(g, halo):
    A = g.A
    l = f"v{V_L}"
    A(f"v_and_b32 v2, 15, {l}")
    A(f"v_lshrrev_b32 v3, 4, {l}")
    A("v_lshrrev_b32 v4, 1, v2")
    A("v_xor_b32 v5, v3, v4")
    A("v_lshlrev_b32 v6, 7, v2")
    A("v_lshl_add_u32 v6, v5, 4, v6")
    A(f"s_lshl_b32 s{S_T0}, s{S_RW}, 13")
    A(f"v_add_u32 v{V_XR}, s{S_T0}, v6")
    A(f"v_xor_b32 v{V_XR+3}, 64, v{V_XR}")
    for kk in range(2):
        for b in (1, 2):
            A(f"v_add_u32 v{V_XR+3*kk+b}, {b<<16}, v{V_XR+3*kk}")
    if halo:
        A(f"v_add_u32 v{V_HR}, 16384, v6")
        A(f"v_xor_b32 v{V_HR+3}, 64, v{V_HR}")
        for kk in range(2):
            for b in (1, 2):
                A(f"v_add_u32 v{V_HR+3*kk+b}, {b<<16}, v{V_HR+3*kk}")
    A("v_lshrrev_b32 v4, 2, v2")
    A("v_lshl_add_u32 v4, v3, 3, v4")
    A("v_lshlrev_b32 v4, 7, v4")
    A("v_and_b32 v5, 3, v2")
    A("v_lshl_add_u32 v4, v5, 3, v4")
    A("v_lshrrev_b32 v5, 3, v2")
    A("v_and_b32 v7, 1, v3")
    A("v_lshl_or_b32 v5, v7, 1, v5")
    A(f"s_lshl_b32 s{S_T0}, s{S_CW}, 1")
    A(f"v_xor_b32 v7, s{S_T0}, v5")
    A(f"v_lshl_add_u32 v{V_WR}, v7, 5, v4")
    A(f"v_xor_b32 v{V_WR+3}, 32, v{V_WR}")
    for hh in range(2):
        for b in (1, 2):
            A(f"v_add_u32 v{V_WR+3*hh+b}, {b<<16}, v{V_WR+3*hh}")
    A(f"v_lshlrev_b32 v{V_L16}, 4, {l}")
    A(f"v_lshlrev_b32 v{V_L8}, 3, {l}")
    A(f"s_mov_b32 s{S_C}, {CSC:#x}"); A(f"s_mov_b32 s{S_NC}, {NCSC:#x}")
    A(f"s_mov_b32 s{S_L2E}, {LOG2E:#x}"); A(f"s_mov_b32 s{S_EPS}, {EPS:#x}")
    for i in range(4):
        A(f"v_mov_b32 v{V_ONES+i}, 0x3f803f80")

def wo_read_setup(g, bases):
    A = g.A
    l = f"v{V_L}"
    A(f"v_and_b32 v2, 15, {l}")
    A(f"v_lshrrev_b32 v3, 4, {l}")
    A("v_lshrrev_b32 v4, 2, v2")
    A("v_lshl_add_u32 v4, v3, 2, v4")
    A("v_lshlrev_b32 v4, 7, v4")
    A("v_and_b32 v5, 3, v2")
    A("v_lshl_add_u32 v4, v5, 3, v4")
    A("v_lshrrev_b32 v5, 3, v2")
    A("v_and_b32 v7, 1, v3")
    A("v_lshl_or_b32 v5, v7, 1, v5")
    A("v_lshl_add_u32 v4, v5, 5, v4")
    for c in range(4):
        for b in bases:
            if c == 0:
                A(f"v_add_u32 v{V_OR+3*c+b}, {b<<16}, v4")
            else:
                A(f"v_xor_b32 v{V_OR+3*c+b}, {c*32}, v{V_OR+b}")

def mask_setup(g, rw):
    A = g.A
    l = f"v{V_L}"
    A(f"v_and_b32 v2, 15, {l}")
    A(f"v_lshrrev_b32 v3, 4, {l}")
    A("v_lshlrev_b32 v3, 2, v3")
    A(f"v_mov_b32 v8, {NEG:#x}")
    for r in range(4):
        A(f"v_add_u32 v4, {r}, v3")
        A("v_sub_u32 v5, v2, v4")
        A("v_cmp_gt_u32 vcc, 8, v5")
        A(f"v_cndmask_b32 v{V_MOWN+r}, v8, 0, vcc")
        A(f"v_cndmask_b32 v9, 0, {'0xffff' if r % 2 == 0 else '0xffff0000'}, vcc" if False else "v_mov_b32 v9, 0")
        A(f"v_mov_b32 v7, {0xffff if r % 2 == 0 else 0xffff0000:#x}")
        A("v_cndmask_b32 v9, v9, v7, vcc")
        if r % 2 == 0:
            A(f"v_mov_b32 v{V_BM + r//2}, v9")
        else:
            A(f"v_or_b32 v{V_BM + r//2}, v{V_BM + r//2}, v9")
        A("v_add_u32 v5, 9, v2")
        A("v_cmp_ge_u32 vcc, v4, v5")
        A(f"v_cndmask_b32 v{V_MPREV+r}, v8, 0, vcc")
        if rw == 0:
            for p in range(2):
                A(f"v_subrev_u32 v5, {8*p}, v4")
                A("v_cmp_gt_u32 vcc, 8, v5")
                A("v_cmp_gt_u32 s[68:69], v5, v2")
                A("s_and_b64 vcc, vcc, s[68:69]")
                A(f"s_cmp_eq_u32 s{S_RB}, 0")
                A("s_cselect_b64 vcc, 0, vcc")
                A(f"v_cndmask_b32 v{V_MHALO+4*p+r}, v8, 0, vcc")

def acc(Tl, hh, kv): return V_ACC + ((Tl * 2 + hh) * 2 + kv) * 4
def xf(Tl, ks): return (Tl * 16 + ks) * 4

def kv_reads(ks, halo):
    c = ks >> 1; kk = ks & 1; st = (c % 4) * STAGE; buf = ks & 1
    out = []
    for hh in range(2):
        for seg in range(2):
            for t in range(2):
                reg, off = ldsaddr(V_WR + 3*hh, st + WOFF + seg*8192 + kk*4096 + t*512)
                d = V_WF + buf*16 + (hh*2 + seg)*4 + t*2
                out.append(f"ds_read_b64_tr_b16 v[{d}:{d+1}], {reg} offset:{off}")
    xr = []
    for Tl in range(4):
        reg, off = ldsaddr(V_XR + 3*kk, st + Tl*2048)
        xr.append(f"ds_read_b128 {vr(xf(Tl, ks), 4, 'a')}, {reg} offset:{off}")
    if halo:
        reg, off = ldsaddr(V_HR + 3*kk, st)
        xr.append(f"ds_read_b128 {vr(V_HF + buf*4)}, {reg} offset:{off}")
    return [xr[0]] + out[:4] + [xr[1]] + out[4:] + xr[2:]

def kv_mfmas(ks, br, rw):
    buf = ks & 1
    out = []
    for Tl in range(4):
        for hh in range(2):
            for seg in range(2):
                w = vr(V_WF + buf*16 + (hh*2 + seg)*4)
                x = vr(xf(Tl, ks), 4, "a")
                d = vr(acc(Tl, hh, seg))
                c = "0" if ks == 0 else d
                if br == 0 and seg == 0:
                    out.append(f"v_mfma_f32_16x16x32_bf16 {d}, {w}, {x}, {c}")
                else:
                    out.append(f"v_mfma_f32_16x16x32_bf16 {d}, {x}, {w}, {c}")
    if br == 0:
        for hh in range(2):
            seg = rw
            w = vr(V_WF + buf*16 + (hh*2 + seg)*4)
            x = vr(V_HF + buf*4)
            d = vr(V_HACC + hh*4)
            c = "0" if ks == 0 else d
            if seg == 0: out.append(f"v_mfma_f32_16x16x32_bf16 {d}, {w}, {x}, {c}")
            else: out.append(f"v_mfma_f32_16x16x32_bf16 {d}, {x}, {w}, {c}")
    return out

def q_read(hh, ks, slot):
    st = ((8 + (ks >> 3)) % 4) * STAGE
    out = []
    for t in range(2):
        reg, off = ldsaddr(V_WR + 3*hh, st + ((ks >> 1) & 3)*8192 + (ks & 1)*4096 + t*512)
        d = V_WF + slot*4 + t*2
        out.append(f"ds_read_b64_tr_b16 v[{d}:{d+1}], {reg} offset:{off}")
    return out

def interleave(g, mf, side, start=0, per=1):
    side = list(side)
    for i, m in enumerate(mf):
        g.A(m)
        if i >= start:
            for _ in range(per):
                if side:
                    it = side.pop(0)
                    for s in ([it] if isinstance(it, str) else it): g.A(s)
    for it in side:
        for s in ([it] if isinstance(it, str) else it): g.A(s)

def phi(g, regs, tmp):
    A = g.A
    for i, r in enumerate(regs):
        A(f"v_min_f32 v{tmp+i}, 0, v{r}")
    for i, r in enumerate(regs):
        A(f"v_mul_f32 v{tmp+i}, s{S_L2E}, v{tmp+i}")
    for i, r in enumerate(regs):
        A(f"v_exp_f32 v{tmp+i}, v{tmp+i}")
    for i, r in enumerate(regs):
        A(f"v_max_f32 v{r}, 0, v{r}")
    for i, r in enumerate(regs):
        A(f"v_add_f32 v{r}, v{r}, v{tmp+i}")
    for i, r in enumerate(regs):
        A(f"v_add_f32 v{r}, s{S_EPS}, v{r}")

def phase1_path(g, br, rw):
    A = g.A
    opt = g.opt
    halo = (br == 0)
    vm = VM()
    AH = opt.ahead
    nchunks = 12 if opt.fused else 10
    def issue(c):
        grp = chunk_dmas(c, halo)
        for it in grp:
            vm.add(("c", c))
        return grp
    for c in range(AH - 1):
        for it in issue(c):
            for s in it: A(s)
    g.stamp(1)
    read_addr_setup(g, halo)
    if br == 0: mask_setup(g, rw)
    if opt.fused:
        wo_read_setup(g, (1, 2))
    A(f"s_waitcnt vmcnt({vm.wait_n(('c', 0))})")
    A("s_barrier")
    g.stamp(2)
    for s in kv_reads(0, halo): A(s)
    for it in issue(AH - 1):
        for s in it: A(s)
    for ks in range(16):
        c = ks >> 1
        A("s_waitcnt lgkmcnt(0)")
        mf = kv_mfmas(ks, br, rw)
        if ks & 1:
            for m in mf[:opt.bar_after]: A(m)
            A(f"s_waitcnt vmcnt({vm.wait_n(('c', c + 1))})")
            A("s_barrier")
            if ks < 15: side = kv_reads(ks + 1, halo)
            else: side = q_read(0, 0, 0) + q_read(0, 1, 1) + q_read(0, 2, 2)
            nc = c + AH
            dm = issue(nc) if nc < nchunks else []
            interleave(g, mf[opt.bar_after:], side + dm, 0, 2)
        else:
            interleave(g, mf, kv_reads(ks + 1, halo), 0, 1)
    g.stamp(3)
    xa = XCH
    if br == 0:
        for Tl in range(4):
            for hh in range(2):
                k = acc(Tl, hh, 0); v = acc(Tl, hh, 1)
                kp = V_KP + (Tl*2 + hh)*2
                vp = V_VP + ((Tl & 1)*2 + hh)*6 + 2 + (Tl >> 1)*2
                A(f"v_cvt_pk_bf16_f32 v{kp}, v{k}, v{k+1}"); A(f"v_cvt_pk_bf16_f32 v{kp+1}, v{k+2}, v{k+3}")
                A(f"v_cvt_pk_bf16_f32 v{vp}, v{v}, v{v+1}"); A(f"v_cvt_pk_bf16_f32 v{vp+1}, v{v+2}, v{v+3}")
        A(f"s_lshl_b32 s{S_T0}, s{S_CW}, 13")
        A(f"v_add_u32 v2, s{S_T0}, v{V_L8}")
        A(f"v_add_u32 v2, {xa}, v2")
        if rw == 0:
            for hh in range(2):
                h = V_HACC + hh*4
                A(f"v_cvt_pk_bf16_f32 v{V_KPREV+hh*2}, v{h}, v{h+1}"); A(f"v_cvt_pk_bf16_f32 v{V_KPREV+hh*2+1}, v{h+2}, v{h+3}")
            for p in range(2):
                for hh in range(2):
                    kp = V_KP + ((2+p)*2 + hh)*2
                    vp = V_VP + (p*2 + hh)*6 + 4
                    A(f"ds_write_b64 v2, v[{kp}:{kp+1}] offset:{(p*2+hh)*1024}")
                    A(f"ds_write_b64 v2, v[{vp}:{vp+1}] offset:{(p*2+hh)*1024+512}")
        else:
            for hh in range(2):
                h = V_HACC + hh*4
                A(f"v_cvt_pk_bf16_f32 v{4+hh*2}, v{h}, v{h+1}"); A(f"v_cvt_pk_bf16_f32 v{5+hh*2}, v{h+2}, v{h+3}")
                A(f"ds_write_b64 v2, v[{4+hh*2}:{5+hh*2}] offset:{4096 + hh*512}")
        A("s_waitcnt lgkmcnt(0)")
        A("s_barrier")
        if rw == 0:
            for p in range(2):
                for hh in range(2):
                    vp = V_VP + (p*2 + hh)*6
                    A(f"ds_read_b64 v[{vp}:{vp+1}], v2 offset:{4096 + hh*512}")
        else:
            for p in range(2):
                for hh in range(2):
                    kp = V_KPREV + (p*2 + hh)*2
                    vp = V_VP + (p*2 + hh)*6
                    A(f"ds_read_b64 v[{kp}:{kp+1}], v2 offset:{(p*2+hh)*1024}")
                    A(f"ds_read_b64 v[{vp}:{vp+1}], v2 offset:{(p*2+hh)*1024+512}")
    else:
        PK, VV = V_VP, V_VP + 16
        for hh in range(2):
            regs = [acc(Tl, hh, 0) + r for Tl in range(4) for r in range(4)]
            phi(g, regs, V_QACC)
            for Tl in range(4):
                k = acc(Tl, hh, 0); v = acc(Tl, hh, 1)
                A(f"v_cvt_pk_bf16_f32 v{PK+hh*8+Tl*2}, v{k}, v{k+1}"); A(f"v_cvt_pk_bf16_f32 v{PK+hh*8+Tl*2+1}, v{k+2}, v{k+3}")
                A(f"v_cvt_pk_bf16_f32 v{VV+hh*8+Tl*2}, v{v}, v{v+1}"); A(f"v_cvt_pk_bf16_f32 v{VV+hh*8+Tl*2+1}, v{v+2}, v{v+3}")
        KVR = V_ACC
        for hh in range(2):
            d = vr(KVR + hh*8); z = vr(KVR + hh*8 + 4)
            A(f"v_mfma_f32_16x16x32_bf16 {d}, {vr(PK+hh*8)}, {vr(VV+hh*8)}, 0")
            A(f"v_mfma_f32_16x16x32_bf16 {z}, {vr(PK+hh*8)}, {vr(V_ONES)}, 0")
            A(f"v_mfma_f32_16x16x32_bf16 {d}, {vr(PK+hh*8+4)}, {vr(VV+hh*8+4)}, {d}")
            A(f"v_mfma_f32_16x16x32_bf16 {z}, {vr(PK+hh*8+4)}, {vr(V_ONES)}, {z}")
        A(f"s_lshl_b32 s{S_T0}, s{S_CW}, 13")
        A(f"v_add_u32 v2, s{S_T0}, v{V_L16}")
        A(f"v_add_u32 v2, {xa}, v2")
        oth = 1 - rw
        A(f"ds_write_b128 v2, {vr(KVR+oth*8)} offset:{rw*2048}")
        A(f"ds_write_b128 v2, {vr(KVR+oth*8+4)} offset:{rw*2048+1024}")
        A("s_waitcnt lgkmcnt(0)")
        A("s_barrier")
        A(f"ds_read_b128 {vr(KVR+16)}, v2 offset:{oth*2048}")
        A(f"ds_read_b128 {vr(KVR+20)}, v2 offset:{oth*2048+1024}")
        A("s_waitcnt lgkmcnt(0)")
        for r in range(8):
            A(f"v_add_f32 v{KVR+rw*8+r}, v{KVR+rw*8+r}, v{KVR+16+r}")
        A(f"s_lshl_b32 s{S_T0}, s{S_HG}, 2")
        A(f"s_lshl_b32 s{S_T1}, s{S_CW}, 1")
        A(f"s_add_u32 s{S_T0}, s{S_T0}, s{S_T1}")
        A(f"s_add_u32 s70, s{S_T0}, {rw}")
        A(f"s_lshl_b32 s{S_T0}, s70, 4")
        A(f"s_add_u32 s{S_T0}, s{S_T0}, s{S_RB}")
        A(f"s_lshl_b32 s{S_T1}, s{S_T0}, 10")
        A(f"s_add_u32 s{S_T1}, s{S_T1}, {WS_KV}")
        A(f"buffer_store_dwordx4 {vr(KVR+rw*8)}, v{V_L16}, {sWS}, s{S_T1} offen sc1")
        vm.add("kvst")
        A(f"s_lshl_b32 s{S_T1}, s{S_T0}, 6")
        A(f"s_add_u32 s{S_T1}, s{S_T1}, {WS_Z}")
        A(f"v_lshrrev_b32 v3, 4, v{V_L}")
        A("v_lshlrev_b32 v3, 4, v3")
        A("s_mov_b32 s68, 0x00010001"); A("s_mov_b32 s69, 0x00010001")
        A("s_mov_b64 exec, s[68:69]")
        A(f"buffer_store_dwordx4 {vr(KVR+rw*8+4)}, v3, {sWS}, s{S_T1} offen sc1")
        A("s_mov_b64 exec, -1")
        vm.add("kvst")
    g.stamp(4)
    OUTR = V_ACC + 48
    def attention(hh):
        U = lambda u: V_ACC + 12*u
        QP = V_HACC
        for u in range(4):
            q = V_QACC + (hh*4 + u)*4
            A(f"v_cvt_pk_bf16_f32 v{QP+2*u}, v{q}, v{q+1}"); A(f"v_cvt_pk_bf16_f32 v{QP+2*u+1}, v{q+2}, v{q+3}")
        for u in range(4):
            tl, p = u >> 1, u & 1
            ko = V_KP + (u*2 + hh)*2
            if tl == 1: kpv, mp = V_KP + ((u-2)*2 + hh)*2, V_MPREV
            elif rw == 1: kpv, mp = V_KPREV + (p*2 + hh)*2, V_MPREV
            else: kpv, mp = V_KPREV + hh*2, V_MHALO + 4*p
            A(f"v_mfma_f32_16x16x16_bf16 {vr(U(u))}, v[{ko}:{ko+1}], v[{QP+2*u}:{QP+2*u+1}], {vr(V_MOWN)}")
            A(f"v_mfma_f32_16x16x16_bf16 {vr(U(u)+4)}, v[{kpv}:{kpv+1}], v[{QP+2*u}:{QP+2*u+1}], {vr(mp)}")
        for u in range(4):
            for r in range(4): A(f"v_max_f32 v{U(u)+r}, v{U(u)+r}, v{U(u)+4+r}")
        for u in range(4):
            A(f"v_max3_f32 v{U(u)+4}, v{U(u)}, v{U(u)+1}, v{U(u)+2}")
        for u in range(4):
            A(f"v_max_f32 v{U(u)+4}, v{U(u)+4}, v{U(u)+3}")
        for sw in ("v_permlane32_swap_b32", "v_permlane16_swap_b32"):
            for u in range(4): A(f"v_mov_b32 v{U(u)+5}, v{U(u)+4}")
            for u in range(4): A(f"{sw} v{U(u)+4}, v{U(u)+5}")
            for u in range(4): A(f"v_max_f32 v{U(u)+4}, v{U(u)+4}, v{U(u)+5}")
        for u in range(4): A(f"v_mul_f32 v{U(u)+4}, s{S_NC}, v{U(u)+4}")
        for u in range(4):
            for r in range(4): A(f"v_fma_f32 v{U(u)+r}, v{U(u)+r}, s{S_C}, v{U(u)+4}")
        for u in range(4):
            for r in range(4): A(f"v_exp_f32 v{U(u)+r}, v{U(u)+r}")
        for u in range(4):
            A(f"v_cvt_pk_bf16_f32 v{U(u)+4}, v{U(u)}, v{U(u)+1}"); A(f"v_cvt_pk_bf16_f32 v{U(u)+5}, v{U(u)+2}, v{U(u)+3}")
        for u in range(4):
            A(f"v_and_b32 v{U(u)+10}, v{U(u)+4}, v{V_BM}"); A(f"v_and_b32 v{U(u)+11}, v{U(u)+5}, v{V_BM+1}")
            A(f"v_xor_b32 v{U(u)+8}, v{U(u)+4}, v{U(u)+10}"); A(f"v_xor_b32 v{U(u)+9}, v{U(u)+5}, v{U(u)+11}")
        for u in range(4):
            tl, p = u >> 1, u & 1
            vp = V_VP + (p*2 + hh)*6 + 2*tl
            A(f"v_mfma_f32_16x16x32_bf16 {vr(U(u))}, {vr(vp)}, {vr(U(u)+8)}, 0")
        for u in range(4):
            q = V_QACC + (hh*4 + u)*4
            A(f"v_mfma_f32_16x16x16_bf16 {vr(q)}, v[{V_ONES}:{V_ONES+1}], v[{U(u)+4}:{U(u)+5}], 0")
        for u in range(4):
            q = V_QACC + (hh*4 + u)*4
            A(f"v_rcp_f32 v{q}, v{q}")
        for u in range(4):
            q = V_QACC + (hh*4 + u)*4
            for r in range(4): A(f"v_mul_f32 v{U(u)+r}, v{U(u)+r}, v{q}")
        for u in range(4):
            o = OUTR + u*4 + hh*2
            A(f"v_cvt_pk_bf16_f32 v{o}, v{U(u)}, v{U(u)+1}"); A(f"v_cvt_pk_bf16_f32 v{o+1}, v{U(u)+2}, v{U(u)+3}")

    seq = [(hh, ks) for hh in range(2) for ks in range(16)]
    PRE = 3
    for n, (hh, ks) in enumerate(seq):
        slot = n % 8
        if (hh, ks) == (0, 8 - PRE):
            A("s_waitcnt lgkmcnt(0)")
            A(f"s_waitcnt vmcnt({vm.wait_n(('c', 9))})")
            A("s_barrier")
            if opt.fused:
                for it in issue(8 + AH) if 8 + AH < nchunks else []:
                    for s in it: A(s)
        if n + PRE < len(seq):
            for s in q_read(*seq[n + PRE], (n + PRE) % 8): A(s)
            A(f"s_waitcnt lgkmcnt({2*PRE})" if not opt.stamps else "s_waitcnt lgkmcnt(0)")
        else:
            A(f"s_waitcnt lgkmcnt({2*(len(seq)-1-n)})" if not opt.stamps else "s_waitcnt lgkmcnt(0)")
        for Tl in range(4):
            d = vr(V_QACC + (hh*4 + Tl)*4)
            c = "0" if ks == 0 else d
            A(f"v_mfma_f32_16x16x32_bf16 {d}, {vr(V_WF + slot*4)}, {vr(xf(Tl, ks), 4, 'a')}, {c}")
        if br == 1 and (hh, ks) == (0, opt.sig_ks):
            A(f"s_waitcnt vmcnt({vm.wait_n('kvst')})")
            A("s_barrier")
            if rw == 0:
                A(f"s_cmp_lg_u32 s{S_CW}, 0")
                A(f"s_cbranch_scc1 L_nosig_{br}{rw}")
                A(f"s_lshl_b32 s{S_T0}, s{S_HG}, 2")
                A("v_mov_b32 v3, 0"); A("v_mov_b32 v4, 1")
                A("s_mov_b64 exec, 1")
                A(f"buffer_atomic_add v4, v3, {sDBG}, s{S_T0} offen sc1")
                A("s_mov_b64 exec, -1")
                g.label(f"L_nosig_{br}{rw}")
                vm.add("sig")
    g.stamp(5)
    if br == 0:
        attention(0); attention(1)
    else:
        PQ = V_VP
        for hh in range(2):
            regs = [V_QACC + hh*16 + i for i in range(16)]
            phi(g, regs, V_WF)
            for Tl in range(4):
                q = V_QACC + (hh*4 + Tl)*4
                A(f"v_cvt_pk_bf16_f32 v{PQ+hh*8+Tl*2}, v{q}, v{q+1}"); A(f"v_cvt_pk_bf16_f32 v{PQ+hh*8+Tl*2+1}, v{q+2}, v{q+3}")
        g.stamp(6)
        A(f"s_lshl_b32 s{S_T0}, s{S_HG}, 2")
        A("v_mov_b32 v3, 0")
        g.label(f"L_poll_{br}{rw}")
        A(f"buffer_load_dword v4, v3, {sDBG}, s{S_T0} offen sc1")
        A("s_waitcnt vmcnt(0)")
        A(f"v_readfirstlane_b32 s{S_T1}, v4")
        A(f"s_cmp_lt_u32 s{S_T1}, 16")
        A(f"s_cbranch_scc1 L_poll_{br}{rw}")
        vm.all()
        g.stamp(7)
        A(f"s_lshl_b32 s{S_T0}, s70, 14")
        A(f"s_add_u32 s{S_T0}, s{S_T0}, {WS_KV}")
        PB = V_ACC
        for j in range(16):
            if j % 4 == 0 and j: A(f"s_add_u32 s{S_T0}, s{S_T0}, 4096")
            A(f"buffer_load_dwordx4 {vr(PB+4*j)}, v{V_L16}, {sWS}, s{S_T0} offen offset:{(j%4)*1024} sc1")
        A(f"s_lshl_b32 s{S_T0}, s70, 10")
        A(f"s_add_u32 s{S_T0}, s{S_T0}, {WS_Z}")
        A(f"v_and_b32 v3, 15, v{V_L}"); A("v_lshlrev_b32 v3, 6, v3")
        A(f"v_lshrrev_b32 v4, 4, v{V_L}"); A("v_lshl_add_u32 v3, v4, 4, v3")
        A(f"buffer_load_dwordx4 {vr(V_HACC)}, v3, {sWS}, s{S_T0} offen sc1")
        A("s_waitcnt vmcnt(0)")
        for step in (8, 4, 2, 1):
            for j in range(step):
                for r in range(4):
                    A(f"v_add_f32 v{PB+4*j+r}, v{PB+4*j+r}, v{PB+4*(j+step)+r}")
        for rot in (8, 4, 2, 1):
            for r in range(4):
                A(f"v_add_f32_dpp v{V_HACC+r}, v{V_HACC+r}, v{V_HACC+r} row_ror:{rot} row_mask:0xf bank_mask:0xf")
        KZ = V_WF
        A(f"v_cvt_pk_bf16_f32 v{KZ+rw*4}, v{PB}, v{PB+1}"); A(f"v_cvt_pk_bf16_f32 v{KZ+rw*4+1}, v{PB+2}, v{PB+3}")
        A(f"v_cvt_pk_bf16_f32 v{KZ+rw*4+2}, v{V_HACC}, v{V_HACC+1}"); A(f"v_cvt_pk_bf16_f32 v{KZ+rw*4+3}, v{V_HACC+2}, v{V_HACC+3}")
        A(f"ds_write_b128 v2, {vr(KZ+rw*4)} offset:{4096 + rw*1024}")
        A("s_waitcnt lgkmcnt(0)")
        A("s_barrier")
        A(f"ds_read_b128 {vr(KZ+(1-rw)*4)}, v2 offset:{4096 + (1-rw)*1024}")
        A("s_waitcnt lgkmcnt(0)")
        NUM = V_ACC; DEN = V_QACC
        for hh in range(2):
            for Tl in range(4):
                u = hh*4 + Tl; pq = PQ + hh*8 + Tl*2
                A(f"v_mfma_f32_16x16x16_bf16 {vr(NUM+4*u)}, v[{KZ+hh*4}:{KZ+hh*4+1}], v[{pq}:{pq+1}], 0")
                A(f"v_mfma_f32_16x16x16_bf16 {vr(DEN+4*u)}, v[{KZ+hh*4+2}:{KZ+hh*4+3}], v[{pq}:{pq+1}], 0")
        for u in range(8): A(f"v_add_f32 v{DEN+4*u}, s{S_EPS}, v{DEN+4*u}")
        for u in range(8): A(f"v_rcp_f32 v{DEN+4*u}, v{DEN+4*u}")
        for u in range(8):
            for r in range(4): A(f"v_mul_f32 v{NUM+4*u+r}, v{NUM+4*u+r}, v{DEN+4*u}")
        for u in range(8):
            hh, Tl = u >> 2, u & 3
            o = OUTR + Tl*4 + hh*2
            A(f"v_cvt_pk_bf16_f32 v{o}, v{NUM+4*u}, v{NUM+4*u+1}"); A(f"v_cvt_pk_bf16_f32 v{o+1}, v{NUM+4*u+2}, v{NUM+4*u+3}")
    A(f"s_lshl_b32 s{S_T0}, s{S_RB}, 3")
    A(f"s_add_u32 s{S_T0}, s{S_T0}, {br*128 + 4*rw}")
    A(f"s_lshl_b32 s{S_T0}, s{S_T0}, 4")
    A(f"s_lshl_b32 s{S_T1}, s{S_HG}, 1")
    A(f"s_add_u32 s{S_T0}, s{S_T0}, s{S_T1}")
    A(f"s_add_u32 s{S_T0}, s{S_T0}, s{S_CW}")
    A(f"s_lshl_b32 s{S_T0}, s{S_T0}, 10")
    for Tl in range(4):
        if Tl: A(f"s_add_u32 s{S_T0}, s{S_T0}, 16384")
        A(f"buffer_store_dwordx4 {vr(OUTR+4*Tl)}, v{V_L16}, {sWS}, s{S_T0} offen{' sc1' if opt.osc1 else ''}")
    g.stamp(8)
    A("s_branch L_fin")

def stamps_out(g, base_off):
    if not g.opt.stamps: return
    A = g.A
    A("s_waitcnt vmcnt(0)")
    g.stamp(9)
    A("s_waitcnt lgkmcnt(0)")
    A(f"s_cmp_lg_u32 s{S_WV}, 0")
    A("s_cbranch_scc1 L_end")
    for j in range(20): A(f"v_mov_b32 v{100+j}, s{72+j}")
    A(f"s_mul_i32 s{S_T0}, s2, 160")
    A(f"s_add_u32 s{S_T0}, s{S_T0}, {WS_STAMP + base_off}")
    A("v_mov_b32 v3, 0")
    A("s_mov_b64 exec, 1")
    for j in range(5):
        A(f"buffer_store_dwordx4 v[{100+4*j}:{103+4*j}], v3, {sWS}, s{S_T0} offen offset:{16*j}")

def kernel1(g):
    A = g.A
    k = "k1_kernel"
    g.L += [".globl k1_kernel", ".p2align 8", ".type k1_kernel,@function", "k1_kernel:"]
    g.stamp(0)
    decode(g)
    dma_addr_setup(g)
    A(f"s_lshl_b32 s{S_T0}, s{S_BR}, 1")
    A(f"s_add_u32 s{S_T0}, s{S_T0}, s{S_RW}")
    for v in (1, 2, 3):
        A(f"s_cmp_eq_u32 s{S_T0}, {v}")
        A(f"s_cbranch_scc1 L_path{v}")
    for v in range(4):
        g.label(f"L_path{v}")
        phase1_path(g, v >> 1, v & 1)
    g.label("L_fin")
    stamps_out(g, 0)
    g.label("L_end")
    A("s_endpgm")

def kernel2(g):
    A = g.A
    L0 = len(g.L)
    g.L += [".globl k2_kernel", ".p2align 8", ".type k2_kernel,@function", "k2_kernel:"]
    g.stamp(0)
    decode(g)
    wo_addr_setup(g)
    A(f"v_lshlrev_b32 v{V_L16}, 4, v{V_L}")
    vm = VM()
    A(f"s_lshl_b32 s{S_WOB}, s{S_WV}, 15")
    A(f"s_lshl_b32 s{S_T0}, s{S_HG}, 7")
    A(f"s_add_u32 s{S_WOB}, s{S_WOB}, s{S_T0}")
    A(f"s_lshl_b32 s{S_LW}, s{S_WV}, 12")
    A(f"s_lshl_b32 s{S_XB}, s{S_BR}, 7")
    A(f"s_lshl_b32 s{S_T0}, s{S_RB}, 3")
    A(f"s_add_u32 s{S_XB}, s{S_XB}, s{S_T0}")
    A(f"s_lshl_b32 s{S_T0}, s{S_WV}, 1")
    A(f"s_add_u32 s{S_XB}, s{S_XB}, s{S_T0}")
    A(f"s_lshl_b32 s{S_XB}, s{S_XB}, 14")
    of = lambda T, hp: 64 + (T*16 + hp)*4
    for q in range(4):
        for b in range(4):
            A(f"s_add_u32 m0, s{S_LW}, {q*16384 + b*1024}")
            A(f"s_add_u32 s{S_T2}, s{S_WOB}, {(128*q + 8*b)*1024}")
            A(f"buffer_load_dwordx4 v{V_WO}, {sWO}, s{S_T2} offen lds")
            vm.add(q)
        for T in range(2):
            A(f"s_add_u32 s{S_T2}, s{S_XB}, {T*16384 + q*4096}")
            for h4 in range(4):
                A(f"buffer_load_dwordx4 {vr(of(T, 4*q+h4))}, v{V_L16}, {sWS}, s{S_T2} offen offset:{h4*1024}")
                vm.add(q)
    g.stamp(1)
    wo_read_setup(g, (0,))
    ACC = 192
    WF = 224
    def reads(hp):
        out = []
        for c in range(4):
            for t in range(2):
                d = WF + (hp & 1)*16 + c*4 + t*2
                out.append(f"ds_read_b64_tr_b16 v[{d}:{d+1}], v{V_OR+3*c} offset:{hp*4096 + t*2048}")
        return out
    A(f"s_waitcnt vmcnt({vm.wait_n(0)})")
    A("s_barrier")
    g.stamp(2)
    for s in reads(0): A(s)
    for hp in range(16):
        A("s_waitcnt lgkmcnt(0)")
        mf = []
        for T in range(2):
            for c in range(4):
                d = vr(ACC + (T*4 + c)*4)
                mf.append(f"v_mfma_f32_16x16x32_bf16 {d}, {vr(WF + (hp&1)*16 + c*4)}, {vr(of(T, hp))}, {'0' if hp == 0 else d}")
        if hp % 4 == 3 and hp < 15:
            A(mf[0]); A(mf[1])
            A(f"s_waitcnt vmcnt({vm.wait_n((hp+1)//4)})")
            A("s_barrier")
            interleave(g, mf[2:], reads(hp + 1), 0, 2)
        else:
            interleave(g, mf, reads(hp + 1) if hp < 15 else [], 0, 1)
    g.stamp(3)
    A(f"v_and_b32 v2, 15, v{V_L}")
    A("v_lshlrev_b32 v2, 12, v2")
    A(f"v_lshrrev_b32 v3, 4, v{V_L}")
    A("v_lshl_add_u32 v2, v3, 3, v2")
    A(f"s_lshl_b32 s{S_T0}, s{S_RB}, 18")
    A(f"s_lshl_b32 s{S_T1}, s{S_WV}, 16")
    A(f"s_add_u32 s{S_T0}, s{S_T0}, s{S_T1}")
    A(f"s_lshl_b32 s{S_T1}, s{S_BR}, 10")
    A(f"s_add_u32 s{S_T0}, s{S_T0}, s{S_T1}")
    A(f"s_lshl_b32 s{S_T1}, s{S_HG}, 7")
    A(f"s_add_u32 s{S_T0}, s{S_T0}, s{S_T1}")
    for T in range(2):
        for c in range(4):
            a = ACC + (T*4 + c)*4
            o = 64 + (T*4 + c)*2
            A(f"v_cvt_pk_bf16_f32 v{o}, v{a}, v{a+1}"); A(f"v_cvt_pk_bf16_f32 v{o+1}, v{a+2}, v{a+3}")
            A(f"buffer_store_dwordx2 v[{o}:{o+1}], v2, {sOUT}, s{S_T0} offen offset:{T*2048 + c*32}")
    g.stamp(4)
    stamps_out(g, 80)
    g.label("L_end")
    A("s_endpgm")
    for i in range(L0, len(g.L)):
        g.L[i] = g.L[i].replace("L_end", "L_end2")

def desc(name, vgpr, accum):
    return [f".amdhsa_kernel {name}", f"  .amdhsa_next_free_vgpr {vgpr}", "  .amdhsa_next_free_sgpr 102",
            f"  .amdhsa_accum_offset {accum}", "  .amdhsa_group_segment_fixed_size 0", "  .amdhsa_kernarg_size 72",
            "  .amdhsa_user_sgpr_count 2", "  .amdhsa_user_sgpr_kernarg_segment_ptr 1",
            "  .amdhsa_system_sgpr_workgroup_id_x 1", ".end_amdhsa_kernel"]

def main():
    ap = argparse.ArgumentParser()
    ap.add_argument("-o", default="out.s")
    ap.add_argument("--stamps", type=int, default=0)
    ap.add_argument("--ahead", type=int, default=3)
    ap.add_argument("--bar-after", type=int, default=4)
    ap.add_argument("--sig-ks", type=int, default=10)
    ap.add_argument("--fused", type=int, default=0)
    ap.add_argument("--osc1", type=int, default=0)
    opt = ap.parse_args()
    g = G(opt)
    head = ["; generated by gen/gen1.py",
            "; @launch kernel=k1_kernel grid=(256,1,1) block=(256,1,1) lds=163840",
            "; @launch kernel=k2_kernel grid=(256,1,1) block=(256,1,1) lds=65536",
            '.amdgcn_target "amdgcn-amd-amdhsa--gfx950"', ".text"]
    kernel1(g)
    kernel2(g)
    body, n = fix_hazards(g.L)
    tail = ['.section .rodata,"a"', ".p2align 6"] + desc("k1_kernel", 512, 256) + [".p2align 6"] + desc("k2_kernel", 256, 256)
    open(opt.o, "w").write("\n".join(head + body + tail) + "\n")
    print(f"wrote {opt.o}: {len(body)} lines, {n} nops inserted")

main()
```

```python
import sys, argparse
from asmlib import fix_hazards, VM

NAME = "concat_heads__sliding_local_dilated__linear_attn_block__prompt"
STAGE = 34816
WOFF = 18432
XCH = 4 * STAGE
WS_KV = 0x400000
WS_Z = 0x480000
WS_EO = 0x500000
WS_EK = 0x501000
WS_FL = 0x502000
WS_STAMP = 0x8000000
NEG = 0xF149F2CA
LOG2E = 0x3FB8AA3B
CSC = 0x3EB8AA3B
NCSC = 0xBEB8AA3B
EPS = 0x358637BD
SPIN = 300000

sX, sW, sWS, sWO, sOUT = "s[24:27]", "s[28:31]", "s[32:35]", "s[40:43]", "s[44:47]"
S_BR, S_RB, S_HG, S_WV, S_RW, S_CW = 48, 49, 50, 51, 52, 53
S_XB, S_HB, S_WB, S_LW, S_T0, S_T1, S_T2, S_C, S_NC, S_L2E, S_EPS, S_WOB, S_LWH = 54, 55, 56, 57, 58, 59, 60, 61, 62, 63, 64, 65, 67
S_HEAD, S_SPIN = 70, 71
S_OST, S_KVS, S_ZS, S_LWO, S_OLD, S_IDX, S_XCD = 4, 5, 6, 7, 8, 23, 22
S_PFX, S_PFW, S_FLN, S_FLO, S_EOA, S_EKA, S_TAG = 9, 10, 11, 12, 13, 14, 15
S_EO, S_EK = 36, 38
V_L = 1
V_XD = 10
V_WD = 14
V_XH, V_WO = 18, 19
V_XR = 20
V_HR = 26
V_WR = 32
V_OR = 38
V_L16 = 46
V_L8 = 47
V_MOWN, V_MPREV, V_MHALO, V_BM, V_ONES = 48, 52, 56, 64, 66
V_PF0, V_PF1 = 70, 71
V_ACC = 72
V_HACC = 136
V_WF = 144
V_HF = 176
V_QACC = 184
V_VP = 216
V_KP = 240
V_KPREV = 176
V_XA = 9

def vr(b, n=4, k="v"): return f"{k}[{b}:{b+n-1}]"
def ldsaddr(base_reg, const):
    return f"v{base_reg + (const >> 16)}", const & 0xFFFF

class G:
    def __init__(self, opt):
        self.L = []; self.opt = opt; self.lds = []; self.vm = VM()
    def A(self, s):
        if s.endswith(":"): self.L.append(s)
        else: self.L.append("    " + s)
    def label(self, s): self.L.append(s + ":")
    def stamp(self, i, kv=False):
        o = self.opt
        if not o.stamps: return
        if o.kvstamps and i >= 3 and not kv and i != 11: return
        if kv and not o.kvstamps: return
        self.A(f"s_memrealtime s[{72+2*i}:{73+2*i}]")
    def emit(self, it):
        if isinstance(it, str): self.A(it)
        elif isinstance(it, list):
            for s in it: self.emit(s)
        elif it[0] == "lds":
            self.lds.append(it[1]); self.A(it[2])
        elif it[0] == "vm":
            self.vm.add(it[1])
            for s in it[2]: self.A(s)
        elif it[0] == "need": self.need(it[1])
        elif it[0] == "ldsall": self.ldsall()
        elif it[0] == "stamp": self.stamp(it[1])
        else: raise ValueError(it)
    def need(self, tag):
        idx = max((i for i, t in enumerate(self.lds) if t == tag), default=None)
        if idx is None: return
        n = len(self.lds) - 1 - idx
        self.lds = self.lds[idx + 1:]
        self.A(f"s_waitcnt lgkmcnt({min(n, 15)})")
    def ldsall(self):
        self.lds = []
        self.A("s_waitcnt lgkmcnt(0)")
    def vmwait(self, tag):
        n = self.vm.wait_n(tag)
        if n is not None: self.A(f"s_waitcnt vmcnt({n})")

def cost(it):
    if isinstance(it, str): return 1
    if isinstance(it, list): return sum(cost(x) for x in it)
    if it[0] == "vm": return len(it[2])
    return 1

def run_slots(g, mf, queues, cap=2, dma=None, dma_every=4, dma_phase=0):
    for i, (m, needs) in enumerate(mf):
        for t in needs: g.need(t)
        g.A(m)
        room = cap
        if dma and (i % dma_every) == dma_phase:
            it = dma.pop(0); g.emit(it); room -= min(cost(it), 2)
        for q in queues:
            while q and room > 0:
                it = q.pop(0); g.emit(it); room -= cost(it)

def decode(g):
    A = g.A
    A("s_cmp_ge_u32 s2, 256")
    A("s_cbranch_scc1 L_end")
    A("s_load_dwordx16 s[4:19], s[0:1], 0")
    A("s_load_dwordx2 s[20:21], s[0:1], 64")
    A("v_lshrrev_b32 v2, 6, v0")
    A(f"v_and_b32 v{V_L}, 63, v0")
    A(f"v_readfirstlane_b32 s{S_WV}, v2")
    A("s_and_b32 s22, s2, 7")
    A("s_lshr_b32 s23, s2, 3")
    A(f"s_lshr_b32 s{S_BR}, s22, 2")
    A(f"s_bfe_u32 s{S_RB}, s22, 0x10001")
    A(f"s_lshl_b32 s{S_RB}, s{S_RB}, 3")
    A(f"s_and_b32 s{S_T0}, s23, 7")
    A(f"s_add_u32 s{S_RB}, s{S_RB}, s{S_T0}")
    A(f"s_and_b32 s{S_HG}, s22, 1")
    A(f"s_lshl_b32 s{S_HG}, s{S_HG}, 2")
    A(f"s_lshr_b32 s{S_T0}, s23, 3")
    A(f"s_add_u32 s{S_T0}, s{S_T0}, s23")
    A(f"s_and_b32 s{S_T0}, s{S_T0}, 3")
    A(f"s_add_u32 s{S_HG}, s{S_HG}, s{S_T0}")
    A(f"s_lshr_b32 s{S_RW}, s{S_WV}, 1")
    A(f"s_and_b32 s{S_CW}, s{S_WV}, 1")
    l = f"v{V_L}"
    A(f"v_lshrrev_b32 v2, 3, {l}")
    A(f"v_and_b32 v3, 7, {l}")
    A(f"v_lshrrev_b32 v4, 4, {l}")
    A("v_xor_b32 v5, v3, v4")
    A("v_lshlrev_b32 v6, 11, v2")
    A(f"v_lshl_add_u32 v{V_XD}, v5, 4, v6")
    A(f"v_xor_b32 v7, 64, v{V_XD}")
    A(f"v_add_u32 v{V_XD+1}, {14*1024}, v7")
    A("v_and_b32 v5, 1, v4")
    A("v_lshlrev_b32 v5, 1, v5")
    A("v_xor_b32 v5, v3, v5")
    A("v_mul_u32_u24 v7, 3072, v2")
    A(f"v_lshl_add_u32 v{V_WD}, v5, 4, v7")
    A(f"v_xor_b32 v7, 64, v{V_WD}")
    A(f"v_add_u32 v{V_WD+1}, 22528, v7")
    A(f"s_lshl_b32 s{S_T0}, s{S_WV}, 1")
    A(f"v_add_u32 v5, s{S_T0}, v4")
    A("v_xor_b32 v5, v3, v5")
    A(f"v_lshl_add_u32 v{V_XH}, v5, 4, v6")
    A(f"s_lshl_b32 s{S_XB}, s{S_RB}, 17")
    A(f"s_lshl_b32 s{S_T0}, s{S_WV}, 15")
    A(f"s_add_u32 s{S_XB}, s{S_XB}, s{S_T0}")
    A(f"s_lshl_b32 s{S_HB}, s{S_RB}, 7")
    A(f"s_sub_i32 s{S_HB}, s{S_HB}, 16")
    A(f"s_max_i32 s{S_HB}, s{S_HB}, 0")
    A(f"s_lshl_b32 s{S_T0}, s{S_CW}, 3")
    A(f"s_add_u32 s{S_HB}, s{S_HB}, s{S_T0}")
    A(f"s_add_u32 s{S_HB}, s{S_HB}, s{S_RW}")
    A(f"s_lshl_b32 s{S_HB}, s{S_HB}, 10")
    A(f"s_mul_i32 s{S_WB}, s{S_WV}, 49152")
    A(f"s_lshl_b32 s{S_T0}, s{S_HG}, 7")
    A(f"s_add_u32 s{S_WB}, s{S_WB}, s{S_T0}")
    A(f"s_lshl_b32 s{S_LW}, s{S_WV}, 12")
    A(f"s_lshl_b32 s{S_LWH}, s{S_WV}, 9")
    A(f"s_lshl_b32 s{S_WOB}, s{S_WV}, 16")
    A(f"s_add_u32 s{S_WOB}, s{S_WOB}, s{S_T0}")
    A("s_waitcnt lgkmcnt(0)")
    A(f"s_cmp_eq_u32 s{S_BR}, 0")
    A("s_cselect_b32 s24, s4, s10"); A("s_cselect_b32 s25, s5, s11"); A("s_mov_b32 s26, 0x200000"); A("s_mov_b32 s27, 0x20000")
    A("s_cselect_b32 s28, s6, s12"); A("s_cselect_b32 s29, s7, s13"); A("s_mov_b32 s30, 0x180000"); A("s_mov_b32 s31, 0x20000")
    A("s_cselect_b32 s40, s8, s14"); A("s_cselect_b32 s41, s9, s15"); A("s_mov_b32 s42, 0x80000"); A("s_mov_b32 s43, 0x20000")
    A("s_mov_b32 s32, s20"); A("s_mov_b32 s33, s21"); A("s_mov_b32 s34, 0x10000000"); A("s_mov_b32 s35, 0x20000")
    A("s_mov_b32 s44, s16"); A("s_mov_b32 s45, s17"); A("s_mov_b32 s46, 0x400000"); A("s_mov_b32 s47, 0x20000")

def chunk_dmas(g, c, halo):
    st = (c % 4) * STAGE
    nt = " nt" if g.opt.nt else ""
    tag = ("c", c)
    out = []
    if c < 8:
        for i in range(4):
            pre = [f"s_add_u32 m0, s{S_LW}, {st}", f"s_add_u32 s{S_T2}, s{S_XB}, {c*128}"] if i == 0 else []
            out.append(("vm", tag, pre + [f"buffer_load_dwordx4 v{V_XD+(i>>1)}, {sX}, s{S_T2} offen offset:{i*1024}{nt} lds"]))
        for j in range(4):
            pre = [f"s_add_u32 m0, s{S_LW}, {st + WOFF}", f"s_add_u32 s{S_T2}, s{S_WB}, {c*64*3072 + 1024}"] if j == 0 else []
            out.append(("vm", tag, pre + [f"buffer_load_dwordx4 v{V_WD+(j>>1)}, {sW}, s{S_T2} offen offset:{j*1024}{nt} lds"]))
        if halo:
            out.append(("vm", tag, [f"s_add_u32 m0, s{S_LWH}, {st + 16384}", f"s_add_u32 s{S_T2}, s{S_HB}, {c*128}",
                        "s_mov_b32 exec_hi, 0", f"buffer_load_dwordx4 v{V_XH}, {sX}, s{S_T2} offen{nt} lds", "s_mov_b32 exec_hi, -1"]))
    elif c < 10:
        h = c - 8
        for cq in range(4):
            for bb in range(2):
                pre = []
                if bb == 0:
                    if (cq & 1) == 0: pre.append(f"s_add_u32 m0, s{S_LW}, {st + (cq >> 1)*16384}")
                    pre.append(f"s_add_u32 s{S_T2}, s{S_WB}, {(4*h+cq)*64*3072 - (cq & 1)*1024}")
                out.append(("vm", tag, pre + [f"buffer_load_dwordx4 v{V_WD+bb}, {sW}, s{S_T2} offen offset:{bb*2048 + (cq & 1)*1024}{nt} lds"]))
    else:
        h = c - 10
        for b in range(8):
            out.append(("vm", tag, [f"s_add_u32 m0, s{S_LWO}, {st + b*1024}",
                        f"s_add_u32 s{S_T2}, s{S_WOB}, {(256*h + 8*b)*1024}",
                        f"buffer_load_dwordx4 v{V_WO}, {sWO}, s{S_T2} offen{nt} lds"]))
    return out

def setup2(g, br, rw):
    A = g.A
    halo = br == 0
    l = f"v{V_L}"
    A(f"s_lshl_b32 s{S_T0}, s{S_BR}, 4"); A(f"s_add_u32 s{S_T0}, s{S_T0}, s{S_RB}")
    A(f"s_lshl_b32 s{S_EOA}, s{S_T0}, 7"); A(f"s_add_u32 s{S_EOA}, s{S_EOA}, {WS_EO}")
    A(f"s_lshl_b32 s{S_FLN}, s{S_T0}, 8"); A(f"s_add_u32 s{S_FLN}, s{S_FLN}, {WS_FL + rw*128}")
    A(f"s_lshl_b32 s{S_EKA}, s{S_HG}, 7"); A(f"s_add_u32 s{S_EKA}, s{S_EKA}, {WS_EK}")
    A(f"s_load_dwordx2 s[{S_EO}:{S_EO+1}], s[20:21], s{S_EOA}")
    if br == 1: A(f"s_load_dwordx2 s[{S_EK}:{S_EK+1}], s[20:21], s{S_EKA}")
    A(f"s_lshl_b32 s{S_T1}, s{S_HG}, 1"); A(f"s_add_u32 s{S_T1}, s{S_T1}, s{S_CW}")
    A(f"s_lshl_b32 s{S_FLO}, s{S_T1}, 3"); A(f"s_add_u32 s{S_FLO}, s{S_FLO}, s{S_FLN}")
    A(f"v_lshrrev_b32 v2, 3, {l}"); A(f"v_and_b32 v3, 7, {l}"); A(f"v_lshrrev_b32 v4, 4, {l}")
    A("v_lshlrev_b32 v5, 1, v4"); A("v_xor_b32 v5, v3, v5"); A("v_lshlrev_b32 v6, 10, v2")
    A(f"v_lshl_add_u32 v{V_WO}, v5, 4, v6")
    A(f"v_and_b32 v2, 15, {l}")
    A(f"v_lshrrev_b32 v3, 4, {l}")
    A("v_lshrrev_b32 v4, 1, v2")
    A("v_xor_b32 v5, v3, v4")
    A("v_lshlrev_b32 v6, 7, v2")
    A("v_lshl_add_u32 v6, v5, 4, v6")
    A("v_lshrrev_b32 v7, 3, v2")
    A("v_lshl_add_u32 v7, v7, 10, v6")
    A(f"v_add_u32 v{V_XR}, {rw*8192}, v7")
    A(f"v_xor_b32 v{V_XR+3}, 64, v{V_XR}")
    for kk in range(2):
        for b in (1, 2): A(f"v_add_u32 v{V_XR+3*kk+b}, {b<<16}, v{V_XR+3*kk}")
    if halo:
        A(f"v_add_u32 v{V_HR}, 16384, v6")
        A(f"v_xor_b32 v{V_HR+3}, 64, v{V_HR}")
        for kk in range(2):
            for b in (1, 2): A(f"v_add_u32 v{V_HR+3*kk+b}, {b<<16}, v{V_HR+3*kk}")
    A("v_lshrrev_b32 v4, 2, v2")
    A("v_and_b32 v5, 3, v2")
    A("v_lshrrev_b32 v8, 3, v2")
    A("v_and_b32 v7, 1, v3")
    A("v_lshl_or_b32 v8, v7, 1, v8")
    A("v_lshrrev_b32 v6, 1, v3")
    A("v_lshlrev_b32 v6, 12, v6")
    A("v_lshl_add_u32 v6, v7, 11, v6")
    A("v_lshl_add_u32 v6, v4, 7, v6")
    A("v_lshl_add_u32 v6, v5, 3, v6")
    A(f"s_lshl_b32 s{S_T0}, s{S_CW}, 1")
    A(f"v_xor_b32 v7, s{S_T0}, v8")
    A(f"v_lshl_add_u32 v{V_WR}, v7, 5, v6")
    A(f"v_xor_b32 v{V_WR+3}, 32, v{V_WR}")
    for hh in range(2):
        for b in (1, 2): A(f"v_add_u32 v{V_WR+3*hh+b}, {b<<16}, v{V_WR+3*hh}")
    A("v_lshl_add_u32 v6, v3, 2, v4")
    A("v_lshlrev_b32 v6, 7, v6")
    A("v_lshl_add_u32 v6, v5, 3, v6")
    A("v_lshl_add_u32 v6, v8, 5, v6")
    for c in range(4):
        for b in (1, 2):
            if c == 0: A(f"v_add_u32 v{V_OR+b-1}, {b<<16}, v6")
            else: A(f"v_xor_b32 v{V_OR+2*c+b-1}, {c*32}, v{V_OR+b-1}")
    A(f"v_lshlrev_b32 v{V_L16}, 4, {l}")
    A(f"v_lshlrev_b32 v{V_L8}, 3, {l}")
    A(f"s_mov_b32 s{S_C}, {CSC:#x}"); A(f"s_mov_b32 s{S_NC}, {NCSC:#x}")
    A(f"s_mov_b32 s{S_L2E}, {LOG2E:#x}"); A(f"s_mov_b32 s{S_EPS}, {EPS:#x}")
    A(f"s_mov_b32 s{S_SPIN}, {SPIN}")
    for i in range(4): A(f"v_mov_b32 v{V_ONES+i}, 0x3f803f80")
    A(f"s_lshl_b32 s{S_T0}, s{S_RB}, 3")
    A(f"s_add_u32 s{S_OLD}, s{S_T0}, {br*128}")
    A(f"s_add_u32 s{S_OST}, s{S_OLD}, {4*rw}")
    A(f"s_lshl_b32 s{S_OST}, s{S_OST}, 4")
    A(f"s_add_u32 s{S_OST}, s{S_OST}, s{S_T1}")
    A(f"s_lshl_b32 s{S_OST}, s{S_OST}, 10")
    A(f"s_lshl_b32 s{S_T1}, s{S_WV}, 1")
    A(f"s_add_u32 s{S_OLD}, s{S_OLD}, s{S_T1}")
    A(f"s_lshl_b32 s{S_OLD}, s{S_OLD}, 14")
    A(f"s_lshl_b32 s{S_LWO}, s{S_WV}, 13")
    A(f"s_lshl_b32 s{S_T0}, s{S_CW}, 13")
    A(f"v_add_u32 v{V_XA}, s{S_T0}, v{V_L16 if br else V_L8}")
    A(f"v_add_u32 v{V_XA}, {XCH}, v{V_XA}")
    if br == 1:
        A(f"s_lshl_b32 s{S_T0}, s{S_HG}, 2")
        A(f"s_lshl_b32 s{S_T1}, s{S_CW}, 1")
        A(f"s_add_u32 s{S_T0}, s{S_T0}, s{S_T1}")
        A(f"s_add_u32 s{S_HEAD}, s{S_T0}, {rw}")
        A(f"s_lshl_b32 s{S_T0}, s{S_HEAD}, 4")
        A(f"s_add_u32 s{S_T0}, s{S_T0}, s{S_RB}")
        A(f"s_lshl_b32 s{S_KVS}, s{S_T0}, 10")
        A(f"s_add_u32 s{S_KVS}, s{S_KVS}, {WS_KV}")
        A(f"s_lshl_b32 s{S_ZS}, s{S_T0}, 6")
        A(f"s_add_u32 s{S_ZS}, s{S_ZS}, {WS_Z}")
    else:
        A(f"v_and_b32 v2, 15, {l}")
        A(f"v_lshrrev_b32 v3, 4, {l}")
        A("v_lshlrev_b32 v3, 2, v3")
        A(f"v_mov_b32 v8, {NEG:#x}")
        for r in range(4):
            A(f"v_add_u32 v4, {r}, v3")
            A("v_sub_u32 v5, v2, v4")
            A("v_cmp_gt_u32 vcc, 8, v5")
            A(f"v_mov_b32 v7, {0xffff if r % 2 == 0 else 0xffff0000:#x}")
            A(f"v_cndmask_b32 v{V_MOWN+r}, v8, 0, vcc")
            A("v_cndmask_b32 v6, 0, v7, vcc")
            if r % 2 == 0: A(f"v_mov_b32 v{V_BM + r//2}, v6")
            else: A(f"v_or_b32 v{V_BM + r//2}, v{V_BM + r//2}, v6")
            A("v_add_u32 v5, 9, v2")
            A("v_cmp_ge_u32 vcc, v4, v5")
            A(f"v_cndmask_b32 v{V_MPREV+r}, v8, 0, vcc")
            if rw == 0:
                for p in range(2):
                    A(f"v_subrev_u32 v5, {8*p}, v4")
                    A("v_cmp_gt_u32 vcc, 8, v5")
                    A("v_cmp_gt_u32 s[68:69], v5, v2")
                    A("s_and_b64 vcc, vcc, s[68:69]")
                    A(f"s_cmp_eq_u32 s{S_RB}, 0")
                    A("s_cselect_b64 vcc, 0, vcc")
                    A(f"v_cndmask_b32 v{V_MHALO+4*p+r}, v8, 0, vcc")

def pf_setup(g):
    A = g.A
    l = f"v{V_L}"
    A(f"v_and_b32 v2, 31, {l}")
    A("v_lshlrev_b32 v2, 10, v2")
    A(f"v_lshrrev_b32 v3, 5, {l}")
    A(f"v_lshl_add_u32 v{V_PF0}, v3, 7, v2")
    A(f"s_lshr_b32 s{S_PFX}, s{S_RB}, 3")
    A(f"s_lshl_b32 s{S_PFX}, s{S_PFX}, 20")
    A(f"s_lshl_b32 s{S_T0}, s{S_IDX}, 15")
    A(f"s_add_u32 s{S_PFX}, s{S_PFX}, s{S_T0}")
    A(f"s_lshl_b32 s{S_T0}, s{S_WV}, 8")
    A(f"s_add_u32 s{S_PFX}, s{S_PFX}, s{S_T0}")
    A(f"v_and_b32 v4, 15, {l}")
    A("v_lshrrev_b32 v5, 2, v4")
    A("v_and_b32 v6, 3, v4")
    A(f"v_bfe_u32 v7, {l}, 4, 1")
    A("v_mul_u32_u24 v7, 3072, v7")
    A("v_mul_u32_u24 v8, 196608, v3")
    A("v_add_u32 v7, v7, v8")
    A("v_lshl_add_u32 v7, v5, 10, v7")
    A("v_lshl_add_u32 v7, v6, 7, v7")
    A("v_cmp_gt_u32 vcc, 3, v5")
    A("v_mov_b32 v8, 0x7fffffff")
    A(f"v_cndmask_b32 v{V_PF1}, v8, v7, vcc")
    A(f"s_mul_i32 s{S_PFW}, s{S_IDX}, 6144")
    A(f"s_and_b32 s{S_T0}, s{S_XCD}, 1")
    A(f"s_lshl_b32 s{S_T0}, s{S_T0}, 9")
    A(f"s_add_u32 s{S_PFW}, s{S_PFW}, s{S_T0}")
    A(f"s_mul_i32 s{S_T0}, s{S_WV}, 393216")
    A(f"s_add_u32 s{S_PFW}, s{S_PFW}, s{S_T0}")

def acc(Tl, hh, kv): return V_ACC + ((Tl * 2 + hh) * 2 + kv) * 4
def xf(Tl, ks): return (Tl * 16 + ks) * 4

def kv_reads(ks, halo):
    c = ks >> 1; kk = ks & 1; st = (c % 4) * STAGE; buf = ks & 1
    w = []
    for hh in range(2):
        for seg in range(2):
            for t in range(2):
                reg, off = ldsaddr(V_WR + 3*hh, st + WOFF + kk*8192 + seg*1024 + t*512)
                d = V_WF + buf*16 + (hh*2 + seg)*4 + t*2
                w.append(("lds", ("w", ks, hh, seg), f"ds_read_b64_tr_b16 v[{d}:{d+1}], {reg} offset:{off}"))
    xr = []
    for Tl in range(4):
        reg, off = ldsaddr(V_XR + 3*kk, st + (Tl >> 1)*4096 + (Tl & 1)*1024)
        xr.append(("lds", ("x", ks, Tl), f"ds_read_b128 {vr(xf(Tl, ks), 4, 'a')}, {reg} offset:{off}"))
    if halo:
        reg, off = ldsaddr(V_HR + 3*kk, st)
        xr.append(("lds", ("x", ks, 4), f"ds_read_b128 {vr(V_HF + buf*4)}, {reg} offset:{off}"))
    return [xr[0]] + w + xr[1:]

def kv_mfmas(ks, br, rw):
    buf = ks & 1
    out = []
    for Tl in range(4):
        for hh in range(2):
            for seg in range(2):
                w = vr(V_WF + buf*16 + (hh*2 + seg)*4)
                x = vr(xf(Tl, ks), 4, "a")
                d = vr(acc(Tl, hh, seg))
                c = "0" if ks == 0 else d
                a, b = (w, x) if (br == 0 and seg == 0) else (x, w)
                out.append((f"v_mfma_f32_16x16x32_bf16 {d}, {a}, {b}, {c}", [("x", ks, Tl), ("w", ks, hh, seg)]))
    if br == 0:
        for hh in range(2):
            seg = rw
            w = vr(V_WF + buf*16 + (hh*2 + seg)*4)
            x = vr(V_HF + buf*4)
            d = vr(V_HACC + hh*4)
            c = "0" if ks == 0 else d
            a, b = (w, x) if seg == 0 else (x, w)
            out.append((f"v_mfma_f32_16x16x32_bf16 {d}, {a}, {b}, {c}", [("x", ks, 4)]))
    return out

def q_read(hh, ks, slot):
    st = ((8 + (ks >> 3)) % 4) * STAGE
    cq = (ks >> 1) & 3; kk = ks & 1
    out = []
    for t in range(2):
        reg, off = ldsaddr(V_WR + 3*hh, st + (cq >> 1)*16384 + (cq & 1)*1024 + kk*8192 + t*512)
        d = V_WF + slot*4 + t*2
        out.append(("lds", ("q", hh, ks), f"ds_read_b64_tr_b16 v[{d}:{d+1}], {reg} offset:{off}"))
    return out

def phi_list(regs, tmp):
    out = []
    for i, r in enumerate(regs): out.append(f"v_mul_f32 v{tmp+i}, s{S_L2E}, v{r}")
    for i, r in enumerate(regs):
        out.append(f"v_exp_f32 v{tmp+i}, v{tmp+i} clamp")
        out.append(f"v_max_f32 v{r}, s{S_EPS}, v{r}")
    for i, r in enumerate(regs): out.append(f"v_add_f32 v{r}, v{r}, v{tmp+i}")
    return out

def phase1_path(g, br, rw):
    A = g.A
    opt = g.opt
    halo = (br == 0)
    tag = f"{br}{rw}"
    g.vm = VM(); g.lds = []
    for c in range(2):
        for it in chunk_dmas(g, c, halo): g.emit(it)
    g.stamp(1)
    setup2(g, br, rw)
    if opt.pf: pf_setup(g)
    if opt.pre3:
        for it in chunk_dmas(g, 2, halo): g.emit(it)
    g.vmwait(("c", 0))
    A("s_barrier")
    g.stamp(2)
    for it in kv_reads(0, halo): g.emit(it)
    dq = []
    if not opt.pre3: dq += chunk_dmas(g, 2, halo)
    dq += chunk_dmas(g, 3, halo)
    pfi = [("vm", "pf", [f"buffer_load_dword v{V_PF0}, v{V_PF0}, {sX}, s{S_PFX} offen nt"]),
           ("vm", "pf", [f"buffer_load_dword v{V_PF1}, v{V_PF1}, {sW}, s{S_PFW} offen nt"])]
    if opt.pf == 1: dq = pfi + dq
    if opt.pf == 2: dq = dq[:9] + pfi + dq[9:]
    for ks in range(16):
        c = ks >> 1
        mf = kv_mfmas(ks, br, rw)
        ev = opt.dma_every if len(dq) <= 10 else opt.dma_fast
        if ks & 1:
            run_slots(g, mf[:opt.bar_after], [], dma=dq, dma_every=ev, dma_phase=1)
            while dq and (dq[0][1] == "pf" or dq[0][1][1] <= c + 1): g.emit(dq.pop(0))
            g.ldsall()
            g.vmwait(("c", c + 1))
            A("s_barrier")
            g.stamp(3 + c, kv=True)
            rd = kv_reads(ks + 1, halo) if ks < 15 else q_read(0, 0, 0) + q_read(0, 1, 1) + q_read(0, 2, 2)
            nc = c + 4
            if nc < 12: dq += chunk_dmas(g, nc, halo)
            run_slots(g, mf[opt.bar_after:], [rd], cap=opt.cap, dma=dq, dma_every=ev, dma_phase=ev - 1)
            for it in rd: g.emit(it)
        else:
            rd = kv_reads(ks + 1, halo)
            run_slots(g, mf, [rd], cap=opt.cap_even, dma=dq, dma_every=ev, dma_phase=ev - 1)
            for it in rd: g.emit(it)
    g.stamp(3)
    S1 = []; P = S1.append
    if br == 0:
        order = [2, 3, 0, 1] if rw == 0 else [0, 1, 2, 3]
        if rw == 1:
            for hh in range(2):
                h = V_HACC + hh*4
                P(f"v_cvt_pk_bf16_f32 v{4+hh*2}, v{h}, v{h+1}"); P(f"v_cvt_pk_bf16_f32 v{5+hh*2}, v{h+2}, v{h+3}")
                P(("lds", "xw", f"ds_write_b64 v{V_XA}, v[{4+hh*2}:{5+hh*2}] offset:{4096 + hh*512}"))
        for Tl in order:
            for hh in range(2):
                k = acc(Tl, hh, 0); v = acc(Tl, hh, 1)
                kp = V_KP + (Tl*2 + hh)*2
                vp = V_VP + ((Tl & 1)*2 + hh)*6 + 2 + (Tl >> 1)*2
                P(f"v_cvt_pk_bf16_f32 v{kp}, v{k}, v{k+1}"); P(f"v_cvt_pk_bf16_f32 v{kp+1}, v{k+2}, v{k+3}")
                P(f"v_cvt_pk_bf16_f32 v{vp}, v{v}, v{v+1}"); P(f"v_cvt_pk_bf16_f32 v{vp+1}, v{v+2}, v{v+3}")
                if rw == 0 and Tl >= 2:
                    p = Tl & 1
                    P(("lds", "xw", f"ds_write_b64 v{V_XA}, v[{kp}:{kp+1}] offset:{(p*2+hh)*1024}"))
                    P(("lds", "xw", f"ds_write_b64 v{V_XA}, v[{vp}:{vp+1}] offset:{(p*2+hh)*1024+512}"))
        if rw == 0:
            for hh in range(2):
                h = V_HACC + hh*4
                P(f"v_cvt_pk_bf16_f32 v{V_KPREV+hh*2}, v{h}, v{h+1}"); P(f"v_cvt_pk_bf16_f32 v{V_KPREV+hh*2+1}, v{h+2}, v{h+3}")
        S1b = []
        for p in range(2):
            for hh in range(2):
                vp = V_VP + (p*2 + hh)*6
                if rw == 0:
                    S1b.append(("lds", "xr", f"ds_read_b64 v[{vp}:{vp+1}], v{V_XA} offset:{4096 + hh*512}"))
                else:
                    kp = V_KPREV + (p*2 + hh)*2
                    S1b.append(("lds", "xr", f"ds_read_b64 v[{kp}:{kp+1}], v{V_XA} offset:{(p*2+hh)*1024}"))
                    S1b.append(("lds", "xr", f"ds_read_b64 v[{vp}:{vp+1}], v{V_XA} offset:{(p*2+hh)*1024+512}"))
    else:
        PK, VV = V_VP, V_VP + 16
        TMP = V_QACC + 16
        KVR = V_HACC; KVO = V_HF
        oth = 1 - rw
        for hh in (oth, rw):
            regs = [acc(Tl, hh, 0) + r for Tl in range(4) for r in range(4)]
            S1 += phi_list(regs, TMP)
            for Tl in range(4):
                k = acc(Tl, hh, 0); v = acc(Tl, hh, 1)
                P(f"v_cvt_pk_bf16_f32 v{PK+hh*8+Tl*2}, v{k}, v{k+1}"); P(f"v_cvt_pk_bf16_f32 v{PK+hh*8+Tl*2+1}, v{k+2}, v{k+3}")
                P(f"v_cvt_pk_bf16_f32 v{VV+hh*8+Tl*2}, v{v}, v{v+1}"); P(f"v_cvt_pk_bf16_f32 v{VV+hh*8+Tl*2+1}, v{v+2}, v{v+3}")
            R = KVR if hh == rw else KVO
            d = vr(R); z = vr(R + 4)
            P(f"v_mfma_f32_16x16x32_bf16 {d}, {vr(PK+hh*8)}, {vr(VV+hh*8)}, 0")
            P(f"v_mfma_f32_16x16x32_bf16 {z}, {vr(PK+hh*8)}, {vr(V_ONES)}, 0")
            P(f"v_mfma_f32_16x16x32_bf16 {d}, {vr(PK+hh*8+4)}, {vr(VV+hh*8+4)}, {d}")
            P(f"v_mfma_f32_16x16x32_bf16 {z}, {vr(PK+hh*8+4)}, {vr(V_ONES)}, {z}")
            if hh == oth: wr_pos = len(S1) + 12
        S1.insert(wr_pos, ("lds", "xw", f"ds_write_b128 v{V_XA}, {vr(KVO)} offset:{rw*2048}"))
        S1.insert(wr_pos + 1, ("lds", "xw", f"ds_write_b128 v{V_XA}, {vr(KVO+4)} offset:{rw*2048+1024}"))
        S1b = [("lds", "xr", f"ds_read_b128 {vr(V_ACC)}, v{V_XA} offset:{oth*2048}"),
               ("lds", "xr", f"ds_read_b128 {vr(V_ACC+4)}, v{V_XA} offset:{oth*2048+1024}"),
               f"s_add_u32 s{S_TAG}, s{S_EK}, 1", f"s_and_b32 s{S_TAG}, s{S_TAG}, 0x7f", f"s_or_b32 s{S_TAG}, s{S_TAG}, 0x80",
               f"v_mov_b32 v4, s{S_TAG}", "v_mov_b32 v5, 0xff",
               f"v_lshrrev_b32 v3, 4, v{V_L}", "v_lshlrev_b32 v3, 4, v3",
               ("need", "xr")]
        for r in range(8): S1b.append(f"v_add_f32 v{KVR+r}, v{KVR+r}, v{V_ACC+r}")
        for r in range(8): S1b.append(f"v_bfi_b32 v{KVR+r}, v5, v4, v{KVR+r}")
        S1b.append(("vm", "kvst", [f"buffer_store_dwordx4 {vr(KVR)}, v{V_L16}, {sWS}, s{S_KVS} offen sc1"]))
        S1b.append(("vm", "kvst", ["s_mov_b32 s68, 0x00010001", "s_mov_b32 s69, 0x00010001", "s_mov_b64 exec, s[68:69]",
                    f"buffer_store_dwordx4 {vr(KVR+4)}, v3, {sWS}, s{S_ZS} offen sc1", "s_mov_b64 exec, -1"]))
        S1b.append(("stamp", 4))
    OUTR = V_ACC + 48
    def attention(hh):
        o_ = []; P = o_.append
        U = lambda u: V_ACC + 12*u
        QP = V_HACC
        for u in range(4):
            q = V_QACC + (hh*4 + u)*4
            P(f"v_cvt_pk_bf16_f32 v{QP+2*u}, v{q}, v{q+1}"); P(f"v_cvt_pk_bf16_f32 v{QP+2*u+1}, v{q+2}, v{q+3}")
        P(("need", "xr"))
        for u in range(4):
            tl, p = u >> 1, u & 1
            ko = V_KP + (u*2 + hh)*2
            if tl == 1: kpv, mp = V_KP + ((u-2)*2 + hh)*2, V_MPREV
            elif rw == 1: kpv, mp = V_KPREV + (p*2 + hh)*2, V_MPREV
            else: kpv, mp = V_KPREV + hh*2, V_MHALO + 4*p
            P(f"v_mfma_f32_16x16x16_bf16 {vr(U(u))}, v[{ko}:{ko+1}], v[{QP+2*u}:{QP+2*u+1}], {vr(V_MOWN)}")
            P(f"v_mfma_f32_16x16x16_bf16 {vr(U(u)+4)}, v[{kpv}:{kpv+1}], v[{QP+2*u}:{QP+2*u+1}], {vr(mp)}")
        for u in range(4):
            for r in range(4): P(f"v_max_f32 v{U(u)+r}, v{U(u)+r}, v{U(u)+4+r}")
        for u in range(4): P(f"v_max3_f32 v{U(u)+4}, v{U(u)}, v{U(u)+1}, v{U(u)+2}")
        for u in range(4): P(f"v_max_f32 v{U(u)+4}, v{U(u)+4}, v{U(u)+3}")
        for sw in ("v_permlane32_swap_b32", "v_permlane16_swap_b32"):
            for u in range(4): P(f"v_mov_b32 v{U(u)+5}, v{U(u)+4}")
            for u in range(4): P(f"{sw} v{U(u)+4}, v{U(u)+5}")
            for u in range(4): P(f"v_max_f32 v{U(u)+4}, v{U(u)+4}, v{U(u)+5}")
        for u in range(4): P(f"v_mul_f32 v{U(u)+4}, s{S_NC}, v{U(u)+4}")
        for u in range(4):
            for r in range(4): P(f"v_fma_f32 v{U(u)+r}, v{U(u)+r}, s{S_C}, v{U(u)+4}")
        for u in range(4):
            for r in range(4): P(f"v_exp_f32 v{U(u)+r}, v{U(u)+r}")
        for u in range(4):
            P(f"v_cvt_pk_bf16_f32 v{U(u)+4}, v{U(u)}, v{U(u)+1}"); P(f"v_cvt_pk_bf16_f32 v{U(u)+5}, v{U(u)+2}, v{U(u)+3}")
        for u in range(4):
            P(f"v_and_b32 v{U(u)+10}, v{U(u)+4}, v{V_BM}"); P(f"v_and_b32 v{U(u)+11}, v{U(u)+5}, v{V_BM+1}")
            P(f"v_xor_b32 v{U(u)+8}, v{U(u)+4}, v{U(u)+10}"); P(f"v_xor_b32 v{U(u)+9}, v{U(u)+5}, v{U(u)+11}")
        for u in range(4):
            q = V_QACC + (hh*4 + u)*4
            P(f"v_mfma_f32_16x16x16_bf16 {vr(q)}, v[{V_ONES}:{V_ONES+1}], v[{U(u)+4}:{U(u)+5}], 0")
        for u in range(4):
            tl, p = u >> 1, u & 1
            vp = V_VP + (p*2 + hh)*6 + 2*tl
            P(f"v_mfma_f32_16x16x32_bf16 {vr(U(u))}, {vr(vp)}, {vr(U(u)+8)}, 0")
        for u in range(4):
            q = V_QACC + (hh*4 + u)*4
            P(f"v_rcp_f32 v{q}, v{q}")
        for u in range(4):
            q = V_QACC + (hh*4 + u)*4
            for r in range(4): P(f"v_mul_f32 v{U(u)+r}, v{U(u)+r}, v{q}")
        for u in range(4):
            o = OUTR + u*4 + hh*2
            P(f"v_cvt_pk_bf16_f32 v{o}, v{U(u)}, v{U(u)+1}"); P(f"v_cvt_pk_bf16_f32 v{o+1}, v{U(u)+2}, v{U(u)+3}")
        return o_
    PQ = V_KP
    def phi_q(hh, tmp):
        o_ = phi_list([V_QACC + hh*16 + i for i in range(16)], tmp)
        for Tl in range(4):
            q = V_QACC + (hh*4 + Tl)*4
            o_.append(f"v_cvt_pk_bf16_f32 v{PQ+hh*8+Tl*2}, v{q}, v{q+1}"); o_.append(f"v_cvt_pk_bf16_f32 v{PQ+hh*8+Tl*2+1}, v{q+2}, v{q+3}")
        return o_
    PB = V_ACC
    def gather_items():
        it = []
        for j in range(16):
            pre = [f"s_add_u32 s{S_T2}, s{S_T0}, {j*1024}"] if j % 4 == 0 else []
            it.append(("vm", "gat", pre + [f"buffer_load_dwordx4 {vr(PB+4*j)}, v{V_L16}, {sWS}, s{S_T2} offen offset:{(j%4)*1024} sc1"]))
        it.append(("vm", "gat", [f"buffer_load_dwordx4 {vr(V_HACC)}, v3, {sWS}, s{S_T1} offen sc1"]))
        return it
    gat_setup = [f"s_lshl_b32 s{S_T0}, s{S_HEAD}, 14", f"s_add_u32 s{S_T0}, s{S_T0}, {WS_KV}",
                 f"s_lshl_b32 s{S_T1}, s{S_HEAD}, 10", f"s_add_u32 s{S_T1}, s{S_T1}, {WS_Z}",
                 f"v_and_b32 v3, 15, v{V_L}", "v_lshlrev_b32 v3, 6, v3",
                 f"v_lshrrev_b32 v4, 4, v{V_L}", "v_lshl_add_u32 v3, v4, 4, v3"]
    S2 = attention(0) if br == 0 else phi_q(0, V_VP)

    seq = [(hh, ks) for hh in range(2) for ks in range(16)]
    PRE = 3
    B9 = 8 - PRE
    side = list(S1)
    sync_done = False
    capA = -(-sum(cost(x) for x in S1) // (4 * B9)) + 1
    gq = []
    for n, (hh, ks) in enumerate(seq):
        slot = n % 8
        if n == 16:
            for it in side: g.emit(it)
            side = list(S2)
        if n == B9:
            if br == 0:
                for it in side: g.emit(it)
                side = list(S1b)
            while dq and dq[0][1][1] <= 9: g.emit(dq.pop(0))
            g.ldsall()
            g.vmwait(("c", 9))
            A("s_barrier")
        if br == 1 and not sync_done and ((not side and n > B9) or n == 15):
            for it in side: g.emit(it)
            g.ldsall()
            A("s_barrier")
            side = list(S1b); sync_done = True
        if br == 1 and n == opt.gat_at:
            for it in side: g.emit(it)
            side = []
            for it in gat_setup: g.emit(it)
            gq = gather_items()
        rd = q_read(*seq[n + PRE], (n + PRE) % 8) if n + PRE < len(seq) else []
        mf = []
        for Tl in range(4):
            d = vr(V_QACC + (hh*4 + Tl)*4)
            c = "0" if ks == 0 else d
            mf.append((f"v_mfma_f32_16x16x32_bf16 {d}, {vr(V_WF + slot*4)}, {vr(xf(Tl, ks), 4, 'a')}, {c}", [("q", hh, ks)]))
        cap = (capA if br == 0 else opt.b_cap) if n < 16 else opt.cap2
        if gq: run_slots(g, mf, [rd, side], cap=cap, dma=gq, dma_every=opt.gat_every, dma_phase=0)
        else: run_slots(g, mf, [rd, side], cap=cap, dma=dq, dma_every=4, dma_phase=3)
        for it in rd: g.emit(it)
    for it in side: g.emit(it)
    for it in dq: g.emit(it)
    g.stamp(5)
    def spin_guard(lbl_out):
        A(f"s_sub_u32 s{S_SPIN}, s{S_SPIN}, 1")
        A(f"s_cbranch_scc1 {lbl_out}")
    if br == 0:
        for it in attention(1): g.emit(it)
    else:
        if opt.gat_at >= 32:
            for it in gat_setup: g.emit(it)
            gq = gather_items()
        for it in gq: g.emit(it)
        for it in phi_q(1, V_WF): g.emit(it)
        g.stamp(6)
        A(f"v_mov_b32 v6, s{S_TAG}")
        A(f"s_branch L_kvchk_{tag}")
        g.label(f"L_kvretry_{tag}")
        spin_guard(f"L_kvok_{tag}")
        A(f"s_sleep {opt.kv_sleep}")
        for it in gather_items(): g.emit(it)
        g.label(f"L_kvchk_{tag}")
        A("s_waitcnt vmcnt(0)")
        g.vm.all()
        A(f"v_msad_u8 v4, v{PB}, v6, 0")
        A(f"v_msad_u8 v5, v{PB+1}, v6, 0")
        for i in range(2, 68):
            A(f"v_msad_u8 v{4+(i&1)}, v{PB+i}, v6, v{4+(i&1)}")
        A("v_or_b32 v4, v4, v5")
        A("v_cmp_ne_u32 vcc, 0, v4")
        A(f"s_cbranch_vccnz L_kvretry_{tag}")
        g.label(f"L_kvok_{tag}")
        g.stamp(7)
        if rw == 0:
            A(f"s_or_b32 s{S_T2}, s{S_RB}, s{S_CW}")
            A(f"s_cmp_lg_u32 s{S_T2}, 0")
            A(f"s_cbranch_scc1 L_nobk_{tag}")
            A(f"s_add_u32 s{S_T2}, s{S_EK}, 1")
            A(f"v_mov_b32 v4, s{S_T2}"); A("v_mov_b32 v5, 0")
            A("s_mov_b64 exec, 1")
            A(f"buffer_store_dword v4, v5, {sWS}, s{S_EKA} offen sc1")
            A("s_mov_b64 exec, -1")
            g.label(f"L_nobk_{tag}")
        for step in (8, 4, 2, 1):
            for j in range(step):
                for r in range(4):
                    A(f"v_add_f32 v{PB+4*j+r}, v{PB+4*j+r}, v{PB+4*(j+step)+r}")
        for rot in (8, 4, 2, 1):
            for r in range(4):
                A(f"v_add_f32_dpp v{V_HACC+r}, v{V_HACC+r}, v{V_HACC+r} row_ror:{rot} row_mask:0xf bank_mask:0xf")
        KZ = V_WF
        A(f"v_cvt_pk_bf16_f32 v{KZ+rw*4}, v{PB}, v{PB+1}"); A(f"v_cvt_pk_bf16_f32 v{KZ+rw*4+1}, v{PB+2}, v{PB+3}")
        A(f"v_cvt_pk_bf16_f32 v{KZ+rw*4+2}, v{V_HACC}, v{V_HACC+1}"); A(f"v_cvt_pk_bf16_f32 v{KZ+rw*4+3}, v{V_HACC+2}, v{V_HACC+3}")
        A(f"ds_write_b128 v{V_XA}, {vr(KZ+rw*4)} offset:{4096 + rw*1024}")
        NUM = V_ACC; DEN = V_QACC
        def omf(hh):
            for Tl in range(4):
                u = hh*4 + Tl; pq = PQ + hh*8 + Tl*2
                A(f"v_mfma_f32_16x16x16_bf16 {vr(DEN+4*u)}, v[{KZ+hh*4+2}:{KZ+hh*4+3}], v[{pq}:{pq+1}], 0")
                A(f"v_mfma_f32_16x16x16_bf16 {vr(NUM+4*u)}, v[{KZ+hh*4}:{KZ+hh*4+1}], v[{pq}:{pq+1}], 0")
        omf(rw)
        A("s_waitcnt lgkmcnt(0)")
        A("s_barrier")
        A(f"ds_read_b128 {vr(KZ+(1-rw)*4)}, v{V_XA} offset:{4096 + (1-rw)*1024}")
        def ofin(us):
            for u in us: A(f"v_add_f32 v{DEN+4*u}, s{S_EPS}, v{DEN+4*u}")
            for u in us: A(f"v_rcp_f32 v{DEN+4*u}, v{DEN+4*u}")
            for u in us:
                for r in range(4): A(f"v_mul_f32 v{NUM+4*u+r}, v{NUM+4*u+r}, v{DEN+4*u}")
            for u in us:
                hh, Tl = u >> 2, u & 3
                o = OUTR + Tl*4 + hh*2
                A(f"v_cvt_pk_bf16_f32 v{o}, v{NUM+4*u}, v{NUM+4*u+1}"); A(f"v_cvt_pk_bf16_f32 v{o+1}, v{NUM+4*u+2}, v{NUM+4*u+3}")
        A("s_waitcnt lgkmcnt(0)")
        omf(1 - rw)
        ofin([rw*4 + i for i in range(4)])
        ofin([(1-rw)*4 + i for i in range(4)])
    for Tl in range(4):
        A(f"s_add_u32 s{S_T2}, s{S_OST}, {Tl*16384}")
        A(f"buffer_store_dwordx4 {vr(OUTR+4*Tl)}, v{V_L16}, {sWS}, s{S_T2} offen sc1")
    g.stamp(8)
    A("s_branch L_phase2")

def phase2(g):
    A = g.A
    opt = g.opt
    g.label("L_phase2")
    g.lds = []
    of = lambda T, hp: 64 + (T*16 + hp)*4
    ACC = 192; WF = 224
    def reads(hp):
        out = []
        base = ((10 + (hp >> 3)) % 4) * STAGE + (hp & 7)*4096
        for c in range(4):
            for t in range(2):
                d = WF + (hp & 1)*16 + c*4 + t*2
                const = base + t*2048
                out.append(("lds", ("o", hp, c), f"ds_read_b64_tr_b16 v[{d}:{d+1}], v{V_OR + 2*c + (const >> 16) - 1} offset:{const & 0xffff}"))
        return out
    A(f"s_add_u32 s{S_T0}, s{S_EO}, 1")
    A(f"v_mov_b32 v6, s{S_T0}"); A(f"v_mov_b32 v7, s{S_EO+1}")
    A("v_mov_b32 v5, 0")
    A(f"v_and_b32 v8, 15, v{V_L}"); A("v_lshlrev_b32 v8, 3, v8")
    A(f"v_and_b32 v2, 15, v{V_L}")
    A("v_lshlrev_b32 v2, 12, v2")
    A(f"v_lshrrev_b32 v3, 4, v{V_L}")
    A("v_lshl_add_u32 v2, v3, 3, v2")
    A(f"s_lshl_b32 s{S_XB}, s{S_RB}, 18")
    A(f"s_lshl_b32 s{S_T1}, s{S_WV}, 16")
    A(f"s_add_u32 s{S_XB}, s{S_XB}, s{S_T1}")
    A(f"s_lshl_b32 s{S_T1}, s{S_BR}, 10")
    A(f"s_add_u32 s{S_XB}, s{S_XB}, s{S_T1}")
    A(f"s_lshl_b32 s{S_T1}, s{S_HG}, 7")
    A(f"s_add_u32 s{S_XB}, s{S_XB}, s{S_T1}")
    A("s_waitcnt vmcnt(0)")
    A("s_mov_b64 exec, 1")
    A(f"buffer_store_dwordx2 v[6:7], v5, {sWS}, s{S_FLO} offen sc1")
    A("s_mov_b64 exec, -1")
    g.stamp(9)
    A("s_barrier")
    for it in reads(0): g.emit(it)
    A(f"s_sleep {opt.poll0}")
    A("s_branch L_opoll1")
    g.label("L_opoll")
    A(f"s_sub_u32 s{S_SPIN}, s{S_SPIN}, 1")
    A("s_cbranch_scc1 L_ook")
    A(f"s_sleep {opt.poll1}")
    g.label("L_opoll1")
    A(f"buffer_load_dwordx2 v[10:11], v8, {sWS}, s{S_FLN} offen sc1")
    A("s_waitcnt vmcnt(0)")
    A("v_cmp_ne_u64 vcc, v[10:11], v[6:7]")
    A("s_cbranch_vccnz L_opoll")
    g.label("L_ook")
    g.stamp(10)
    for q in range(4):
        for T in range(2):
            A(f"s_add_u32 s{S_T2}, s{S_OLD}, {T*16384 + q*4096}")
            for h4 in range(4):
                A(f"buffer_load_dwordx4 {vr(of(T, 4*q+h4))}, v{V_L16}, {sWS}, s{S_T2} offen offset:{h4*1024} sc1")
    A(f"s_or_b32 s{S_T2}, s{S_HG}, s{S_WV}")
    A(f"s_cmp_lg_u32 s{S_T2}, 0")
    A("s_cbranch_scc1 L_nobo")
    A("s_mov_b64 exec, 1")
    A(f"buffer_store_dword v6, v5, {sWS}, s{S_EOA} offen sc1")
    A("s_mov_b64 exec, -1")
    g.label("L_nobo")
    for hp in range(16):
        if hp % 4 == 0: A(f"s_waitcnt vmcnt({8*(3 - hp//4)})")
        mf = []
        for T in range(2):
            for c in range(4):
                d = vr(ACC + (T*4 + c)*4)
                mf.append((f"v_mfma_f32_16x16x32_bf16 {d}, {vr(WF + (hp&1)*16 + c*4)}, {vr(of(T, hp))}, {'0' if hp == 0 else d}", [("o", hp, c)]))
        rd = reads(hp + 1) if hp < 15 else []
        run_slots(g, mf, [rd], cap=1)
    for T in range(2):
        for c in range(4):
            a = ACC + (T*4 + c)*4
            o = 64 + (T*4 + c)*2
            A(f"v_cvt_pk_bf16_f32 v{o}, v{a}, v{a+1}"); A(f"v_cvt_pk_bf16_f32 v{o+1}, v{a+2}, v{a+3}")
            A(f"buffer_store_dwordx2 v[{o}:{o+1}], v2, {sOUT}, s{S_XB} offen offset:{T*2048 + c*32}{opt.outpol}")
    if opt.stamps:
        A("s_waitcnt vmcnt(0)")
        g.stamp(11)
        A("s_waitcnt lgkmcnt(0)")
        A(f"s_cmp_lg_u32 s{S_WV}, {opt.stamp_wave}")
        A("s_cbranch_scc1 L_end")
        for j in range(24): A(f"v_mov_b32 v{100+j}, s{72+j}")
        A(f"s_mul_i32 s{S_T0}, s2, 96")
        A(f"s_add_u32 s{S_T0}, s{S_T0}, {WS_STAMP}")
        A("v_mov_b32 v3, 0")
        A("s_mov_b64 exec, 1")
        for j in range(6):
            A(f"buffer_store_dwordx4 v[{100+4*j}:{103+4*j}], v3, {sWS}, s{S_T0} offen offset:{16*j}")

def main():
    ap = argparse.ArgumentParser()
    ap.add_argument("-o", default="out.s")
    ap.add_argument("--stamps", type=int, default=0)
    ap.add_argument("--kvstamps", type=int, default=0)
    ap.add_argument("--stamp-wave", type=int, default=0)
    ap.add_argument("--bar-after", type=int, default=4)
    ap.add_argument("--nt", type=int, default=1)
    ap.add_argument("--pf", type=int, default=0)
    ap.add_argument("--pre3", type=int, default=0)
    ap.add_argument("--dma-every", type=int, default=4)
    ap.add_argument("--dma-fast", type=int, default=2)
    ap.add_argument("--cap", type=int, default=2)
    ap.add_argument("--cap-even", type=int, default=1)
    ap.add_argument("--b-cap", type=int, default=5)
    ap.add_argument("--cap2", type=int, default=3)
    ap.add_argument("--gat-at", type=int, default=27)
    ap.add_argument("--gat-every", type=int, default=1)
    ap.add_argument("--kv-sleep", type=int, default=4)
    ap.add_argument("--poll0", type=int, default=8)
    ap.add_argument("--poll1", type=int, default=6)
    ap.add_argument("--outpol", default="")
    opt = ap.parse_args()
    if opt.outpol: opt.outpol = " " + opt.outpol.replace(",", " ")
    g = G(opt)
    K = NAME + "_kernel"
    head = ["; generated by gen/gen3.py  " + " ".join(sys.argv[1:]),
            "; @launch grid=(256,1,1) block=(256,1,1) lds=163840",
            '.amdgcn_target "amdgcn-amd-amdhsa--gfx950"', ".text",
            f".globl {K}", ".p2align 8", f".type {K},@function", f"{K}:"]
    A = g.A
    g.stamp(0)
    decode(g)
    A(f"s_lshl_b32 s{S_T0}, s{S_BR}, 1")
    A(f"s_add_u32 s{S_T0}, s{S_T0}, s{S_RW}")
    for v in (1, 2, 3):
        A(f"s_cmp_eq_u32 s{S_T0}, {v}")
        A(f"s_cbranch_scc1 L_path{v}")
    for v in range(4):
        g.label(f"L_path{v}")
        phase1_path(g, v >> 1, v & 1)
    phase2(g)
    g.label("L_end")
    A("s_endpgm")
    body, n = fix_hazards(g.L)
    tail = ['.section .rodata,"a"', ".p2align 6", f".amdhsa_kernel {K}", "  .amdhsa_next_free_vgpr 512", "  .amdhsa_next_free_sgpr 102",
            "  .amdhsa_accum_offset 256", "  .amdhsa_group_segment_fixed_size 0", "  .amdhsa_kernarg_size 72",
            "  .amdhsa_user_sgpr_count 2", "  .amdhsa_user_sgpr_kernarg_segment_ptr 1",
            "  .amdhsa_system_sgpr_workgroup_id_x 1", ".end_amdhsa_kernel"]
    open(opt.o, "w").write("\n".join(head + body + tail) + "\n")
    print(f"wrote {opt.o}: {len(body)} lines, {n} nops inserted")

main()
```

```python
import sys, argparse
from asmlib import fix_hazards, VM

NAME = "concat_heads__sliding_local_dilated__linear_attn_block__prompt"
STAGE = 34816
WOFF = 18432
XCH = 4 * STAGE
WS_KV = 0x400000
WS_Z = 0x480000
WS_EO = 0x500000
WS_EK = 0x501000
WS_FL = 0x502000
WS_STAMP = 0x8000000
NEG = 0xF149F2CA
LOG2E = 0x3FB8AA3B
CSC = 0x3EB8AA3B
NCSC = 0xBEB8AA3B
EPS = 0x358637BD
SPIN = 300000

sX, sW, sWS, sWO, sOUT = "s[24:27]", "s[28:31]", "s[32:35]", "s[40:43]", "s[44:47]"
S_BR, S_RB, S_HG, S_WV, S_RW, S_CW = 48, 49, 50, 51, 52, 53
S_XB, S_HB, S_WB, S_LW, S_T0, S_T1, S_T2, S_C, S_NC, S_L2E, S_EPS, S_WOB, S_LWH = 54, 55, 56, 57, 58, 59, 60, 61, 62, 63, 64, 65, 67
S_HEAD, S_SPIN = 70, 71
S_OST, S_KVS, S_ZS, S_LWO, S_OLD, S_IDX, S_XCD = 4, 5, 6, 7, 8, 23, 22
S_PFX, S_PFW, S_FLN, S_FLO, S_EOA, S_EKA, S_TAG = 9, 10, 11, 12, 13, 14, 15
S_EO, S_EK = 36, 38
V_L = 1
V_XD = 10
V_WD = 14
V_XH, V_WO = 18, 19
V_XR = 20
V_HR = 26
V_WR = 32
V_OR = 38
V_L16 = 46
V_L8 = 47
V_MOWN, V_MPREV, V_MHALO, V_BM, V_ONES = 48, 52, 56, 64, 66
V_PF0, V_PF1 = 70, 71
V_ACC = 72
V_HACC = 136
V_WF = 144
V_HF = 176
V_QACC = 184
V_VP = 216
V_KP = 240
V_KPREV = 176
V_XA = 9

def vr(b, n=4, k="v"): return f"{k}[{b}:{b+n-1}]"
def ldsaddr(base_reg, const):
    return f"v{base_reg + (const >> 16)}", const & 0xFFFF

class G:
    def __init__(self, opt):
        self.L = []; self.opt = opt; self.lds = []; self.vm = VM()
    def A(self, s):
        if s.endswith(":"): self.L.append(s)
        else: self.L.append("    " + s)
    def label(self, s): self.L.append(s + ":")
    def stamp(self, i, kv=False):
        o = self.opt
        if not o.stamps: return
        if o.kvstamps and i >= 3 and not kv and i != 11: return
        if kv is True and not o.kvstamps: return
        if o.p2stamps and 3 <= i <= 7 and kv != "p2": return
        if kv == "p2" and not o.p2stamps: return
        self.A(f"s_memrealtime s[{72+2*i}:{73+2*i}]")
    def emit(self, it):
        if isinstance(it, str): self.A(it)
        elif isinstance(it, list):
            for s in it: self.emit(s)
        elif it[0] == "lds":
            self.lds.append(it[1]); self.A(it[2])
        elif it[0] == "vm":
            self.vm.add(it[1])
            for s in it[2]: self.A(s)
        elif it[0] == "need": self.need(it[1])
        elif it[0] == "ldsall": self.ldsall()
        elif it[0] == "stamp": self.stamp(it[1])
        else: raise ValueError(it)
    def need(self, tag):
        idx = max((i for i, t in enumerate(self.lds) if t == tag), default=None)
        if idx is None: return
        n = len(self.lds) - 1 - idx
        self.lds = self.lds[idx + 1:]
        self.A(f"s_waitcnt lgkmcnt({min(n, 15)})")
    def ldsall(self):
        self.lds = []
        self.A("s_waitcnt lgkmcnt(0)")
    def vmwait(self, tag):
        n = self.vm.wait_n(tag)
        if n is not None: self.A(f"s_waitcnt vmcnt({n})")

def cost(it):
    if isinstance(it, str): return 1
    if isinstance(it, list): return sum(cost(x) for x in it)
    if it[0] == "vm": return len(it[2])
    return 1

def run_slots(g, mf, queues, cap=2, dma=None, dma_every=4, dma_phase=0):
    for i, (m, needs) in enumerate(mf):
        for t in needs: g.need(t)
        g.A(m)
        room = cap
        if dma and (i % dma_every) == dma_phase:
            it = dma.pop(0); g.emit(it); room -= min(cost(it), 2)
        for q in queues:
            while q and room > 0:
                it = q.pop(0); g.emit(it); room -= cost(it)

def decode(g):
    A = g.A
    A("s_cmp_ge_u32 s2, 256")
    A("s_cbranch_scc1 L_end")
    A("s_load_dwordx16 s[4:19], s[0:1], 0")
    A("s_load_dwordx2 s[20:21], s[0:1], 64")
    A("v_lshrrev_b32 v2, 6, v0")
    A(f"v_and_b32 v{V_L}, 63, v0")
    A(f"v_readfirstlane_b32 s{S_WV}, v2")
    A("s_and_b32 s22, s2, 7")
    A("s_lshr_b32 s23, s2, 3")
    A(f"s_lshr_b32 s{S_BR}, s22, 2")
    if g.opt.bfirst: A(f"s_xor_b32 s{S_BR}, s{S_BR}, 1")
    A(f"s_bfe_u32 s{S_RB}, s22, 0x10001")
    A(f"s_lshl_b32 s{S_RB}, s{S_RB}, 3")
    A(f"s_and_b32 s{S_T0}, s23, 7")
    A(f"s_add_u32 s{S_RB}, s{S_RB}, s{S_T0}")
    A(f"s_and_b32 s{S_HG}, s22, 1")
    A(f"s_lshl_b32 s{S_HG}, s{S_HG}, 2")
    A(f"s_lshr_b32 s{S_T0}, s23, 3")
    A(f"s_add_u32 s{S_T0}, s{S_T0}, s23")
    A(f"s_and_b32 s{S_T0}, s{S_T0}, 3")
    A(f"s_add_u32 s{S_HG}, s{S_HG}, s{S_T0}")
    A(f"s_lshr_b32 s{S_RW}, s{S_WV}, 1")
    A(f"s_and_b32 s{S_CW}, s{S_WV}, 1")
    l = f"v{V_L}"
    A(f"v_lshrrev_b32 v2, 3, {l}")
    A(f"v_and_b32 v3, 7, {l}")
    A(f"v_lshrrev_b32 v4, 4, {l}")
    A("v_xor_b32 v5, v3, v4")
    A("v_lshlrev_b32 v6, 11, v2")
    A(f"v_lshl_add_u32 v{V_XD}, v5, 4, v6")
    A(f"v_xor_b32 v7, 64, v{V_XD}")
    A(f"v_add_u32 v{V_XD+1}, {14*1024}, v7")
    A("v_and_b32 v5, 1, v4")
    A("v_lshlrev_b32 v5, 1, v5")
    A("v_xor_b32 v5, v3, v5")
    A("v_mul_u32_u24 v7, 3072, v2")
    A(f"v_lshl_add_u32 v{V_WD}, v5, 4, v7")
    A(f"v_xor_b32 v7, 64, v{V_WD}")
    A(f"v_add_u32 v{V_WD+1}, 22528, v7")
    A(f"s_lshl_b32 s{S_T0}, s{S_WV}, 1")
    A(f"v_add_u32 v5, s{S_T0}, v4")
    A("v_xor_b32 v5, v3, v5")
    A(f"v_lshl_add_u32 v{V_XH}, v5, 4, v6")
    A(f"s_lshl_b32 s{S_XB}, s{S_RB}, 17")
    A(f"s_lshl_b32 s{S_T0}, s{S_WV}, 15")
    A(f"s_add_u32 s{S_XB}, s{S_XB}, s{S_T0}")
    A(f"s_lshl_b32 s{S_HB}, s{S_RB}, 7")
    A(f"s_sub_i32 s{S_HB}, s{S_HB}, 16")
    A(f"s_max_i32 s{S_HB}, s{S_HB}, 0")
    A(f"s_lshl_b32 s{S_T0}, s{S_CW}, 3")
    A(f"s_add_u32 s{S_HB}, s{S_HB}, s{S_T0}")
    A(f"s_add_u32 s{S_HB}, s{S_HB}, s{S_RW}")
    A(f"s_lshl_b32 s{S_HB}, s{S_HB}, 10")
    A(f"s_mul_i32 s{S_WB}, s{S_WV}, 49152")
    A(f"s_lshl_b32 s{S_T0}, s{S_HG}, 7")
    A(f"s_add_u32 s{S_WB}, s{S_WB}, s{S_T0}")
    A(f"s_lshl_b32 s{S_LW}, s{S_WV}, 12")
    A(f"s_lshl_b32 s{S_LWH}, s{S_WV}, 9")
    A(f"s_lshl_b32 s{S_WOB}, s{S_WV}, 16")
    A(f"s_add_u32 s{S_WOB}, s{S_WOB}, s{S_T0}")
    A("s_waitcnt lgkmcnt(0)")
    A(f"s_cmp_eq_u32 s{S_BR}, 0")
    A("s_cselect_b32 s24, s4, s10"); A("s_cselect_b32 s25, s5, s11"); A("s_mov_b32 s26, 0x200000"); A("s_mov_b32 s27, 0x20000")
    A("s_cselect_b32 s28, s6, s12"); A("s_cselect_b32 s29, s7, s13"); A("s_mov_b32 s30, 0x180000"); A("s_mov_b32 s31, 0x20000")
    A("s_cselect_b32 s40, s8, s14"); A("s_cselect_b32 s41, s9, s15"); A("s_mov_b32 s42, 0x80000"); A("s_mov_b32 s43, 0x20000")
    A("s_mov_b32 s32, s20"); A("s_mov_b32 s33, s21"); A("s_mov_b32 s34, 0x10000000"); A("s_mov_b32 s35, 0x20000")
    A("s_mov_b32 s44, s16"); A("s_mov_b32 s45, s17"); A("s_mov_b32 s46, 0x400000"); A("s_mov_b32 s47, 0x20000")

def chunk_dmas(g, c, halo):
    st = (c % 4) * STAGE
    nt = " nt" if g.opt.nt else ""
    tag = ("c", c)
    out = []
    if c < 8:
        for i in range(4):
            pre = [f"s_add_u32 m0, s{S_LW}, {st}", f"s_add_u32 s{S_T2}, s{S_XB}, {c*128}"] if i == 0 else []
            out.append(("vm", tag, pre + [f"buffer_load_dwordx4 v{V_XD+(i>>1)}, {sX}, s{S_T2} offen offset:{i*1024}{nt} lds"]))
        for j in range(4):
            pre = [f"s_add_u32 m0, s{S_LW}, {st + WOFF}", f"s_add_u32 s{S_T2}, s{S_WB}, {c*64*3072 + 1024}"] if j == 0 else []
            out.append(("vm", tag, pre + [f"buffer_load_dwordx4 v{V_WD+(j>>1)}, {sW}, s{S_T2} offen offset:{j*1024}{nt} lds"]))
        if halo:
            out.append(("vm", tag, [f"s_add_u32 m0, s{S_LWH}, {st + 16384}", f"s_add_u32 s{S_T2}, s{S_HB}, {c*128}",
                        "s_mov_b32 exec_hi, 0", f"buffer_load_dwordx4 v{V_XH}, {sX}, s{S_T2} offen{nt} lds", "s_mov_b32 exec_hi, -1"]))
    elif c < 10:
        h = c - 8
        for cq in range(4):
            for bb in range(2):
                pre = []
                if bb == 0:
                    if (cq & 1) == 0: pre.append(f"s_add_u32 m0, s{S_LW}, {st + (cq >> 1)*16384}")
                    pre.append(f"s_add_u32 s{S_T2}, s{S_WB}, {(4*h+cq)*64*3072 - (cq & 1)*1024}")
                out.append(("vm", tag, pre + [f"buffer_load_dwordx4 v{V_WD+bb}, {sW}, s{S_T2} offen offset:{bb*2048 + (cq & 1)*1024}{nt} lds"]))
    else:
        h = c - 10
        for b in range(8):
            out.append(("vm", tag, [f"s_add_u32 m0, s{S_LWO}, {st + b*1024}",
                        f"s_add_u32 s{S_T2}, s{S_WOB}, {(256*h + 8*b)*1024}",
                        f"buffer_load_dwordx4 v{V_WO}, {sWO}, s{S_T2} offen{nt} lds"]))
    return out

def setup2(g, br, rw):
    A = g.A
    halo = br == 0
    l = f"v{V_L}"
    A(f"s_lshl_b32 s{S_T0}, s{S_BR}, 4"); A(f"s_add_u32 s{S_T0}, s{S_T0}, s{S_RB}")
    A(f"s_lshl_b32 s{S_EOA}, s{S_T0}, 7"); A(f"s_add_u32 s{S_EOA}, s{S_EOA}, {WS_EO}")
    A(f"s_lshl_b32 s{S_FLN}, s{S_T0}, 8"); A(f"s_add_u32 s{S_FLN}, s{S_FLN}, {WS_FL + rw*128}")
    A(f"s_lshl_b32 s{S_EKA}, s{S_HG}, 7"); A(f"s_add_u32 s{S_EKA}, s{S_EKA}, {WS_EK}")
    A(f"s_load_dwordx2 s[{S_EO}:{S_EO+1}], s[20:21], s{S_EOA}")
    if br == 1: A(f"s_load_dwordx2 s[{S_EK}:{S_EK+1}], s[20:21], s{S_EKA}")
    A(f"s_lshl_b32 s{S_T1}, s{S_HG}, 1"); A(f"s_add_u32 s{S_T1}, s{S_T1}, s{S_CW}")
    A(f"s_lshl_b32 s{S_FLO}, s{S_T1}, 3"); A(f"s_add_u32 s{S_FLO}, s{S_FLO}, s{S_FLN}")
    A(f"v_lshrrev_b32 v2, 3, {l}"); A(f"v_and_b32 v3, 7, {l}"); A(f"v_lshrrev_b32 v4, 4, {l}")
    A("v_lshlrev_b32 v5, 1, v4"); A("v_xor_b32 v5, v3, v5"); A("v_lshlrev_b32 v6, 10, v2")
    A(f"v_lshl_add_u32 v{V_WO}, v5, 4, v6")
    A(f"v_and_b32 v2, 15, {l}")
    A(f"v_lshrrev_b32 v3, 4, {l}")
    A("v_lshrrev_b32 v4, 1, v2")
    A("v_xor_b32 v5, v3, v4")
    A("v_lshlrev_b32 v6, 7, v2")
    A("v_lshl_add_u32 v6, v5, 4, v6")
    A("v_lshrrev_b32 v7, 3, v2")
    A("v_lshl_add_u32 v7, v7, 10, v6")
    A(f"v_add_u32 v{V_XR}, {rw*8192}, v7")
    A(f"v_xor_b32 v{V_XR+3}, 64, v{V_XR}")
    for kk in range(2):
        for b in (1, 2): A(f"v_add_u32 v{V_XR+3*kk+b}, {b<<16}, v{V_XR+3*kk}")
    if halo:
        A(f"v_add_u32 v{V_HR}, 16384, v6")
        A(f"v_xor_b32 v{V_HR+3}, 64, v{V_HR}")
        for kk in range(2):
            for b in (1, 2): A(f"v_add_u32 v{V_HR+3*kk+b}, {b<<16}, v{V_HR+3*kk}")
    A("v_lshrrev_b32 v4, 2, v2")
    A("v_and_b32 v5, 3, v2")
    A("v_lshrrev_b32 v8, 3, v2")
    A("v_and_b32 v7, 1, v3")
    A("v_lshl_or_b32 v8, v7, 1, v8")
    A("v_lshrrev_b32 v6, 1, v3")
    A("v_lshlrev_b32 v6, 12, v6")
    A("v_lshl_add_u32 v6, v7, 11, v6")
    A("v_lshl_add_u32 v6, v4, 7, v6")
    A("v_lshl_add_u32 v6, v5, 3, v6")
    A(f"s_lshl_b32 s{S_T0}, s{S_CW}, 1")
    A(f"v_xor_b32 v7, s{S_T0}, v8")
    A(f"v_lshl_add_u32 v{V_WR}, v7, 5, v6")
    A(f"v_xor_b32 v{V_WR+3}, 32, v{V_WR}")
    for hh in range(2):
        for b in (1, 2): A(f"v_add_u32 v{V_WR+3*hh+b}, {b<<16}, v{V_WR+3*hh}")
    A("v_lshl_add_u32 v6, v3, 2, v4")
    A("v_lshlrev_b32 v6, 7, v6")
    A("v_lshl_add_u32 v6, v5, 3, v6")
    A("v_lshl_add_u32 v6, v8, 5, v6")
    for c in range(4):
        for b in (1, 2):
            if c == 0: A(f"v_add_u32 v{V_OR+b-1}, {b<<16}, v6")
            else: A(f"v_xor_b32 v{V_OR+2*c+b-1}, {c*32}, v{V_OR+b-1}")
    A(f"v_lshlrev_b32 v{V_L16}, 4, {l}")
    A(f"v_lshlrev_b32 v{V_L8}, 3, {l}")
    A(f"s_mov_b32 s{S_C}, {CSC:#x}"); A(f"s_mov_b32 s{S_NC}, {NCSC:#x}")
    A(f"s_mov_b32 s{S_L2E}, {LOG2E:#x}"); A(f"s_mov_b32 s{S_EPS}, {EPS:#x}")
    A(f"s_mov_b32 s{S_SPIN}, {SPIN}")
    for i in range(4): A(f"v_mov_b32 v{V_ONES+i}, 0x3f803f80")
    A(f"s_lshl_b32 s{S_T0}, s{S_RB}, 3")
    A(f"s_add_u32 s{S_OLD}, s{S_T0}, {br*128}")
    A(f"s_add_u32 s{S_OST}, s{S_OLD}, {4*rw}")
    A(f"s_lshl_b32 s{S_OST}, s{S_OST}, 4")
    A(f"s_add_u32 s{S_OST}, s{S_OST}, s{S_T1}")
    A(f"s_lshl_b32 s{S_OST}, s{S_OST}, 10")
    A(f"s_lshl_b32 s{S_T1}, s{S_WV}, 1")
    A(f"s_add_u32 s{S_OLD}, s{S_OLD}, s{S_T1}")
    A(f"s_lshl_b32 s{S_OLD}, s{S_OLD}, 14")
    A(f"s_lshl_b32 s{S_LWO}, s{S_WV}, 13")
    A(f"s_lshl_b32 s{S_T0}, s{S_CW}, 13")
    A(f"v_add_u32 v{V_XA}, s{S_T0}, v{V_L16 if br else V_L8}")
    A(f"v_add_u32 v{V_XA}, {XCH}, v{V_XA}")
    if br == 1:
        A(f"s_lshl_b32 s{S_T0}, s{S_HG}, 2")
        A(f"s_lshl_b32 s{S_T1}, s{S_CW}, 1")
        A(f"s_add_u32 s{S_T0}, s{S_T0}, s{S_T1}")
        A(f"s_add_u32 s{S_HEAD}, s{S_T0}, {rw}")
        A(f"s_lshl_b32 s{S_T0}, s{S_HEAD}, 4")
        A(f"s_add_u32 s{S_T0}, s{S_T0}, s{S_RB}")
        A(f"s_lshl_b32 s{S_KVS}, s{S_T0}, 10")
        A(f"s_add_u32 s{S_KVS}, s{S_KVS}, {WS_KV}")
        A(f"s_lshl_b32 s{S_ZS}, s{S_T0}, 6")
        A(f"s_add_u32 s{S_ZS}, s{S_ZS}, {WS_Z}")
    else:
        A(f"v_and_b32 v2, 15, {l}")
        A(f"v_lshrrev_b32 v3, 4, {l}")
        A("v_lshlrev_b32 v3, 2, v3")
        A(f"v_mov_b32 v8, {NEG:#x}")
        for r in range(4):
            A(f"v_add_u32 v4, {r}, v3")
            A("v_sub_u32 v5, v2, v4")
            A("v_cmp_gt_u32 vcc, 8, v5")
            A(f"v_mov_b32 v7, {0xffff if r % 2 == 0 else 0xffff0000:#x}")
            A(f"v_cndmask_b32 v{V_MOWN+r}, v8, 0, vcc")
            A("v_cndmask_b32 v6, 0, v7, vcc")
            if r % 2 == 0: A(f"v_mov_b32 v{V_BM + r//2}, v6")
            else: A(f"v_or_b32 v{V_BM + r//2}, v{V_BM + r//2}, v6")
            A("v_add_u32 v5, 9, v2")
            A("v_cmp_ge_u32 vcc, v4, v5")
            A(f"v_cndmask_b32 v{V_MPREV+r}, v8, 0, vcc")
            if rw == 0:
                for p in range(2):
                    A(f"v_subrev_u32 v5, {8*p}, v4")
                    A("v_cmp_gt_u32 vcc, 8, v5")
                    A("v_cmp_gt_u32 s[68:69], v5, v2")
                    A("s_and_b64 vcc, vcc, s[68:69]")
                    A(f"s_cmp_eq_u32 s{S_RB}, 0")
                    A("s_cselect_b64 vcc, 0, vcc")
                    A(f"v_cndmask_b32 v{V_MHALO+4*p+r}, v8, 0, vcc")

def pf_setup(g):
    A = g.A
    l = f"v{V_L}"
    A(f"v_and_b32 v2, 31, {l}")
    A("v_lshlrev_b32 v2, 10, v2")
    A(f"v_lshrrev_b32 v3, 5, {l}")
    A(f"v_lshl_add_u32 v{V_PF0}, v3, 7, v2")
    A(f"s_lshr_b32 s{S_PFX}, s{S_RB}, 3")
    A(f"s_lshl_b32 s{S_PFX}, s{S_PFX}, 20")
    A(f"s_lshl_b32 s{S_T0}, s{S_IDX}, 15")
    A(f"s_add_u32 s{S_PFX}, s{S_PFX}, s{S_T0}")
    A(f"s_lshl_b32 s{S_T0}, s{S_WV}, 8")
    A(f"s_add_u32 s{S_PFX}, s{S_PFX}, s{S_T0}")
    A(f"v_and_b32 v4, 15, {l}")
    A("v_lshrrev_b32 v5, 2, v4")
    A("v_and_b32 v6, 3, v4")
    A(f"v_bfe_u32 v7, {l}, 4, 1")
    A("v_mul_u32_u24 v7, 3072, v7")
    A("v_mul_u32_u24 v8, 196608, v3")
    A("v_add_u32 v7, v7, v8")
    A("v_lshl_add_u32 v7, v5, 10, v7")
    A("v_lshl_add_u32 v7, v6, 7, v7")
    A("v_cmp_gt_u32 vcc, 3, v5")
    A("v_mov_b32 v8, 0x7fffffff")
    A(f"v_cndmask_b32 v{V_PF1}, v8, v7, vcc")
    A(f"s_mul_i32 s{S_PFW}, s{S_IDX}, 6144")
    A(f"s_and_b32 s{S_T0}, s{S_XCD}, 1")
    A(f"s_lshl_b32 s{S_T0}, s{S_T0}, 9")
    A(f"s_add_u32 s{S_PFW}, s{S_PFW}, s{S_T0}")
    A(f"s_mul_i32 s{S_T0}, s{S_WV}, 393216")
    A(f"s_add_u32 s{S_PFW}, s{S_PFW}, s{S_T0}")

def acc(Tl, hh, kv): return V_ACC + ((Tl * 2 + hh) * 2 + kv) * 4
def xf(Tl, ks): return (Tl * 16 + ks) * 4

def kv_reads(ks, halo):
    c = ks >> 1; kk = ks & 1; st = (c % 4) * STAGE; buf = ks & 1
    w = []
    for hh in range(2):
        for seg in range(2):
            for t in range(2):
                reg, off = ldsaddr(V_WR + 3*hh, st + WOFF + kk*8192 + seg*1024 + t*512)
                d = V_WF + buf*16 + (hh*2 + seg)*4 + t*2
                w.append(("lds", ("w", ks, hh, seg), f"ds_read_b64_tr_b16 v[{d}:{d+1}], {reg} offset:{off}"))
    xr = []
    for Tl in range(4):
        reg, off = ldsaddr(V_XR + 3*kk, st + (Tl >> 1)*4096 + (Tl & 1)*1024)
        xr.append(("lds", ("x", ks, Tl), f"ds_read_b128 {vr(xf(Tl, ks), 4, 'a')}, {reg} offset:{off}"))
    if halo:
        reg, off = ldsaddr(V_HR + 3*kk, st)
        xr.append(("lds", ("x", ks, 4), f"ds_read_b128 {vr(V_HF + buf*4)}, {reg} offset:{off}"))
    return [xr[0]] + w + xr[1:]

def kv_mfmas(ks, br, rw):
    buf = ks & 1
    out = []
    for Tl in range(4):
        for hh in range(2):
            for seg in range(2):
                w = vr(V_WF + buf*16 + (hh*2 + seg)*4)
                x = vr(xf(Tl, ks), 4, "a")
                d = vr(acc(Tl, hh, seg))
                c = "0" if ks == 0 else d
                a, b = (w, x) if (br == 0 and seg == 0) else (x, w)
                out.append((f"v_mfma_f32_16x16x32_bf16 {d}, {a}, {b}, {c}", [("x", ks, Tl), ("w", ks, hh, seg)]))
    if br == 0:
        for hh in range(2):
            seg = rw
            w = vr(V_WF + buf*16 + (hh*2 + seg)*4)
            x = vr(V_HF + buf*4)
            d = vr(V_HACC + hh*4)
            c = "0" if ks == 0 else d
            a, b = (w, x) if seg == 0 else (x, w)
            out.append((f"v_mfma_f32_16x16x32_bf16 {d}, {a}, {b}, {c}", [("x", ks, 4)]))
    return out

def q_read(hh, ks, slot):
    st = ((8 + (ks >> 3)) % 4) * STAGE
    cq = (ks >> 1) & 3; kk = ks & 1
    out = []
    for t in range(2):
        reg, off = ldsaddr(V_WR + 3*hh, st + (cq >> 1)*16384 + (cq & 1)*1024 + kk*8192 + t*512)
        d = V_WF + slot*4 + t*2
        out.append(("lds", ("q", hh, ks), f"ds_read_b64_tr_b16 v[{d}:{d+1}], {reg} offset:{off}"))
    return out

def phi_list(regs, tmp):
    out = []
    for i, r in enumerate(regs): out.append(f"v_mul_f32 v{tmp+i}, s{S_L2E}, v{r}")
    for i, r in enumerate(regs):
        out.append(f"v_exp_f32 v{tmp+i}, v{tmp+i} clamp")
        out.append(f"v_max_f32 v{r}, s{S_EPS}, v{r}")
    for i, r in enumerate(regs): out.append(f"v_add_f32 v{r}, v{r}, v{tmp+i}")
    return out

def phase1_path(g, br, rw):
    A = g.A
    opt = g.opt
    halo = (br == 0)
    tag = f"{br}{rw}"
    g.vm = VM(); g.lds = []
    for c in range(2):
        for it in chunk_dmas(g, c, halo): g.emit(it)
    g.stamp(1)
    setup2(g, br, rw)
    if opt.pf: pf_setup(g)
    if opt.pre3:
        for it in chunk_dmas(g, 2, halo): g.emit(it)
    g.vmwait(("c", 0))
    A("s_barrier")
    g.stamp(2)
    for it in kv_reads(0, halo): g.emit(it)
    dq = []
    if not opt.pre3: dq += chunk_dmas(g, 2, halo)
    dq += chunk_dmas(g, 3, halo)
    pfi = [("vm", "pf", [f"buffer_load_dword v{V_PF0}, v{V_PF0}, {sX}, s{S_PFX} offen nt"]),
           ("vm", "pf", [f"buffer_load_dword v{V_PF1}, v{V_PF1}, {sW}, s{S_PFW} offen nt"])]
    if opt.pf == 1: dq = pfi + dq
    if opt.pf == 2: dq = dq[:9] + pfi + dq[9:]
    for ks in range(16):
        c = ks >> 1
        mf = kv_mfmas(ks, br, rw)
        ev = opt.dma_every if len(dq) <= 10 else opt.dma_fast
        if ks & 1:
            run_slots(g, mf[:opt.bar_after], [], dma=dq, dma_every=ev, dma_phase=1)
            while dq and (dq[0][1] == "pf" or dq[0][1][1] <= c + 1): g.emit(dq.pop(0))
            g.ldsall()
            g.vmwait(("c", c + 1))
            A("s_barrier")
            g.stamp(3 + c, kv=True)
            rd = kv_reads(ks + 1, halo) if ks < 15 else q_read(0, 0, 0) + q_read(0, 1, 1) + q_read(0, 2, 2)
            nc = c + 4
            if nc < 12: dq += chunk_dmas(g, nc, halo)
            run_slots(g, mf[opt.bar_after:], [rd], cap=opt.cap, dma=dq, dma_every=ev, dma_phase=ev - 1)
            for it in rd: g.emit(it)
        else:
            rd = kv_reads(ks + 1, halo)
            run_slots(g, mf, [rd], cap=opt.cap_even, dma=dq, dma_every=ev, dma_phase=ev - 1)
            for it in rd: g.emit(it)
    g.stamp(3)
    S1 = []; P = S1.append
    if br == 0:
        order = [2, 3, 0, 1] if rw == 0 else [0, 1, 2, 3]
        if rw == 1:
            for hh in range(2):
                h = V_HACC + hh*4
                P(f"v_cvt_pk_bf16_f32 v{4+hh*2}, v{h}, v{h+1}"); P(f"v_cvt_pk_bf16_f32 v{5+hh*2}, v{h+2}, v{h+3}")
                P(("lds", "xw", f"ds_write_b64 v{V_XA}, v[{4+hh*2}:{5+hh*2}] offset:{4096 + hh*512}"))
        for Tl in order:
            for hh in range(2):
                k = acc(Tl, hh, 0); v = acc(Tl, hh, 1)
                kp = V_KP + (Tl*2 + hh)*2
                vp = V_VP + ((Tl & 1)*2 + hh)*6 + 2 + (Tl >> 1)*2
                P(f"v_cvt_pk_bf16_f32 v{kp}, v{k}, v{k+1}"); P(f"v_cvt_pk_bf16_f32 v{kp+1}, v{k+2}, v{k+3}")
                P(f"v_cvt_pk_bf16_f32 v{vp}, v{v}, v{v+1}"); P(f"v_cvt_pk_bf16_f32 v{vp+1}, v{v+2}, v{v+3}")
                if rw == 0 and Tl >= 2:
                    p = Tl & 1
                    P(("lds", "xw", f"ds_write_b64 v{V_XA}, v[{kp}:{kp+1}] offset:{(p*2+hh)*1024}"))
                    P(("lds", "xw", f"ds_write_b64 v{V_XA}, v[{vp}:{vp+1}] offset:{(p*2+hh)*1024+512}"))
        if rw == 0:
            for hh in range(2):
                h = V_HACC + hh*4
                P(f"v_cvt_pk_bf16_f32 v{V_KPREV+hh*2}, v{h}, v{h+1}"); P(f"v_cvt_pk_bf16_f32 v{V_KPREV+hh*2+1}, v{h+2}, v{h+3}")
        S1b = []
        for p in range(2):
            for hh in range(2):
                vp = V_VP + (p*2 + hh)*6
                if rw == 0:
                    S1b.append(("lds", "xr", f"ds_read_b64 v[{vp}:{vp+1}], v{V_XA} offset:{4096 + hh*512}"))
                else:
                    kp = V_KPREV + (p*2 + hh)*2
                    S1b.append(("lds", "xr", f"ds_read_b64 v[{kp}:{kp+1}], v{V_XA} offset:{(p*2+hh)*1024}"))
                    S1b.append(("lds", "xr", f"ds_read_b64 v[{vp}:{vp+1}], v{V_XA} offset:{(p*2+hh)*1024+512}"))
    else:
        PK, VV = V_VP, V_VP + 16
        TMP = V_QACC + 16
        KVR = V_HACC; KVO = V_HF
        oth = 1 - rw
        for hh in (oth, rw):
            regs = [acc(Tl, hh, 0) + r for Tl in range(4) for r in range(4)]
            S1 += phi_list(regs, TMP)
            for Tl in range(4):
                k = acc(Tl, hh, 0); v = acc(Tl, hh, 1)
                P(f"v_cvt_pk_bf16_f32 v{PK+hh*8+Tl*2}, v{k}, v{k+1}"); P(f"v_cvt_pk_bf16_f32 v{PK+hh*8+Tl*2+1}, v{k+2}, v{k+3}")
                P(f"v_cvt_pk_bf16_f32 v{VV+hh*8+Tl*2}, v{v}, v{v+1}"); P(f"v_cvt_pk_bf16_f32 v{VV+hh*8+Tl*2+1}, v{v+2}, v{v+3}")
            R = KVR if hh == rw else KVO
            d = vr(R); z = vr(R + 4)
            P(f"v_mfma_f32_16x16x32_bf16 {d}, {vr(PK+hh*8)}, {vr(VV+hh*8)}, 0")
            P(f"v_mfma_f32_16x16x32_bf16 {z}, {vr(PK+hh*8)}, {vr(V_ONES)}, 0")
            P(f"v_mfma_f32_16x16x32_bf16 {d}, {vr(PK+hh*8+4)}, {vr(VV+hh*8+4)}, {d}")
            P(f"v_mfma_f32_16x16x32_bf16 {z}, {vr(PK+hh*8+4)}, {vr(V_ONES)}, {z}")
            if hh == oth: wr_pos = len(S1) + 12
        S1.insert(wr_pos, ("lds", "xw", f"ds_write_b128 v{V_XA}, {vr(KVO)} offset:{rw*2048}"))
        S1.insert(wr_pos + 1, ("lds", "xw", f"ds_write_b128 v{V_XA}, {vr(KVO+4)} offset:{rw*2048+1024}"))
        S1b = [("lds", "xr", f"ds_read_b128 {vr(V_ACC)}, v{V_XA} offset:{oth*2048}"),
               ("lds", "xr", f"ds_read_b128 {vr(V_ACC+4)}, v{V_XA} offset:{oth*2048+1024}"),
               f"s_add_u32 s{S_TAG}, s{S_EK}, 1", f"s_and_b32 s{S_TAG}, s{S_TAG}, 0x7f", f"s_or_b32 s{S_TAG}, s{S_TAG}, 0x80",
               f"v_mov_b32 v4, s{S_TAG}", "v_mov_b32 v5, 0xff",
               f"v_lshrrev_b32 v3, 4, v{V_L}", "v_lshlrev_b32 v3, 4, v3",
               ("need", "xr")]
        for r in range(8): S1b.append(f"v_add_f32 v{KVR+r}, v{KVR+r}, v{V_ACC+r}")
        for r in range(8): S1b.append(f"v_bfi_b32 v{KVR+r}, v5, v4, v{KVR+r}")
        S1b.append(("vm", "kvst", [f"buffer_store_dwordx4 {vr(KVR)}, v{V_L16}, {sWS}, s{S_KVS} offen sc1"]))
        S1b.append(("vm", "kvst", ["s_mov_b32 s68, 0x00010001", "s_mov_b32 s69, 0x00010001", "s_mov_b64 exec, s[68:69]",
                    f"buffer_store_dwordx4 {vr(KVR+4)}, v3, {sWS}, s{S_ZS} offen sc1", "s_mov_b64 exec, -1"]))
        S1b.append(("stamp", 4))
    OUTR = V_ACC + 48
    def attention(hh):
        o_ = []; P = o_.append
        U = lambda u: V_ACC + 12*u
        QP = V_HACC
        for u in range(4):
            q = V_QACC + (hh*4 + u)*4
            P(f"v_cvt_pk_bf16_f32 v{QP+2*u}, v{q}, v{q+1}"); P(f"v_cvt_pk_bf16_f32 v{QP+2*u+1}, v{q+2}, v{q+3}")
        P(("need", "xr"))
        for u in range(4):
            tl, p = u >> 1, u & 1
            ko = V_KP + (u*2 + hh)*2
            if tl == 1: kpv, mp = V_KP + ((u-2)*2 + hh)*2, V_MPREV
            elif rw == 1: kpv, mp = V_KPREV + (p*2 + hh)*2, V_MPREV
            else: kpv, mp = V_KPREV + hh*2, V_MHALO + 4*p
            P(f"v_mfma_f32_16x16x16_bf16 {vr(U(u))}, v[{ko}:{ko+1}], v[{QP+2*u}:{QP+2*u+1}], {vr(V_MOWN)}")
            P(f"v_mfma_f32_16x16x16_bf16 {vr(U(u)+4)}, v[{kpv}:{kpv+1}], v[{QP+2*u}:{QP+2*u+1}], {vr(mp)}")
        for u in range(4):
            for r in range(4): P(f"v_max_f32 v{U(u)+r}, v{U(u)+r}, v{U(u)+4+r}")
        for u in range(4): P(f"v_max3_f32 v{U(u)+4}, v{U(u)}, v{U(u)+1}, v{U(u)+2}")
        for u in range(4): P(f"v_max_f32 v{U(u)+4}, v{U(u)+4}, v{U(u)+3}")
        for sw in ("v_permlane32_swap_b32", "v_permlane16_swap_b32"):
            for u in range(4): P(f"v_mov_b32 v{U(u)+5}, v{U(u)+4}")
            for u in range(4): P(f"{sw} v{U(u)+4}, v{U(u)+5}")
            for u in range(4): P(f"v_max_f32 v{U(u)+4}, v{U(u)+4}, v{U(u)+5}")
        for u in range(4): P(f"v_mul_f32 v{U(u)+4}, s{S_NC}, v{U(u)+4}")
        for u in range(4):
            for r in range(4): P(f"v_fma_f32 v{U(u)+r}, v{U(u)+r}, s{S_C}, v{U(u)+4}")
        for u in range(4):
            for r in range(4): P(f"v_exp_f32 v{U(u)+r}, v{U(u)+r}")
        for u in range(4):
            P(f"v_cvt_pk_bf16_f32 v{U(u)+4}, v{U(u)}, v{U(u)+1}"); P(f"v_cvt_pk_bf16_f32 v{U(u)+5}, v{U(u)+2}, v{U(u)+3}")
        for u in range(4):
            P(f"v_and_b32 v{U(u)+10}, v{U(u)+4}, v{V_BM}"); P(f"v_and_b32 v{U(u)+11}, v{U(u)+5}, v{V_BM+1}")
            P(f"v_xor_b32 v{U(u)+8}, v{U(u)+4}, v{U(u)+10}"); P(f"v_xor_b32 v{U(u)+9}, v{U(u)+5}, v{U(u)+11}")
        for u in range(4):
            q = V_QACC + (hh*4 + u)*4
            P(f"v_mfma_f32_16x16x16_bf16 {vr(q)}, v[{V_ONES}:{V_ONES+1}], v[{U(u)+4}:{U(u)+5}], 0")
        for u in range(4):
            tl, p = u >> 1, u & 1
            vp = V_VP + (p*2 + hh)*6 + 2*tl
            P(f"v_mfma_f32_16x16x32_bf16 {vr(U(u))}, {vr(vp)}, {vr(U(u)+8)}, 0")
        for u in range(4):
            q = V_QACC + (hh*4 + u)*4
            P(f"v_rcp_f32 v{q}, v{q}")
        for u in range(4):
            q = V_QACC + (hh*4 + u)*4
            for r in range(4): P(f"v_mul_f32 v{U(u)+r}, v{U(u)+r}, v{q}")
        for u in range(4):
            o = OUTR + u*4 + hh*2
            P(f"v_cvt_pk_bf16_f32 v{o}, v{U(u)}, v{U(u)+1}"); P(f"v_cvt_pk_bf16_f32 v{o+1}, v{U(u)+2}, v{U(u)+3}")
        return o_
    PQ = V_KP
    def phi_q(hh, tmp):
        o_ = phi_list([V_QACC + hh*16 + i for i in range(16)], tmp)
        for Tl in range(4):
            q = V_QACC + (hh*4 + Tl)*4
            o_.append(f"v_cvt_pk_bf16_f32 v{PQ+hh*8+Tl*2}, v{q}, v{q+1}"); o_.append(f"v_cvt_pk_bf16_f32 v{PQ+hh*8+Tl*2+1}, v{q+2}, v{q+3}")
        return o_
    PB = V_ACC
    def gather_items():
        it = []
        for j in range(16):
            pre = [f"s_add_u32 s{S_T2}, s{S_T0}, {j*1024}"] if j % 4 == 0 else []
            it.append(("vm", "gat", pre + [f"buffer_load_dwordx4 {vr(PB+4*j)}, v{V_L16}, {sWS}, s{S_T2} offen offset:{(j%4)*1024} sc1"]))
        it.append(("vm", "gat", [f"buffer_load_dwordx4 {vr(V_HACC)}, v3, {sWS}, s{S_T1} offen sc1"]))
        return it
    gat_setup = [f"s_lshl_b32 s{S_T0}, s{S_HEAD}, 14", f"s_add_u32 s{S_T0}, s{S_T0}, {WS_KV}",
                 f"s_lshl_b32 s{S_T1}, s{S_HEAD}, 10", f"s_add_u32 s{S_T1}, s{S_T1}, {WS_Z}",
                 f"v_and_b32 v3, 15, v{V_L}", "v_lshlrev_b32 v3, 6, v3",
                 f"v_lshrrev_b32 v4, 4, v{V_L}", "v_lshl_add_u32 v3, v4, 4, v3"]
    S2 = attention(0) if br == 0 else phi_q(0, V_VP)

    seq = [(hh, ks) for hh in range(2) for ks in range(16)]
    PRE = 3
    B9 = 8 - PRE
    side = list(S1)
    sync_done = False
    capA = -(-sum(cost(x) for x in S1) // (4 * B9)) + 1
    gq = []
    for n, (hh, ks) in enumerate(seq):
        slot = n % 8
        if n == 16:
            for it in side: g.emit(it)
            side = list(S2)
        if n == B9:
            if br == 0:
                for it in side: g.emit(it)
                side = list(S1b)
            while dq and dq[0][1][1] <= 9: g.emit(dq.pop(0))
            g.ldsall()
            g.vmwait(("c", 9))
            A("s_barrier")
        if br == 1 and not sync_done and ((not side and n > B9) or n == 15):
            for it in side: g.emit(it)
            g.ldsall()
            A("s_barrier")
            side = list(S1b); sync_done = True
        if br == 1 and n == opt.gat_at:
            for it in side: g.emit(it)
            side = []
            for it in gat_setup: g.emit(it)
            gq = gather_items()
        rd = q_read(*seq[n + PRE], (n + PRE) % 8) if n + PRE < len(seq) else []
        mf = []
        for Tl in range(4):
            d = vr(V_QACC + (hh*4 + Tl)*4)
            c = "0" if ks == 0 else d
            mf.append((f"v_mfma_f32_16x16x32_bf16 {d}, {vr(V_WF + slot*4)}, {vr(xf(Tl, ks), 4, 'a')}, {c}", [("q", hh, ks)]))
        cap = (capA if br == 0 else opt.b_cap) if n < 16 else opt.cap2
        if gq: run_slots(g, mf, [rd, side], cap=cap, dma=gq, dma_every=opt.gat_every, dma_phase=0)
        else: run_slots(g, mf, [rd, side], cap=cap, dma=dq, dma_every=4, dma_phase=3)
        for it in rd: g.emit(it)
    for it in side: g.emit(it)
    for it in dq: g.emit(it)
    g.stamp(5)
    def spin_guard(lbl_out):
        A(f"s_sub_u32 s{S_SPIN}, s{S_SPIN}, 1")
        A(f"s_cbranch_scc1 {lbl_out}")
    if br == 0:
        for it in attention(1): g.emit(it)
    else:
        if opt.gat_at >= 32:
            for it in gat_setup: g.emit(it)
            gq = gather_items()
        for it in gq: g.emit(it)
        for it in phi_q(1, V_WF): g.emit(it)
        g.stamp(6)
        A(f"v_mov_b32 v6, s{S_TAG}")
        A(f"s_branch L_kvchk_{tag}")
        g.label(f"L_kvretry_{tag}")
        spin_guard(f"L_kvok_{tag}")
        A(f"s_sleep {opt.kv_sleep}")
        for it in gather_items(): g.emit(it)
        g.label(f"L_kvchk_{tag}")
        A("s_waitcnt vmcnt(0)")
        g.vm.all()
        A(f"v_msad_u8 v4, v{PB}, v6, 0")
        A(f"v_msad_u8 v5, v{PB+1}, v6, 0")
        for i in range(2, 68):
            A(f"v_msad_u8 v{4+(i&1)}, v{PB+i}, v6, v{4+(i&1)}")
        A("v_or_b32 v4, v4, v5")
        A("v_cmp_ne_u32 vcc, 0, v4")
        A(f"s_cbranch_vccnz L_kvretry_{tag}")
        g.label(f"L_kvok_{tag}")
        g.stamp(7)
        if rw == 0:
            A(f"s_or_b32 s{S_T2}, s{S_RB}, s{S_CW}")
            A(f"s_cmp_lg_u32 s{S_T2}, 0")
            A(f"s_cbranch_scc1 L_nobk_{tag}")
            A(f"s_add_u32 s{S_T2}, s{S_EK}, 1")
            A(f"v_mov_b32 v4, s{S_T2}"); A("v_mov_b32 v5, 0")
            A("s_mov_b64 exec, 1")
            A(f"buffer_store_dword v4, v5, {sWS}, s{S_EKA} offen sc1")
            A("s_mov_b64 exec, -1")
            g.label(f"L_nobk_{tag}")
        for step in (8, 4, 2, 1):
            for j in range(step):
                for r in range(4):
                    A(f"v_add_f32 v{PB+4*j+r}, v{PB+4*j+r}, v{PB+4*(j+step)+r}")
        for rot in (8, 4, 2, 1):
            for r in range(4):
                A(f"v_add_f32_dpp v{V_HACC+r}, v{V_HACC+r}, v{V_HACC+r} row_ror:{rot} row_mask:0xf bank_mask:0xf")
        KZ = V_WF
        A(f"v_cvt_pk_bf16_f32 v{KZ+rw*4}, v{PB}, v{PB+1}"); A(f"v_cvt_pk_bf16_f32 v{KZ+rw*4+1}, v{PB+2}, v{PB+3}")
        A(f"v_cvt_pk_bf16_f32 v{KZ+rw*4+2}, v{V_HACC}, v{V_HACC+1}"); A(f"v_cvt_pk_bf16_f32 v{KZ+rw*4+3}, v{V_HACC+2}, v{V_HACC+3}")
        A(f"ds_write_b128 v{V_XA}, {vr(KZ+rw*4)} offset:{4096 + rw*1024}")
        NUM = V_ACC; DEN = V_QACC
        def omf(hh):
            for Tl in range(4):
                u = hh*4 + Tl; pq = PQ + hh*8 + Tl*2
                A(f"v_mfma_f32_16x16x16_bf16 {vr(DEN+4*u)}, v[{KZ+hh*4+2}:{KZ+hh*4+3}], v[{pq}:{pq+1}], 0")
                A(f"v_mfma_f32_16x16x16_bf16 {vr(NUM+4*u)}, v[{KZ+hh*4}:{KZ+hh*4+1}], v[{pq}:{pq+1}], 0")
        omf(rw)
        A("s_waitcnt lgkmcnt(0)")
        A("s_barrier")
        A(f"ds_read_b128 {vr(KZ+(1-rw)*4)}, v{V_XA} offset:{4096 + (1-rw)*1024}")
        def ofin(us):
            for u in us: A(f"v_add_f32 v{DEN+4*u}, s{S_EPS}, v{DEN+4*u}")
            for u in us: A(f"v_rcp_f32 v{DEN+4*u}, v{DEN+4*u}")
            for u in us:
                for r in range(4): A(f"v_mul_f32 v{NUM+4*u+r}, v{NUM+4*u+r}, v{DEN+4*u}")
            for u in us:
                hh, Tl = u >> 2, u & 3
                o = OUTR + Tl*4 + hh*2
                A(f"v_cvt_pk_bf16_f32 v{o}, v{NUM+4*u}, v{NUM+4*u+1}"); A(f"v_cvt_pk_bf16_f32 v{o+1}, v{NUM+4*u+2}, v{NUM+4*u+3}")
        A("s_waitcnt lgkmcnt(0)")
        omf(1 - rw)
        ofin([rw*4 + i for i in range(4)])
        ofin([(1-rw)*4 + i for i in range(4)])
    for Tl in range(4):
        A(f"s_add_u32 s{S_T2}, s{S_OST}, {Tl*16384}")
        A(f"buffer_store_dwordx4 {vr(OUTR+4*Tl)}, v{V_L16}, {sWS}, s{S_T2} offen sc1")
    g.stamp(8)
    A("s_branch L_phase2")

def phase2(g):
    A = g.A
    opt = g.opt
    g.label("L_phase2")
    g.lds = []
    of = lambda T, hp: 64 + (T*16 + hp)*4
    ACC = 192; WF = 224
    def reads(hp):
        out = []
        base = ((10 + (hp >> 3)) % 4) * STAGE + (hp & 7)*4096
        for c in range(4):
            for t in range(2):
                d = WF + (hp & 1)*16 + c*4 + t*2
                const = base + t*2048
                out.append(("lds", ("o", hp, c), f"ds_read_b64_tr_b16 v[{d}:{d+1}], v{V_OR + 2*c + (const >> 16) - 1} offset:{const & 0xffff}"))
        return out
    A(f"s_add_u32 s{S_T0}, s{S_EO}, 1")
    A(f"v_mov_b32 v6, s{S_T0}"); A(f"v_mov_b32 v7, s{S_EO+1}")
    A("v_mov_b32 v5, 0")
    A(f"v_and_b32 v8, 15, v{V_L}"); A("v_lshlrev_b32 v8, 3, v8")
    A(f"v_and_b32 v2, 15, v{V_L}")
    A("v_lshlrev_b32 v2, 12, v2")
    A(f"v_lshrrev_b32 v3, 4, v{V_L}")
    A("v_lshl_add_u32 v2, v3, 3, v2")
    A(f"s_lshl_b32 s{S_XB}, s{S_RB}, 18")
    A(f"s_lshl_b32 s{S_T1}, s{S_WV}, 16")
    A(f"s_add_u32 s{S_XB}, s{S_XB}, s{S_T1}")
    A(f"s_lshl_b32 s{S_T1}, s{S_BR}, 10")
    A(f"s_add_u32 s{S_XB}, s{S_XB}, s{S_T1}")
    A(f"s_lshl_b32 s{S_T1}, s{S_HG}, 7")
    A(f"s_add_u32 s{S_XB}, s{S_XB}, s{S_T1}")
    A("s_waitcnt vmcnt(0)")
    A("s_mov_b64 exec, 1")
    A(f"buffer_store_dwordx2 v[6:7], v5, {sWS}, s{S_FLO} offen sc1")
    A("s_mov_b64 exec, -1")
    g.stamp(9)
    A("s_barrier")
    for it in reads(0): g.emit(it)
    A(f"s_sleep {opt.poll0}")
    A("s_branch L_opoll1")
    g.label("L_opoll")
    A(f"s_sub_u32 s{S_SPIN}, s{S_SPIN}, 1")
    A("s_cbranch_scc1 L_ook")
    A(f"s_sleep {opt.poll1}")
    g.label("L_opoll1")
    A(f"buffer_load_dwordx2 v[10:11], v8, {sWS}, s{S_FLN} offen sc1")
    A("s_waitcnt vmcnt(0)")
    A("v_cmp_ne_u64 vcc, v[10:11], v[6:7]")
    A("s_cbranch_vccnz L_opoll")
    g.label("L_ook")
    g.stamp(10)
    for q in range(4):
        for T in range(2):
            A(f"s_add_u32 s{S_T2}, s{S_OLD}, {T*16384 + q*4096}")
            for h4 in range(4):
                A(f"buffer_load_dwordx4 {vr(of(T, 4*q+h4))}, v{V_L16}, {sWS}, s{S_T2} offen offset:{h4*1024} sc1")
    A(f"s_or_b32 s{S_T2}, s{S_HG}, s{S_WV}")
    A(f"s_cmp_lg_u32 s{S_T2}, 0")
    A("s_cbranch_scc1 L_nobo")
    A("s_mov_b64 exec, 1")
    A(f"buffer_store_dword v6, v5, {sWS}, s{S_EOA} offen sc1")
    A("s_mov_b64 exec, -1")
    g.label("L_nobo")
    for hp in range(16):
        if hp % 4 == 0:
            A(f"s_waitcnt vmcnt({8*(3 - hp//4)})")
            g.stamp(3 + hp//4, kv="p2")
        mf = []
        for T in range(2):
            for c in range(4):
                d = vr(ACC + (T*4 + c)*4)
                mf.append((f"v_mfma_f32_16x16x32_bf16 {d}, {vr(WF + (hp&1)*16 + c*4)}, {vr(of(T, hp))}, {'0' if hp == 0 else d}", [("o", hp, c)]))
        rd = reads(hp + 1) if hp < 15 else []
        run_slots(g, mf, [rd], cap=1)
    g.stamp(7, kv="p2")
    for T in range(2):
        for c in range(4):
            a = ACC + (T*4 + c)*4
            o = 64 + (T*4 + c)*2
            A(f"v_cvt_pk_bf16_f32 v{o}, v{a}, v{a+1}"); A(f"v_cvt_pk_bf16_f32 v{o+1}, v{a+2}, v{a+3}")
            A(f"buffer_store_dwordx2 v[{o}:{o+1}], v2, {sOUT}, s{S_XB} offen offset:{T*2048 + c*32}{opt.outpol}")
    if opt.stamps:
        A("s_waitcnt vmcnt(0)")
        g.stamp(11)
        A("s_waitcnt lgkmcnt(0)")
        A(f"s_cmp_lg_u32 s{S_WV}, {opt.stamp_wave}")
        A("s_cbranch_scc1 L_end")
        if opt.dbgstamps:
            A("s_load_dwordx2 s[16:17], s[0:1], 56")
            A("v_mov_b32 v100, 0")
            for j in range(12):
                if opt.dbgbr >= 0 or j not in (4, 6, 7):
                    A(f"v_writelane_b32 v100, s{72+2*j}, {j}")
            for j, src in ((12, 0), (13, 2), (14, 3), (15, 11)):
                A(f"s_not_b32 s{S_T0}, s{72+2*src}")
                A(f"v_writelane_b32 v100, s{S_T0}, {j}")
            A("s_waitcnt lgkmcnt(0)")
            A("s_mov_b32 s18, 256"); A("s_mov_b32 s19, 0x20000")
            if opt.dbgbr >= 0:
                A(f"s_cmp_lg_u32 s{S_BR}, {opt.dbgbr}")
                A("s_cbranch_scc1 L_end")
            A(f"v_lshlrev_b32 v3, 2, v{V_L}")
            A("s_mov_b64 exec, 0xffff")
            A("buffer_atomic_umax v100, v3, s[16:19], 0 offen sc1")
            A("s_branch L_end")
        for j in range(24): A(f"v_mov_b32 v{100+j}, s{72+j}")
        A(f"s_mul_i32 s{S_T0}, s2, 96")
        A(f"s_add_u32 s{S_T0}, s{S_T0}, {WS_STAMP}")
        A("v_mov_b32 v3, 0")
        A("s_mov_b64 exec, 1")
        for j in range(6):
            A(f"buffer_store_dwordx4 v[{100+4*j}:{103+4*j}], v3, {sWS}, s{S_T0} offen offset:{16*j}")

def main():
    ap = argparse.ArgumentParser()
    ap.add_argument("-o", default="out.s")
    ap.add_argument("--stamps", type=int, default=0)
    ap.add_argument("--kvstamps", type=int, default=0)
    ap.add_argument("--p2stamps", type=int, default=0)
    ap.add_argument("--dbgstamps", type=int, default=0)
    ap.add_argument("--dbgbr", type=int, default=-1)
    ap.add_argument("--bfirst", type=int, default=0)
    ap.add_argument("--stamp-wave", type=int, default=0)
    ap.add_argument("--bar-after", type=int, default=4)
    ap.add_argument("--nt", type=int, default=1)
    ap.add_argument("--pf", type=int, default=0)
    ap.add_argument("--pre3", type=int, default=0)
    ap.add_argument("--dma-every", type=int, default=4)
    ap.add_argument("--dma-fast", type=int, default=2)
    ap.add_argument("--cap", type=int, default=2)
    ap.add_argument("--cap-even", type=int, default=1)
    ap.add_argument("--b-cap", type=int, default=5)
    ap.add_argument("--cap2", type=int, default=3)
    ap.add_argument("--gat-at", type=int, default=27)
    ap.add_argument("--gat-every", type=int, default=1)
    ap.add_argument("--kv-sleep", type=int, default=4)
    ap.add_argument("--poll0", type=int, default=8)
    ap.add_argument("--poll1", type=int, default=6)
    ap.add_argument("--outpol", default="")
    opt = ap.parse_args()
    if opt.outpol: opt.outpol = " " + opt.outpol.replace(",", " ")
    g = G(opt)
    K = NAME + "_kernel"
    head = ["; generated by gen/gen3.py  " + " ".join(sys.argv[1:]),
            "; @launch grid=(256,1,1) block=(256,1,1) lds=163840",
            '.amdgcn_target "amdgcn-amd-amdhsa--gfx950"', ".text",
            f".globl {K}", ".p2align 8", f".type {K},@function", f"{K}:"]
    A = g.A
    g.stamp(0)
    decode(g)
    A(f"s_lshl_b32 s{S_T0}, s{S_BR}, 1")
    A(f"s_add_u32 s{S_T0}, s{S_T0}, s{S_RW}")
    for v in (1, 2, 3):
        A(f"s_cmp_eq_u32 s{S_T0}, {v}")
        A(f"s_cbranch_scc1 L_path{v}")
    for v in range(4):
        g.label(f"L_path{v}")
        phase1_path(g, v >> 1, v & 1)
    phase2(g)
    g.label("L_end")
    A("s_endpgm")
    body, n = fix_hazards(g.L)
    tail = ['.section .rodata,"a"', ".p2align 6", f".amdhsa_kernel {K}", "  .amdhsa_next_free_vgpr 512", "  .amdhsa_next_free_sgpr 102",
            "  .amdhsa_accum_offset 256", "  .amdhsa_group_segment_fixed_size 0", "  .amdhsa_kernarg_size 72",
            "  .amdhsa_user_sgpr_count 2", "  .amdhsa_user_sgpr_kernarg_segment_ptr 1",
            "  .amdhsa_system_sgpr_workgroup_id_x 1", ".end_amdhsa_kernel"]
    open(opt.o, "w").write("\n".join(head + body + tail) + "\n")
    print(f"wrote {opt.o}: {len(body)} lines, {n} nops inserted")

main()
```

```python
import sys, argparse
from asmlib import fix_hazards, VM

NAME = "concat_heads__sliding_local_dilated__linear_attn_block__prompt"
STAGE = 34816
WOFF = 18432
XCH = 4 * STAGE
WS_KV = 0x400000
WS_Z = 0x480000
WS_EO = 0x500000
WS_EK = 0x501000
WS_FL = 0x502000
WS_STAMP = 0x8000000
NEG = 0xF149F2CA
LOG2E = 0x3FB8AA3B
CSC = 0x3EB8AA3B
NCSC = 0xBEB8AA3B
EPS = 0x358637BD
SPIN = 300000

sX, sW, sWS, sWO, sOUT = "s[24:27]", "s[28:31]", "s[32:35]", "s[40:43]", "s[44:47]"
S_BR, S_RB, S_HG, S_WV, S_RW, S_CW = 48, 49, 50, 51, 52, 53
S_XB, S_HB, S_WB, S_LW, S_T0, S_T1, S_T2, S_C, S_NC, S_L2E, S_EPS, S_WOB, S_LWH = 54, 55, 56, 57, 58, 59, 60, 61, 62, 63, 64, 65, 67
S_HEAD, S_SPIN = 70, 71
S_OST, S_KVS, S_ZS, S_LWO, S_OLD, S_IDX, S_XCD = 4, 5, 6, 7, 8, 23, 22
S_PFX, S_PFW, S_FLN, S_FLO, S_EOA, S_EKA, S_TAG = 9, 10, 11, 12, 13, 14, 15
S_EO, S_EK = 36, 38
V_L = 1
V_XD = 10
V_WD = 14
V_XH, V_WO = 18, 19
V_XR = 20
V_HR = 26
V_WR = 32
V_OR = 38
V_L16 = 46
V_L8 = 47
V_MOWN, V_MPREV, V_MHALO, V_BM, V_ONES = 48, 52, 56, 64, 66
V_PF0, V_PF1 = 70, 71
V_ACC = 72
V_HACC = 136
V_WF = 144
V_HF = 176
V_QACC = 184
V_VP = 216
V_KP = 240
V_KPREV = 176
V_XA = 9
V_WO4 = [12, 13, 16, 17]
WOB = [67584, 100352, 0, 32768]

def vr(b, n=4, k="v"): return f"{k}[{b}:{b+n-1}]"
def ldsaddr(base_reg, const):
    return f"v{base_reg + (const >> 16)}", const & 0xFFFF

class G:
    def __init__(self, opt):
        self.L = []; self.opt = opt; self.lds = []; self.vm = VM()
    def A(self, s):
        if s.endswith(":"): self.L.append(s)
        else: self.L.append("    " + s)
    def label(self, s): self.L.append(s + ":")
    def stamp(self, i, kv=False):
        o = self.opt
        if not o.stamps: return
        if o.kvstamps and i >= 3 and not kv and i != 11: return
        if kv is True and not o.kvstamps: return
        if o.p2stamps and 3 <= i <= 7 and kv != "p2": return
        if kv == "p2" and not o.p2stamps: return
        self.A(f"s_memrealtime s[{72+2*i}:{73+2*i}]")
    def emit(self, it):
        if isinstance(it, str): self.A(it)
        elif isinstance(it, list):
            for s in it: self.emit(s)
        elif it[0] == "lds":
            self.lds.append(it[1]); self.A(it[2])
        elif it[0] == "vm":
            self.vm.add(it[1])
            for s in it[2]: self.A(s)
        elif it[0] == "need": self.need(it[1])
        elif it[0] == "ldsall": self.ldsall()
        elif it[0] == "stamp": self.stamp(it[1])
        else: raise ValueError(it)
    def need(self, tag):
        idx = max((i for i, t in enumerate(self.lds) if t == tag), default=None)
        if idx is None: return
        n = len(self.lds) - 1 - idx
        self.lds = self.lds[idx + 1:]
        self.A(f"s_waitcnt lgkmcnt({min(n, 15)})")
    def ldsall(self):
        self.lds = []
        self.A("s_waitcnt lgkmcnt(0)")
    def vmwait(self, tag):
        n = self.vm.wait_n(tag)
        if n is not None: self.A(f"s_waitcnt vmcnt({n})")

def cost(it):
    if isinstance(it, str): return 1
    if isinstance(it, list): return sum(cost(x) for x in it)
    if it[0] == "vm": return len(it[2])
    return 1

def run_slots(g, mf, queues, cap=2, dma=None, dma_every=4, dma_phase=0):
    for i, (m, needs) in enumerate(mf):
        for t in needs: g.need(t)
        g.A(m)
        room = cap
        if dma and (i % dma_every) == dma_phase:
            it = dma.pop(0); g.emit(it); room -= min(cost(it), 2)
        for q in queues:
            while q and room > 0:
                it = q.pop(0); g.emit(it); room -= cost(it)

def decode(g):
    A = g.A
    A("s_cmp_ge_u32 s2, 256")
    A("s_cbranch_scc1 L_end")
    A("s_load_dwordx16 s[4:19], s[0:1], 0")
    A("s_load_dwordx2 s[20:21], s[0:1], 64")
    A("v_lshrrev_b32 v2, 6, v0")
    A(f"v_and_b32 v{V_L}, 63, v0")
    A(f"v_readfirstlane_b32 s{S_WV}, v2")
    A("s_and_b32 s22, s2, 7")
    A("s_lshr_b32 s23, s2, 3")
    A(f"s_lshr_b32 s{S_BR}, s22, 2")
    if g.opt.bfirst: A(f"s_xor_b32 s{S_BR}, s{S_BR}, 1")
    A(f"s_bfe_u32 s{S_RB}, s22, 0x10001")
    A(f"s_lshl_b32 s{S_RB}, s{S_RB}, 3")
    A(f"s_and_b32 s{S_T0}, s23, 7")
    A(f"s_add_u32 s{S_RB}, s{S_RB}, s{S_T0}")
    A(f"s_and_b32 s{S_HG}, s22, 1")
    A(f"s_lshl_b32 s{S_HG}, s{S_HG}, 2")
    A(f"s_lshr_b32 s{S_T0}, s23, 3")
    A(f"s_add_u32 s{S_T0}, s{S_T0}, s23")
    A(f"s_and_b32 s{S_T0}, s{S_T0}, 3")
    A(f"s_add_u32 s{S_HG}, s{S_HG}, s{S_T0}")
    A(f"s_lshr_b32 s{S_RW}, s{S_WV}, 1")
    A(f"s_and_b32 s{S_CW}, s{S_WV}, 1")
    l = f"v{V_L}"
    A(f"v_lshrrev_b32 v2, 3, {l}")
    A(f"v_and_b32 v3, 7, {l}")
    A(f"v_lshrrev_b32 v4, 4, {l}")
    A("v_xor_b32 v5, v3, v4")
    A("v_lshlrev_b32 v6, 11, v2")
    A(f"v_lshl_add_u32 v{V_XD}, v5, 4, v6")
    A(f"v_xor_b32 v7, 64, v{V_XD}")
    A(f"v_add_u32 v{V_XD+1}, {14*1024}, v7")
    A("v_and_b32 v5, 1, v4")
    A("v_lshlrev_b32 v5, 1, v5")
    A("v_xor_b32 v5, v3, v5")
    A("v_mul_u32_u24 v7, 3072, v2")
    A(f"v_lshl_add_u32 v{V_WD}, v5, 4, v7")
    A(f"v_xor_b32 v7, 64, v{V_WD}")
    A(f"v_add_u32 v{V_WD+1}, 22528, v7")
    A(f"s_lshl_b32 s{S_T0}, s{S_WV}, 1")
    A(f"v_add_u32 v5, s{S_T0}, v4")
    A("v_xor_b32 v5, v3, v5")
    A(f"v_lshl_add_u32 v{V_XH}, v5, 4, v6")
    A(f"s_lshl_b32 s{S_XB}, s{S_RB}, 17")
    A(f"s_lshl_b32 s{S_T0}, s{S_WV}, 15")
    A(f"s_add_u32 s{S_XB}, s{S_XB}, s{S_T0}")
    A(f"s_lshl_b32 s{S_HB}, s{S_RB}, 7")
    A(f"s_sub_i32 s{S_HB}, s{S_HB}, 16")
    A(f"s_max_i32 s{S_HB}, s{S_HB}, 0")
    A(f"s_lshl_b32 s{S_T0}, s{S_CW}, 3")
    A(f"s_add_u32 s{S_HB}, s{S_HB}, s{S_T0}")
    A(f"s_add_u32 s{S_HB}, s{S_HB}, s{S_RW}")
    A(f"s_lshl_b32 s{S_HB}, s{S_HB}, 10")
    A(f"s_mul_i32 s{S_WB}, s{S_WV}, 49152")
    A(f"s_lshl_b32 s{S_T0}, s{S_HG}, 7")
    A(f"s_add_u32 s{S_WB}, s{S_WB}, s{S_T0}")
    A(f"s_lshl_b32 s{S_LW}, s{S_WV}, 12")
    A(f"s_lshl_b32 s{S_LWH}, s{S_WV}, 9")
    A(f"s_lshl_b32 s{S_WOB}, s{S_WV}, 15")
    A(f"s_lshr_b32 s{S_T0}, s{S_HG}, 1")
    A(f"s_lshl_b32 s{S_T0}, s{S_T0}, 8")
    A(f"s_add_u32 s{S_WOB}, s{S_WOB}, s{S_T0}")
    if g.opt.pf == 4: pf4_pre(g)
    A("s_waitcnt lgkmcnt(0)")
    A(f"s_cmp_eq_u32 s{S_BR}, 0")
    A("s_cselect_b32 s24, s4, s10"); A("s_cselect_b32 s25, s5, s11"); A("s_mov_b32 s26, 0x200000"); A("s_mov_b32 s27, 0x20000")
    A("s_cselect_b32 s28, s6, s12"); A("s_cselect_b32 s29, s7, s13"); A("s_mov_b32 s30, 0x180000"); A("s_mov_b32 s31, 0x20000")
    A("s_cselect_b32 s40, s8, s14"); A("s_cselect_b32 s41, s9, s15"); A("s_mov_b32 s42, 0x80000"); A("s_mov_b32 s43, 0x20000")
    A("s_mov_b32 s32, s20"); A("s_mov_b32 s33, s21"); A("s_mov_b32 s34, 0x10000000"); A("s_mov_b32 s35, 0x20000")
    A("s_mov_b32 s44, s16"); A("s_mov_b32 s45, s17"); A("s_mov_b32 s46, 0x400000"); A("s_mov_b32 s47, 0x20000")

def chunk_dmas(g, c, halo):
    st = (c % 4) * STAGE
    nt = " nt" if g.opt.nt else ""
    tag = ("c", c)
    out = []
    if c < 8:
        for i in range(4):
            pre = [f"s_add_u32 m0, s{S_LW}, {st}", f"s_add_u32 s{S_T2}, s{S_XB}, {c*128}"] if i == 0 else []
            out.append(("vm", tag, pre + [f"buffer_load_dwordx4 v{V_XD+(i>>1)}, {sX}, s{S_T2} offen offset:{i*1024}{nt} lds"]))
        for j in range(4):
            pre = [f"s_add_u32 m0, s{S_LW}, {st + WOFF}", f"s_add_u32 s{S_T2}, s{S_WB}, {c*64*3072 + 1024}"] if j == 0 else []
            out.append(("vm", tag, pre + [f"buffer_load_dwordx4 v{V_WD+(j>>1)}, {sW}, s{S_T2} offen offset:{j*1024}{nt} lds"]))
        if halo:
            out.append(("vm", tag, [f"s_add_u32 m0, s{S_LWH}, {st + 16384}", f"s_add_u32 s{S_T2}, s{S_HB}, {c*128}",
                        "s_mov_b32 exec_hi, 0", f"buffer_load_dwordx4 v{V_XH}, {sX}, s{S_T2} offen{nt} lds", "s_mov_b32 exec_hi, -1"]))
    elif c < 10:
        h = c - 8
        for cq in range(4):
            for bb in range(2):
                pre = []
                if bb == 0:
                    if (cq & 1) == 0: pre.append(f"s_add_u32 m0, s{S_LW}, {st + (cq >> 1)*16384}")
                    pre.append(f"s_add_u32 s{S_T2}, s{S_WB}, {(4*h+cq)*64*3072 - (cq & 1)*1024}")
                out.append(("vm", tag, pre + [f"buffer_load_dwordx4 v{V_WD+bb}, {sW}, s{S_T2} offen offset:{bb*2048 + (cq & 1)*1024}{nt} lds"]))
    else:
        h = c - 10
        for b in range(8):
            pre = [f"s_add_u32 m0, s{S_LWO}, {WOB[h] + (b >> 2)*4096}",
                   f"s_add_u32 s{S_T2}, s{S_WOB}, {(128*h + 16*(b >> 2))*1024}"] if (b & 3) == 0 else []
            out.append(("vm", tag, pre + [f"buffer_load_dwordx4 v{V_WO4[b & 3]}, {sWO}, s{S_T2} offen offset:{(b & 3)*1024}{nt} lds"]))
    return out

def setup2(g, br, rw):
    A = g.A
    halo = br == 0
    l = f"v{V_L}"
    A(f"s_lshl_b32 s{S_T0}, s{S_BR}, 4"); A(f"s_add_u32 s{S_T0}, s{S_T0}, s{S_RB}")
    A(f"s_lshl_b32 s{S_EOA}, s{S_T0}, 7"); A(f"s_add_u32 s{S_EOA}, s{S_EOA}, {WS_EO}")
    A(f"s_lshl_b32 s{S_FLN}, s{S_T0}, 8"); A(f"s_add_u32 s{S_FLN}, s{S_FLN}, {WS_FL}")
    A(f"s_lshl_b32 s{S_EKA}, s{S_HG}, 7"); A(f"s_add_u32 s{S_EKA}, s{S_EKA}, {WS_EK}")
    A(f"s_load_dwordx2 s[{S_EO}:{S_EO+1}], s[20:21], s{S_EOA}")
    if br == 1: A(f"s_load_dwordx2 s[{S_EK}:{S_EK+1}], s[20:21], s{S_EKA}")
    A(f"s_lshl_b32 s{S_T1}, s{S_HG}, 1"); A(f"s_add_u32 s{S_T1}, s{S_T1}, s{S_CW}")
    A(f"s_lshl_b32 s{S_FLO}, s{S_T1}, 3"); A(f"s_add_u32 s{S_FLO}, s{S_FLO}, s{S_FLN}"); A(f"s_add_u32 s{S_FLO}, s{S_FLO}, {rw*128}")
    A(f"s_and_b32 s{S_T2}, s{S_HG}, 1"); A(f"s_lshl_b32 s{S_T2}, s{S_T2}, 7"); A(f"s_add_u32 s{S_FLN}, s{S_FLN}, s{S_T2}")
    A(f"v_lshrrev_b32 v2, 4, {l}"); A(f"v_and_b32 v3, 15, {l}")
    A("v_lshlrev_b32 v5, 1, v2"); A("v_xor_b32 v5, v3, v5"); A("v_lshlrev_b32 v6, 10, v2")
    A(f"v_lshl_add_u32 v{V_WO4[0]}, v5, 4, v6")
    A(f"v_xor_b32 v6, 128, v{V_WO4[0]}")
    A(f"v_add_u32 v{V_WO4[1]}, 3072, v6")
    A(f"v_add_u32 v{V_WO4[2]}, 6144, v{V_WO4[0]}")
    A(f"v_add_u32 v{V_WO4[3]}, 9216, v6")
    A(f"v_and_b32 v2, 15, {l}")
    A(f"v_lshrrev_b32 v3, 4, {l}")
    A("v_lshrrev_b32 v4, 1, v2")
    A("v_xor_b32 v5, v3, v4")
    A("v_lshlrev_b32 v6, 7, v2")
    A("v_lshl_add_u32 v6, v5, 4, v6")
    A("v_lshrrev_b32 v7, 3, v2")
    A("v_lshl_add_u32 v7, v7, 10, v6")
    A(f"v_add_u32 v{V_XR}, {rw*8192}, v7")
    A(f"v_xor_b32 v{V_XR+3}, 64, v{V_XR}")
    for kk in range(2):
        for b in (1, 2): A(f"v_add_u32 v{V_XR+3*kk+b}, {b<<16}, v{V_XR+3*kk}")
    if halo:
        A(f"v_add_u32 v{V_HR}, 16384, v6")
        A(f"v_xor_b32 v{V_HR+3}, 64, v{V_HR}")
        for kk in range(2):
            for b in (1, 2): A(f"v_add_u32 v{V_HR+3*kk+b}, {b<<16}, v{V_HR+3*kk}")
    A("v_lshrrev_b32 v4, 2, v2")
    A("v_and_b32 v5, 3, v2")
    A("v_lshrrev_b32 v8, 3, v2")
    A("v_and_b32 v7, 1, v3")
    A("v_lshl_or_b32 v8, v7, 1, v8")
    A("v_lshrrev_b32 v6, 1, v3")
    A("v_lshlrev_b32 v6, 12, v6")
    A("v_lshl_add_u32 v6, v7, 11, v6")
    A("v_lshl_add_u32 v6, v4, 7, v6")
    A("v_lshl_add_u32 v6, v5, 3, v6")
    A(f"s_lshl_b32 s{S_T0}, s{S_CW}, 1")
    A(f"v_xor_b32 v7, s{S_T0}, v8")
    A(f"v_lshl_add_u32 v{V_WR}, v7, 5, v6")
    A(f"v_xor_b32 v{V_WR+3}, 32, v{V_WR}")
    for hh in range(2):
        for b in (1, 2): A(f"v_add_u32 v{V_WR+3*hh+b}, {b<<16}, v{V_WR+3*hh}")
    A(f"v_lshlrev_b32 v{V_L16}, 4, {l}")
    A(f"v_lshlrev_b32 v{V_L8}, 3, {l}")
    A(f"s_mov_b32 s{S_C}, {CSC:#x}"); A(f"s_mov_b32 s{S_NC}, {NCSC:#x}")
    A(f"s_mov_b32 s{S_L2E}, {LOG2E:#x}"); A(f"s_mov_b32 s{S_EPS}, {EPS:#x}")
    A(f"s_mov_b32 s{S_SPIN}, {SPIN}")
    for i in range(4): A(f"v_mov_b32 v{V_ONES+i}, 0x3f803f80")
    A(f"s_lshl_b32 s{S_T0}, s{S_RB}, 3")
    A(f"s_add_u32 s{S_OLD}, s{S_T0}, {br*128}")
    A(f"s_add_u32 s{S_OST}, s{S_OLD}, {4*rw}")
    A(f"s_lshl_b32 s{S_OST}, s{S_OST}, 4")
    A(f"s_add_u32 s{S_OST}, s{S_OST}, s{S_T1}")
    A(f"s_lshl_b32 s{S_OST}, s{S_OST}, 10")
    A(f"s_and_b32 s{S_T1}, s{S_HG}, 1"); A(f"s_lshl_b32 s{S_T1}, s{S_T1}, 2")
    A(f"s_add_u32 s{S_OLD}, s{S_OLD}, s{S_T1}")
    A(f"s_add_u32 s{S_OLD}, s{S_OLD}, s{S_WV}")
    A(f"s_lshl_b32 s{S_OLD}, s{S_OLD}, 14")
    A(f"s_lshl_b32 s{S_LWO}, s{S_WV}, 13")
    A(f"s_lshl_b32 s{S_T0}, s{S_CW}, 13")
    A(f"v_add_u32 v{V_XA}, s{S_T0}, v{V_L16 if br else V_L8}")
    A(f"v_add_u32 v{V_XA}, {XCH}, v{V_XA}")
    if br == 1:
        A(f"s_lshl_b32 s{S_T0}, s{S_HG}, 2")
        A(f"s_lshl_b32 s{S_T1}, s{S_CW}, 1")
        A(f"s_add_u32 s{S_T0}, s{S_T0}, s{S_T1}")
        A(f"s_add_u32 s{S_HEAD}, s{S_T0}, {rw}")
        A(f"s_lshl_b32 s{S_T0}, s{S_HEAD}, 4")
        A(f"s_add_u32 s{S_T0}, s{S_T0}, s{S_RB}")
        A(f"s_lshl_b32 s{S_KVS}, s{S_T0}, 10")
        A(f"s_add_u32 s{S_KVS}, s{S_KVS}, {WS_KV}")
        A(f"s_lshl_b32 s{S_ZS}, s{S_T0}, 6")
        A(f"s_add_u32 s{S_ZS}, s{S_ZS}, {WS_Z}")
    else:
        A(f"v_and_b32 v2, 15, {l}")
        A(f"v_lshrrev_b32 v3, 4, {l}")
        A("v_lshlrev_b32 v3, 2, v3")
        A(f"v_mov_b32 v8, {NEG:#x}")
        for r in range(4):
            A(f"v_add_u32 v4, {r}, v3")
            A("v_sub_u32 v5, v2, v4")
            A("v_cmp_gt_u32 vcc, 8, v5")
            A(f"v_mov_b32 v7, {0xffff if r % 2 == 0 else 0xffff0000:#x}")
            A(f"v_cndmask_b32 v{V_MOWN+r}, v8, 0, vcc")
            A("v_cndmask_b32 v6, 0, v7, vcc")
            if r % 2 == 0: A(f"v_mov_b32 v{V_BM + r//2}, v6")
            else: A(f"v_or_b32 v{V_BM + r//2}, v{V_BM + r//2}, v6")
            A("v_add_u32 v5, 9, v2")
            A("v_cmp_ge_u32 vcc, v4, v5")
            A(f"v_cndmask_b32 v{V_MPREV+r}, v8, 0, vcc")
            if rw == 0:
                for p in range(2):
                    A(f"v_subrev_u32 v5, {8*p}, v4")
                    A("v_cmp_gt_u32 vcc, 8, v5")
                    A("v_cmp_gt_u32 s[68:69], v5, v2")
                    A("s_and_b64 vcc, vcc, s[68:69]")
                    A(f"s_cmp_eq_u32 s{S_RB}, 0")
                    A("s_cselect_b64 vcc, 0, vcc")
                    A(f"v_cndmask_b32 v{V_MHALO+4*p+r}, v8, 0, vcc")

def pf_setup(g):
    A = g.A
    l = f"v{V_L}"
    A(f"v_and_b32 v2, 31, {l}")
    A("v_lshlrev_b32 v2, 10, v2")
    A(f"v_lshrrev_b32 v3, 5, {l}")
    A(f"v_lshl_add_u32 v{V_PF0}, v3, 7, v2")
    A(f"s_lshr_b32 s{S_PFX}, s{S_RB}, 3")
    A(f"s_lshl_b32 s{S_PFX}, s{S_PFX}, 20")
    A(f"s_lshl_b32 s{S_T0}, s{S_IDX}, 15")
    A(f"s_add_u32 s{S_PFX}, s{S_PFX}, s{S_T0}")
    A(f"s_lshl_b32 s{S_T0}, s{S_WV}, 8")
    A(f"s_add_u32 s{S_PFX}, s{S_PFX}, s{S_T0}")
    A(f"v_and_b32 v4, 15, {l}")
    A("v_lshrrev_b32 v5, 2, v4")
    A("v_and_b32 v6, 3, v4")
    A(f"v_bfe_u32 v7, {l}, 4, 1")
    A("v_mul_u32_u24 v7, 3072, v7")
    A("v_mul_u32_u24 v8, 196608, v3")
    A("v_add_u32 v7, v7, v8")
    A("v_lshl_add_u32 v7, v5, 10, v7")
    A("v_lshl_add_u32 v7, v6, 7, v7")
    A("v_cmp_gt_u32 vcc, 3, v5")
    A("v_mov_b32 v8, 0x7fffffff")
    A(f"v_cndmask_b32 v{V_PF1}, v8, v7, vcc")
    A(f"s_mul_i32 s{S_PFW}, s{S_IDX}, 6144")
    A(f"s_and_b32 s{S_T0}, s{S_XCD}, 1")
    A(f"s_lshl_b32 s{S_T0}, s{S_T0}, 9")
    A(f"s_add_u32 s{S_PFW}, s{S_PFW}, s{S_T0}")
    A(f"s_mul_i32 s{S_T0}, s{S_WV}, 393216")
    A(f"s_add_u32 s{S_PFW}, s{S_PFW}, s{S_T0}")

V_PA = 252
def pf3_setup(g):
    A = g.A
    l = f"v{V_L}"
    A(f"s_lshr_b32 s{S_T0}, s{S_RB}, 3")
    A(f"s_lshl_b32 s{S_T0}, s{S_T0}, 20")
    A(f"s_lshl_b32 s{S_T1}, s{S_IDX}, 15")
    A(f"s_add_u32 s{S_T0}, s{S_T0}, s{S_T1}")
    A(f"s_lshl_b32 s{S_T1}, s{S_WV}, 13")
    A(f"s_add_u32 s{S_T0}, s{S_T0}, s{S_T1}")
    A(f"s_add_u32 s{S_PFX}, s24, s{S_T0}"); A(f"s_addc_u32 s{S_PFX+1}, s25, 0")
    A(f"v_lshlrev_b32 v2, 10, {l}")
    A(f"v_mov_b32 v3, s{S_PFX+1}")
    A(f"v_add_co_u32 v{V_PA}, vcc, s{S_PFX}, v2")
    A(f"v_addc_co_u32 v{V_PA+1}, vcc, 0, v3, vcc")
    A(f"s_mul_i32 s{S_T0}, s{S_CW}, 6")
    A(f"v_subrev_u32 v4, 8, {l}")
    A(f"v_add_u32 v4, s{S_T0}, v4")
    A("v_lshrrev_b32 v5, 2, v4"); A("v_and_b32 v4, 3, v4")
    A("v_lshlrev_b32 v5, 10, v5"); A("v_lshl_add_u32 v4, v4, 7, v5")
    A(f"s_lshl_b32 s{S_T0}, s{S_IDX}, 1"); A(f"s_add_u32 s{S_T0}, s{S_T0}, s{S_RW}")
    A(f"s_mul_i32 s{S_T0}, s{S_T0}, 3072")
    A(f"s_and_b32 s{S_T1}, s{S_XCD}, 1"); A(f"s_lshl_b32 s{S_T1}, s{S_T1}, 9")
    A(f"s_add_u32 s{S_T0}, s{S_T0}, s{S_T1}")
    A(f"s_add_u32 s{S_PFX}, s28, s{S_T0}"); A(f"s_addc_u32 s{S_PFX+1}, s29, 0")
    A(f"v_mov_b32 v3, s{S_PFX+1}")
    A(f"v_add_co_u32 v4, vcc, s{S_PFX}, v4")
    A("v_addc_co_u32 v5, vcc, 0, v3, vcc")
    A(f"v_cmp_gt_u32 vcc, 8, {l}")
    A(f"v_cndmask_b32 v{V_PA}, v4, v{V_PA}, vcc")
    A(f"v_cndmask_b32 v{V_PA+1}, v5, v{V_PA+1}, vcc")
    A("v_mov_b32 v4, 196608"); A("v_mov_b32 v5, 128")
    A(f"v_cndmask_b32 v{V_PA+2}, v4, v5, vcc")
    for _ in range(g.opt.pf_first):
        A(f"v_add_co_u32 v{V_PA}, vcc, v{V_PA}, v{V_PA+2}")
        A(f"v_addc_co_u32 v{V_PA+1}, vcc, 0, v{V_PA+1}, vcc")
def pf3_item():
    return ("vm", "pf", ["s_mov_b64 exec, 0x3fff", f"global_load_dword v{V_PA+3}, v[{V_PA}:{V_PA+1}], off nt", "s_mov_b64 exec, -1",
                         f"v_add_co_u32 v{V_PA}, vcc, v{V_PA}, v{V_PA+2}", f"v_addc_co_u32 v{V_PA+1}, vcc, 0, v{V_PA+1}, vcc"])

def pf4_pre(g):
    A = g.A
    l = f"v{V_L}"
    A(f"s_lshr_b32 s{S_T0}, s{S_RB}, 3")
    A(f"s_lshl_b32 s{S_T0}, s{S_T0}, 20")
    A(f"s_lshl_b32 s{S_T1}, s{S_IDX}, 15")
    A(f"s_add_u32 s{S_T0}, s{S_T0}, s{S_T1}")
    A(f"s_lshl_b32 s{S_T1}, s{S_WV}, 13")
    A(f"s_add_u32 s{S_T0}, s{S_T0}, s{S_T1}")
    A(f"v_lshlrev_b32 v2, 10, {l}")
    A(f"v_add_u32 v2, s{S_T0}, v2")
    A(f"s_lshl_b32 s{S_T0}, s{S_IDX}, 1"); A(f"s_add_u32 s{S_T0}, s{S_T0}, s{S_RW}")
    A(f"s_mul_i32 s{S_T0}, s{S_T0}, 3072")
    A(f"s_and_b32 s{S_T1}, s{S_XCD}, 1"); A(f"s_lshl_b32 s{S_T1}, s{S_T1}, 9")
    A(f"s_add_u32 s{S_T0}, s{S_T0}, s{S_T1}")
    A(f"s_lshl_b32 s{S_T1}, s{S_CW}, 10"); A(f"s_add_u32 s{S_T0}, s{S_T0}, s{S_T1}")
    A(f"s_add_u32 s{S_T0}, s{S_T0}, {1024 - 8*128}")
    A(f"v_lshlrev_b32 v3, 7, {l}")
    A(f"v_add_u32 v3, s{S_T0}, v3")
    A(f"v_cmp_gt_u32 s[68:69], 8, {l}")
    A("v_mov_b32 v4, 196608"); A("v_mov_b32 v5, 128")
    A(f"v_cndmask_b32 v{V_PA+2}, v4, v5, s[68:69]")
    A(f"v_cndmask_b32 v{V_PA}, v3, v2, s[68:69]")
    for _ in range(g.opt.pf_first): A(f"v_add_u32 v{V_PA}, v{V_PA}, v{V_PA+2}")
def pf4_post(g):
    A = g.A
    A("v_mov_b32 v2, s28"); A("v_mov_b32 v3, s29"); A("v_mov_b32 v4, s24"); A("v_mov_b32 v5, s25")
    A("v_cndmask_b32 v2, v2, v4, s[68:69]"); A("v_cndmask_b32 v3, v3, v5, s[68:69]")
    A(f"v_add_co_u32 v{V_PA}, vcc, v{V_PA}, v2")
    A(f"v_addc_co_u32 v{V_PA+1}, vcc, 0, v3, vcc")
def pf4_item():
    return ("vm", "pf", ["s_mov_b64 exec, 0xfff", f"global_load_dword v{V_PA+3}, v[{V_PA}:{V_PA+1}], off nt", "s_mov_b64 exec, -1",
                         f"v_add_co_u32 v{V_PA}, vcc, v{V_PA}, v{V_PA+2}", f"v_addc_co_u32 v{V_PA+1}, vcc, 0, v{V_PA+1}, vcc"])

def acc(Tl, hh, kv): return V_ACC + ((Tl * 2 + hh) * 2 + kv) * 4
def xf(Tl, ks): return (Tl * 16 + ks) * 4

def kv_reads(ks, halo):
    c = ks >> 1; kk = ks & 1; st = (c % 4) * STAGE; buf = ks & 1
    w = []
    for hh in range(2):
        for seg in range(2):
            for t in range(2):
                reg, off = ldsaddr(V_WR + 3*hh, st + WOFF + kk*8192 + seg*1024 + t*512)
                d = V_WF + buf*16 + (hh*2 + seg)*4 + t*2
                w.append(("lds", ("w", ks, hh, seg), f"ds_read_b64_tr_b16 v[{d}:{d+1}], {reg} offset:{off}"))
    xr = []
    for Tl in range(4):
        reg, off = ldsaddr(V_XR + 3*kk, st + (Tl >> 1)*4096 + (Tl & 1)*1024)
        xr.append(("lds", ("x", ks, Tl), f"ds_read_b128 {vr(xf(Tl, ks), 4, 'a')}, {reg} offset:{off}"))
    if halo:
        reg, off = ldsaddr(V_HR + 3*kk, st)
        xr.append(("lds", ("x", ks, 4), f"ds_read_b128 {vr(V_HF + buf*4)}, {reg} offset:{off}"))
    return [xr[0]] + w + xr[1:]

def kv_mfmas(ks, br, rw):
    buf = ks & 1
    out = []
    for Tl in range(4):
        for hh in range(2):
            for seg in range(2):
                w = vr(V_WF + buf*16 + (hh*2 + seg)*4)
                x = vr(xf(Tl, ks), 4, "a")
                d = vr(acc(Tl, hh, seg))
                c = "0" if ks == 0 else d
                a, b = (w, x) if (br == 0 and seg == 0) else (x, w)
                out.append((f"v_mfma_f32_16x16x32_bf16 {d}, {a}, {b}, {c}", [("x", ks, Tl), ("w", ks, hh, seg)]))
    if br == 0:
        for hh in range(2):
            seg = rw
            w = vr(V_WF + buf*16 + (hh*2 + seg)*4)
            x = vr(V_HF + buf*4)
            d = vr(V_HACC + hh*4)
            c = "0" if ks == 0 else d
            a, b = (w, x) if seg == 0 else (x, w)
            out.append((f"v_mfma_f32_16x16x32_bf16 {d}, {a}, {b}, {c}", [("x", ks, 4)]))
    return out

def q_read(hh, ks, slot):
    st = ((8 + (ks >> 3)) % 4) * STAGE
    cq = (ks >> 1) & 3; kk = ks & 1
    out = []
    for t in range(2):
        reg, off = ldsaddr(V_WR + 3*hh, st + (cq >> 1)*16384 + (cq & 1)*1024 + kk*8192 + t*512)
        d = V_WF + slot*4 + t*2
        out.append(("lds", ("q", hh, ks), f"ds_read_b64_tr_b16 v[{d}:{d+1}], {reg} offset:{off}"))
    return out

def phi_list(regs, tmp):
    out = []
    for i, r in enumerate(regs): out.append(f"v_mul_f32 v{tmp+i}, s{S_L2E}, v{r}")
    for i, r in enumerate(regs):
        out.append(f"v_exp_f32 v{tmp+i}, v{tmp+i} clamp")
        out.append(f"v_max_f32 v{r}, s{S_EPS}, v{r}")
    for i, r in enumerate(regs): out.append(f"v_add_f32 v{r}, v{r}, v{tmp+i}")
    return out

def npf_left(opt, c):
    return opt.pf_first + opt.pf_init + 1 + c < 8

def phase1_path(g, br, rw):
    A = g.A
    opt = g.opt
    halo = (br == 0)
    tag = f"{br}{rw}"
    g.vm = VM(); g.lds = []
    if opt.pf == 4:
        for it in chunk_dmas(g, 0, halo): g.emit(it)
        pf4_post(g)
        for _ in range(opt.pf_init): g.emit(pf4_item())
    else:
        for c in range(2):
            for it in chunk_dmas(g, c, halo): g.emit(it)
    g.stamp(1)
    if opt.pf == 3:
        pf3_setup(g)
        for _ in range(opt.pf_init): g.emit(pf3_item())
    if opt.warmcode:
        A("s_getpc_b64 s[68:69]")
        g.label(f"L_wc_{tag}")
        A(f"s_lshl_b32 s{S_T0}, s{S_CW}, 13")
        A(f"v_lshlrev_b32 v2, 7, v{V_L}")
        A(f"v_add_u32 v3, s{S_T0}, v2")
        A(f"v_min_u32 v3, L_end-L_wc_{tag}, v3")
        g.emit(("vm", "pf", [f"global_load_dword v{V_PF0}, v3, s[68:69]"]))
        A(f"v_add_u32 v3, L_phase2-L_wc_{tag}, v2")
        A(f"v_min_u32 v3, L_end-L_wc_{tag}, v3")
        g.emit(("vm", "pf", [f"global_load_dword v{V_PF1}, v3, s[68:69]"]))
    if opt.pf == 4:
        for it in chunk_dmas(g, 1, halo): g.emit(it)
    setup2(g, br, rw)
    if opt.pf in (1, 2): pf_setup(g)
    npf = opt.pf_first
    if opt.pre3:
        for it in chunk_dmas(g, 2, halo): g.emit(it)
    g.vmwait(("c", 0))
    A("s_barrier")
    g.stamp(2)
    for it in kv_reads(0, halo): g.emit(it)
    dq = []
    if not opt.pre3: dq += chunk_dmas(g, 2, halo)
    dq += chunk_dmas(g, 3, halo)
    pfi = [("vm", "pf", [f"buffer_load_dword v{V_PF0}, v{V_PF0}, {sX}, s{S_PFX} offen nt"]),
           ("vm", "pf", [f"buffer_load_dword v{V_PF1}, v{V_PF1}, {sW}, s{S_PFW} offen nt"])]
    if opt.pf == 3 and opt.pf_first + opt.pf_init < 8: dq.insert(0, pf3_item())
    if opt.pf == 4 and opt.pf_first + opt.pf_init < 8: dq.insert(opt.pf_pos, pf4_item())
    if opt.pf == 1: dq = pfi + dq
    if opt.pf == 2: dq = dq[:9] + pfi + dq[9:]
    for ks in range(16):
        c = ks >> 1
        mf = kv_mfmas(ks, br, rw)
        ev = opt.dma_every if len(dq) <= 10 else opt.dma_fast
        if ks & 1:
            run_slots(g, mf[:opt.bar_after], [], dma=dq, dma_every=ev, dma_phase=1)
            while dq and (dq[0][1] == "pf" or dq[0][1][1] <= c + 1): g.emit(dq.pop(0))
            g.ldsall()
            g.vmwait(("c", c + 1))
            A("s_barrier")
            g.stamp(3 + c, kv=True)
            rd = kv_reads(ks + 1, halo) if ks < 15 else q_read(0, 0, 0) + q_read(0, 1, 1) + q_read(0, 2, 2)
            nc = c + 4
            if c + 1 == opt.wo_at:
                dq.insert(0, ("vm", "pf", [f"v_lshrrev_b32 v2, 2, v{V_L}", "v_lshlrev_b32 v2, 10, v2", f"v_and_b32 v3, 3, v{V_L}",
                    "v_lshl_add_u32 v2, v3, 7, v2",
                    f"s_lshl_b32 s{S_T0}, s{S_IDX}, 14", f"s_lshl_b32 s{S_T1}, s{S_WV}, 12", f"s_add_u32 s{S_T0}, s{S_T0}, s{S_T1}",
                    f"s_and_b32 s{S_T1}, s{S_XCD}, 1", f"s_lshl_b32 s{S_T1}, s{S_T1}, 9", f"s_add_u32 s{S_T0}, s{S_T0}, s{S_T1}",
                    "s_mov_b64 exec, 0xffff", f"buffer_load_dword v{V_WO}, v2, {sWO}, s{S_T0} offen nt", "s_mov_b64 exec, -1"]))
            if c + 1 == opt.wc_at:
                dq.insert(0, ("vm", "pf", ["s_getpc_b64 s[68:69]", f"L_wc_{tag}:", f"v_lshlrev_b32 v2, 7, v{V_L}",
                    f"s_lshl_b32 s{S_T0}, s{S_CW}, 13", f"v_add_u32 v2, s{S_T0}, v2",
                    f"v_add_u32 v3, L_q_{tag}-L_wc_{tag}, v2", f"v_add_u32 v2, {'L_phase2-L_wc_' + tag}-8192, v2",
                    f"s_cmp_eq_u32 s{S_CW}, 0", "s_cselect_b64 vcc, -1, 0", "v_cndmask_b32 v3, v2, v3, vcc",
                    f"v_min_u32 v3, L_end-L_wc_{tag}, v3",
                    f"global_load_dword v{V_PF0}, v3, s[68:69]"]))
            if opt.pf == 3 and npf_left(opt, c): dq.insert(0, pf3_item())
            if nc < 12: dq += chunk_dmas(g, nc, halo)
            if opt.pf == 4 and npf_left(opt, c): dq.insert(min(opt.pf_pos, len(dq)), pf4_item())
            run_slots(g, mf[opt.bar_after:], [rd], cap=opt.cap, dma=dq, dma_every=ev, dma_phase=ev - 1)
            for it in rd: g.emit(it)
        else:
            rd = kv_reads(ks + 1, halo)
            run_slots(g, mf, [rd], cap=opt.cap_even, dma=dq, dma_every=ev, dma_phase=ev - 1)
            for it in rd: g.emit(it)
    g.stamp(3)
    g.label(f"L_q_{tag}")
    S1 = []; P = S1.append
    if br == 0:
        order = [2, 3, 0, 1] if rw == 0 else [0, 1, 2, 3]
        if rw == 1:
            for hh in range(2):
                h = V_HACC + hh*4
                P(f"v_cvt_pk_bf16_f32 v{4+hh*2}, v{h}, v{h+1}"); P(f"v_cvt_pk_bf16_f32 v{5+hh*2}, v{h+2}, v{h+3}")
                P(("lds", "xw", f"ds_write_b64 v{V_XA}, v[{4+hh*2}:{5+hh*2}] offset:{4096 + hh*512}"))
        for Tl in order:
            for hh in range(2):
                k = acc(Tl, hh, 0); v = acc(Tl, hh, 1)
                kp = V_KP + (Tl*2 + hh)*2
                vp = V_VP + ((Tl & 1)*2 + hh)*6 + 2 + (Tl >> 1)*2
                P(f"v_cvt_pk_bf16_f32 v{kp}, v{k}, v{k+1}"); P(f"v_cvt_pk_bf16_f32 v{kp+1}, v{k+2}, v{k+3}")
                P(f"v_cvt_pk_bf16_f32 v{vp}, v{v}, v{v+1}"); P(f"v_cvt_pk_bf16_f32 v{vp+1}, v{v+2}, v{v+3}")
                if rw == 0 and Tl >= 2:
                    p = Tl & 1
                    P(("lds", "xw", f"ds_write_b64 v{V_XA}, v[{kp}:{kp+1}] offset:{(p*2+hh)*1024}"))
                    P(("lds", "xw", f"ds_write_b64 v{V_XA}, v[{vp}:{vp+1}] offset:{(p*2+hh)*1024+512}"))
        if rw == 0:
            for hh in range(2):
                h = V_HACC + hh*4
                P(f"v_cvt_pk_bf16_f32 v{V_KPREV+hh*2}, v{h}, v{h+1}"); P(f"v_cvt_pk_bf16_f32 v{V_KPREV+hh*2+1}, v{h+2}, v{h+3}")
        S1b = []
        for p in range(2):
            for hh in range(2):
                vp = V_VP + (p*2 + hh)*6
                if rw == 0:
                    S1b.append(("lds", "xr", f"ds_read_b64 v[{vp}:{vp+1}], v{V_XA} offset:{4096 + hh*512}"))
                else:
                    kp = V_KPREV + (p*2 + hh)*2
                    S1b.append(("lds", "xr", f"ds_read_b64 v[{kp}:{kp+1}], v{V_XA} offset:{(p*2+hh)*1024}"))
                    S1b.append(("lds", "xr", f"ds_read_b64 v[{vp}:{vp+1}], v{V_XA} offset:{(p*2+hh)*1024+512}"))
    else:
        PK, VV = V_VP, V_VP + 16
        TMP = V_QACC + 16
        KVR = V_HACC; KVO = V_HF
        oth = 1 - rw
        for hh in (oth, rw):
            regs = [acc(Tl, hh, 0) + r for Tl in range(4) for r in range(4)]
            S1 += phi_list(regs, TMP)
            for Tl in range(4):
                k = acc(Tl, hh, 0); v = acc(Tl, hh, 1)
                P(f"v_cvt_pk_bf16_f32 v{PK+hh*8+Tl*2}, v{k}, v{k+1}"); P(f"v_cvt_pk_bf16_f32 v{PK+hh*8+Tl*2+1}, v{k+2}, v{k+3}")
                P(f"v_cvt_pk_bf16_f32 v{VV+hh*8+Tl*2}, v{v}, v{v+1}"); P(f"v_cvt_pk_bf16_f32 v{VV+hh*8+Tl*2+1}, v{v+2}, v{v+3}")
            R = KVR if hh == rw else KVO
            d = vr(R); z = vr(R + 4)
            P(f"v_mfma_f32_16x16x32_bf16 {d}, {vr(PK+hh*8)}, {vr(VV+hh*8)}, 0")
            P(f"v_mfma_f32_16x16x32_bf16 {z}, {vr(PK+hh*8)}, {vr(V_ONES)}, 0")
            P(f"v_mfma_f32_16x16x32_bf16 {d}, {vr(PK+hh*8+4)}, {vr(VV+hh*8+4)}, {d}")
            P(f"v_mfma_f32_16x16x32_bf16 {z}, {vr(PK+hh*8+4)}, {vr(V_ONES)}, {z}")
            if hh == oth: wr_pos = len(S1) + 12
        S1.insert(wr_pos, ("lds", "xw", f"ds_write_b128 v{V_XA}, {vr(KVO)} offset:{rw*2048}"))
        S1.insert(wr_pos + 1, ("lds", "xw", f"ds_write_b128 v{V_XA}, {vr(KVO+4)} offset:{rw*2048+1024}"))
        S1b = [("lds", "xr", f"ds_read_b128 {vr(V_ACC)}, v{V_XA} offset:{oth*2048}"),
               ("lds", "xr", f"ds_read_b128 {vr(V_ACC+4)}, v{V_XA} offset:{oth*2048+1024}"),
               f"s_add_u32 s{S_TAG}, s{S_EK}, 1", f"s_and_b32 s{S_TAG}, s{S_TAG}, 0x7f", f"s_or_b32 s{S_TAG}, s{S_TAG}, 0x80",
               f"v_mov_b32 v4, s{S_TAG}", "v_mov_b32 v5, 0xff",
               f"v_lshrrev_b32 v3, 4, v{V_L}", "v_lshlrev_b32 v3, 4, v3",
               ("need", "xr")]
        for r in range(8): S1b.append(f"v_add_f32 v{KVR+r}, v{KVR+r}, v{V_ACC+r}")
        for r in range(8): S1b.append(f"v_bfi_b32 v{KVR+r}, v5, v4, v{KVR+r}")
        S1b.append(("vm", "kvst", [f"buffer_store_dwordx4 {vr(KVR)}, v{V_L16}, {sWS}, s{S_KVS} offen sc1"]))
        S1b.append(("vm", "kvst", ["s_mov_b32 s68, 0x00010001", "s_mov_b32 s69, 0x00010001", "s_mov_b64 exec, s[68:69]",
                    f"buffer_store_dwordx4 {vr(KVR+4)}, v3, {sWS}, s{S_ZS} offen sc1", "s_mov_b64 exec, -1"]))
        S1b.append(("stamp", 4))
    OUTR = V_ACC + 48
    def attention(hh):
        o_ = []; P = o_.append
        U = lambda u: V_ACC + 12*u
        QP = V_HACC
        for u in range(4):
            q = V_QACC + (hh*4 + u)*4
            P(f"v_cvt_pk_bf16_f32 v{QP+2*u}, v{q}, v{q+1}"); P(f"v_cvt_pk_bf16_f32 v{QP+2*u+1}, v{q+2}, v{q+3}")
        P(("need", "xr"))
        for u in range(4):
            tl, p = u >> 1, u & 1
            ko = V_KP + (u*2 + hh)*2
            if tl == 1: kpv, mp = V_KP + ((u-2)*2 + hh)*2, V_MPREV
            elif rw == 1: kpv, mp = V_KPREV + (p*2 + hh)*2, V_MPREV
            else: kpv, mp = V_KPREV + hh*2, V_MHALO + 4*p
            P(f"v_mfma_f32_16x16x16_bf16 {vr(U(u))}, v[{ko}:{ko+1}], v[{QP+2*u}:{QP+2*u+1}], {vr(V_MOWN)}")
            P(f"v_mfma_f32_16x16x16_bf16 {vr(U(u)+4)}, v[{kpv}:{kpv+1}], v[{QP+2*u}:{QP+2*u+1}], {vr(mp)}")
        for u in range(4):
            for r in range(4): P(f"v_max_f32 v{U(u)+r}, v{U(u)+r}, v{U(u)+4+r}")
        for u in range(4): P(f"v_max3_f32 v{U(u)+4}, v{U(u)}, v{U(u)+1}, v{U(u)+2}")
        for u in range(4): P(f"v_max_f32 v{U(u)+4}, v{U(u)+4}, v{U(u)+3}")
        for sw in ("v_permlane32_swap_b32", "v_permlane16_swap_b32"):
            for u in range(4): P(f"v_mov_b32 v{U(u)+5}, v{U(u)+4}")
            for u in range(4): P(f"{sw} v{U(u)+4}, v{U(u)+5}")
            for u in range(4): P(f"v_max_f32 v{U(u)+4}, v{U(u)+4}, v{U(u)+5}")
        for u in range(4): P(f"v_mul_f32 v{U(u)+4}, s{S_NC}, v{U(u)+4}")
        for u in range(4):
            for r in range(4): P(f"v_fma_f32 v{U(u)+r}, v{U(u)+r}, s{S_C}, v{U(u)+4}")
        for u in range(4):
            for r in range(4): P(f"v_exp_f32 v{U(u)+r}, v{U(u)+r}")
        for u in range(4):
            P(f"v_cvt_pk_bf16_f32 v{U(u)+4}, v{U(u)}, v{U(u)+1}"); P(f"v_cvt_pk_bf16_f32 v{U(u)+5}, v{U(u)+2}, v{U(u)+3}")
        for u in range(4):
            P(f"v_and_b32 v{U(u)+10}, v{U(u)+4}, v{V_BM}"); P(f"v_and_b32 v{U(u)+11}, v{U(u)+5}, v{V_BM+1}")
            P(f"v_xor_b32 v{U(u)+8}, v{U(u)+4}, v{U(u)+10}"); P(f"v_xor_b32 v{U(u)+9}, v{U(u)+5}, v{U(u)+11}")
        for u in range(4):
            q = V_QACC + (hh*4 + u)*4
            P(f"v_mfma_f32_16x16x16_bf16 {vr(q)}, v[{V_ONES}:{V_ONES+1}], v[{U(u)+4}:{U(u)+5}], 0")
        for u in range(4):
            tl, p = u >> 1, u & 1
            vp = V_VP + (p*2 + hh)*6 + 2*tl
            P(f"v_mfma_f32_16x16x32_bf16 {vr(U(u))}, {vr(vp)}, {vr(U(u)+8)}, 0")
        for u in range(4):
            q = V_QACC + (hh*4 + u)*4
            P(f"v_rcp_f32 v{q}, v{q}")
        for u in range(4):
            q = V_QACC + (hh*4 + u)*4
            for r in range(4): P(f"v_mul_f32 v{U(u)+r}, v{U(u)+r}, v{q}")
        for u in range(4):
            o = OUTR + u*4 + hh*2
            P(f"v_cvt_pk_bf16_f32 v{o}, v{U(u)}, v{U(u)+1}"); P(f"v_cvt_pk_bf16_f32 v{o+1}, v{U(u)+2}, v{U(u)+3}")
        return o_
    PQ = V_KP
    def phi_q(hh, tmp):
        o_ = phi_list([V_QACC + hh*16 + i for i in range(16)], tmp)
        for Tl in range(4):
            q = V_QACC + (hh*4 + Tl)*4
            o_.append(f"v_cvt_pk_bf16_f32 v{PQ+hh*8+Tl*2}, v{q}, v{q+1}"); o_.append(f"v_cvt_pk_bf16_f32 v{PQ+hh*8+Tl*2+1}, v{q+2}, v{q+3}")
        return o_
    PB = V_ACC
    def gather_items():
        it = []
        for j in range(16):
            pre = [f"s_add_u32 s{S_T2}, s{S_T0}, {j*1024}"] if j % 4 == 0 else []
            it.append(("vm", ("gat", j), pre + [f"buffer_load_dwordx4 {vr(PB+4*j)}, v{V_L16}, {sWS}, s{S_T2} offen offset:{(j%4)*1024} sc1"]))
        it.append(("vm", ("gat", 16), [f"buffer_load_dwordx4 {vr(V_HACC)}, v3, {sWS}, s{S_T1} offen sc1"]))
        return it
    gat_setup = [f"s_lshl_b32 s{S_T0}, s{S_HEAD}, 14", f"s_add_u32 s{S_T0}, s{S_T0}, {WS_KV}",
                 f"s_lshl_b32 s{S_T1}, s{S_HEAD}, 10", f"s_add_u32 s{S_T1}, s{S_T1}, {WS_Z}",
                 f"v_and_b32 v3, 15, v{V_L}", "v_lshlrev_b32 v3, 6, v3",
                 f"v_lshrrev_b32 v4, 4, v{V_L}", "v_lshl_add_u32 v3, v4, 4, v3"]
    S2 = attention(0) if br == 0 else phi_q(0, V_VP)

    seq = [(hh, ks) for hh in range(2) for ks in range(16)]
    PRE = 3
    B9 = 8 - PRE
    side = list(S1)
    sync_done = False
    capA = -(-sum(cost(x) for x in S1) // (4 * B9)) + 1
    gq = []
    for n, (hh, ks) in enumerate(seq):
        slot = n % 8
        if n == 16:
            for it in side: g.emit(it)
            side = list(S2)
        if n == B9:
            if br == 0:
                for it in side: g.emit(it)
                side = list(S1b)
            while dq and dq[0][1][1] <= 9: g.emit(dq.pop(0))
            g.ldsall()
            g.vmwait(("c", 9))
            A("s_barrier")
        if br == 1 and not sync_done and ((not side and (n > B9 or opt.early_sync)) or n == 15):
            for it in side: g.emit(it)
            g.ldsall()
            A("s_barrier")
            side = list(S1b); sync_done = True
        if br == 1 and n == opt.gat_at:
            for it in side: g.emit(it)
            side = []
            for it in gat_setup: g.emit(it)
            gq = gather_items()
        rd = q_read(*seq[n + PRE], (n + PRE) % 8) if n + PRE < len(seq) else []
        mf = []
        for Tl in range(4):
            d = vr(V_QACC + (hh*4 + Tl)*4)
            c = "0" if ks == 0 else d
            mf.append((f"v_mfma_f32_16x16x32_bf16 {d}, {vr(V_WF + slot*4)}, {vr(xf(Tl, ks), 4, 'a')}, {c}", [("q", hh, ks)]))
        cap = (capA if br == 0 else opt.b_cap) if n < 16 else opt.cap2
        if gq: run_slots(g, mf, [rd, side], cap=cap, dma=gq, dma_every=opt.gat_every, dma_phase=0)
        else: run_slots(g, mf, [rd, side], cap=cap, dma=dq, dma_every=4, dma_phase=3)
        for it in rd: g.emit(it)
    for it in side: g.emit(it)
    for it in dq: g.emit(it)
    for it in gq: g.emit(it)
    gq = []
    g.stamp(5)
    g.ldsall()
    g.vmwait(("c", 11))
    A("s_barrier")
    d2 = chunk_dmas(g, 12, False) + chunk_dmas(g, 13, False)
    def with_dma(items, every):
        k = 0
        for it in items:
            g.emit(it); k += 1
            if k % every == 0 and d2: g.emit(d2.pop(0))
    def spin_guard(lbl_out):
        A(f"s_sub_u32 s{S_SPIN}, s{S_SPIN}, 1")
        A(f"s_cbranch_scc1 {lbl_out}")
    if br == 0:
        with_dma(attention(1), 9)
        for it in d2: g.emit(it)
    else:
        if opt.gat_at >= 32:
            for it in gat_setup: g.emit(it)
            for it in gather_items(): g.emit(it)
        A(f"v_mov_b32 v6, s{S_TAG}")
        with_dma(phi_q(1, V_WF), 9)
        g.stamp(6)
        SUM = V_WF + 16
        def chk_sum(first):
            for j in range(16):
                if first: g.vmwait(("gat", j))
                b = PB + 4*j
                for r in range(4):
                    a_ = "0" if (j == 0 and r < 2) else f"v{4+(r&1)}"
                    A(f"v_msad_u8 v{4+(r&1)}, v{b+r}, v6, {a_}")
                for r in range(4):
                    if j == 0: A(f"v_mov_b32 v{SUM+r}, v{b+r}")
                    else: A(f"v_add_f32 v{SUM+r}, v{SUM+r}, v{b+r}")
                if first and d2 and j % 2 == 1: g.emit(d2.pop(0))
            if first: g.vmwait(("gat", 16))
            for r in range(4): A(f"v_msad_u8 v{4+(r&1)}, v{V_HACC+r}, v6, v{4+(r&1)}")
            A("v_or_b32 v4, v4, v5")
            A("v_cmp_ne_u32 vcc, 0, v4")
        chk_sum(True)
        for it in d2: g.emit(it)
        A(f"s_cbranch_vccz L_kvok_{tag}")
        g.label(f"L_kvretry_{tag}")
        spin_guard(f"L_kvok_{tag}")
        A(f"s_sleep {opt.kv_sleep}")
        sv = g.vm; g.vm = VM()
        for it in gather_items(): g.emit(it)
        g.vm = sv
        A("s_waitcnt vmcnt(0)")
        chk_sum(False)
        A(f"s_cbranch_vccnz L_kvretry_{tag}")
        g.label(f"L_kvok_{tag}")
        g.stamp(7)
        for rot in (8, 4, 2, 1):
            for r in range(4):
                A(f"v_add_f32_dpp v{V_HACC+r}, v{V_HACC+r}, v{V_HACC+r} row_ror:{rot} row_mask:0xf bank_mask:0xf")
        KZ = V_WF
        A(f"v_cvt_pk_bf16_f32 v{KZ+rw*4}, v{SUM}, v{SUM+1}"); A(f"v_cvt_pk_bf16_f32 v{KZ+rw*4+1}, v{SUM+2}, v{SUM+3}")
        A(f"v_cvt_pk_bf16_f32 v{KZ+rw*4+2}, v{V_HACC}, v{V_HACC+1}"); A(f"v_cvt_pk_bf16_f32 v{KZ+rw*4+3}, v{V_HACC+2}, v{V_HACC+3}")
        A(f"ds_write_b128 v{V_XA}, {vr(KZ+rw*4)} offset:{4096 + rw*1024}")
        NUM = V_ACC; DEN = V_QACC
        def omf(hh):
            for Tl in range(4):
                u = hh*4 + Tl; pq = PQ + hh*8 + Tl*2
                A(f"v_mfma_f32_16x16x16_bf16 {vr(DEN+4*u)}, v[{KZ+hh*4+2}:{KZ+hh*4+3}], v[{pq}:{pq+1}], 0")
                A(f"v_mfma_f32_16x16x16_bf16 {vr(NUM+4*u)}, v[{KZ+hh*4}:{KZ+hh*4+1}], v[{pq}:{pq+1}], 0")
        def ofin(us):
            for u in us: A(f"v_add_f32 v{DEN+4*u}, s{S_EPS}, v{DEN+4*u}")
            for u in us: A(f"v_rcp_f32 v{DEN+4*u}, v{DEN+4*u}")
            for u in us:
                for r in range(4): A(f"v_mul_f32 v{NUM+4*u+r}, v{NUM+4*u+r}, v{DEN+4*u}")
            for u in us:
                hh, Tl = u >> 2, u & 3
                o = OUTR + Tl*4 + hh*2
                A(f"v_cvt_pk_bf16_f32 v{o}, v{NUM+4*u}, v{NUM+4*u+1}"); A(f"v_cvt_pk_bf16_f32 v{o+1}, v{NUM+4*u+2}, v{NUM+4*u+3}")
        omf(rw)
        A("s_waitcnt lgkmcnt(0)")
        A("s_barrier")
        A(f"ds_read_b128 {vr(KZ+(1-rw)*4)}, v{V_XA} offset:{4096 + (1-rw)*1024}")
        ofin([rw*4 + i for i in range(4)])
        A("s_waitcnt lgkmcnt(0)")
        omf(1 - rw)
        if rw == 0:
            A(f"s_or_b32 s{S_T2}, s{S_RB}, s{S_CW}")
            A(f"s_cmp_lg_u32 s{S_T2}, 0")
            A(f"s_cbranch_scc1 L_nobk_{tag}")
            A(f"s_add_u32 s{S_T2}, s{S_EK}, 1")
            A(f"v_mov_b32 v4, s{S_T2}"); A("v_mov_b32 v5, 0")
            A("s_mov_b64 exec, 1")
            A(f"buffer_store_dword v4, v5, {sWS}, s{S_EKA} offen sc1")
            A("s_mov_b64 exec, -1")
            g.label(f"L_nobk_{tag}")
        ofin([(1-rw)*4 + i for i in range(4)])
    for Tl in range(4):
        A(f"s_add_u32 s{S_T2}, s{S_OST}, {Tl*16384}")
        A(f"buffer_store_dwordx4 {vr(OUTR+4*Tl)}, v{V_L16}, {sWS}, s{S_T2} offen sc1")
    g.stamp(8)
    A("s_branch L_phase2")

def phase2(g):
    A = g.A
    opt = g.opt
    g.label("L_phase2")
    g.lds = []; g.vm = VM()
    OF = 64; ACC = 128; VR0 = 20
    l = f"v{V_L}"
    A(f"v_and_b32 v2, 15, {l}"); A(f"v_lshrrev_b32 v3, 4, {l}")
    A("v_lshrrev_b32 v4, 2, v2"); A("v_and_b32 v5, 3, v2")
    A("v_lshl_add_u32 v6, v3, 2, v4")
    A("v_and_b32 v7, 7, v6")
    A("v_lshlrev_b32 v6, 8, v6"); A("v_lshl_add_u32 v6, v5, 3, v6"); A("v_lshl_add_u32 v6, v7, 5, v6")
    for c in range(8):
        A(f"v_xor_b32 v{VR0+2*c}, {c*32}, v6")
        A(f"v_add_u32 v{VR0+2*c+1}, 65536, v{VR0+2*c}")
    NV = opt.p2_nv
    def freg(hp, c):
        if hp < 8: return ("a", (hp*8 + c)*4)
        if hp < 8 + NV: return ("v", 160 + ((hp - 8)*8 + c)*4)
        return ("a", ((hp - 8 - NV)*8 + c)*4)
    def rd(hp, c):
        out = []
        k_, a = freg(hp, c)
        for t in range(2):
            const = WOB[hp >> 2] + (hp & 3)*8192 + t*4096
            out.append(("lds", ("o", hp, c), f"ds_read_b64_tr_b16 {k_}[{a+2*t}:{a+2*t+1}], v{VR0 + 2*c + (const >> 16)} offset:{const & 0xffff}"))
        return out
    def preload(hps):
        for hp in hps:
            for c in range(8):
                for it in rd(hp, c): g.emit(it)
                if len(g.lds) >= 12: g.need(g.lds[3])
    A(f"s_add_u32 s{S_T0}, s{S_EO}, 1")
    A(f"v_mov_b32 v6, s{S_T0}"); A(f"v_mov_b32 v7, s{S_EO+1}")
    A("v_mov_b32 v5, 0")
    A("v_lshlrev_b32 v8, 3, v2")
    A("v_lshlrev_b32 v2, 12, v2")
    A("v_and_b32 v4, 1, v3"); A("v_lshl_add_u32 v2, v4, 5, v2")
    A("v_lshrrev_b32 v4, 1, v3"); A("v_lshl_add_u32 v2, v4, 4, v2")
    A(f"s_lshl_b32 s{S_XB}, s{S_RB}, 18")
    A(f"s_and_b32 s{S_T1}, s{S_HG}, 1"); A(f"s_lshl_b32 s{S_T1}, s{S_T1}, 17"); A(f"s_add_u32 s{S_XB}, s{S_XB}, s{S_T1}")
    A(f"s_lshl_b32 s{S_T1}, s{S_RW}, 16"); A(f"s_add_u32 s{S_XB}, s{S_XB}, s{S_T1}")
    A(f"s_lshl_b32 s{S_T1}, s{S_CW}, 11"); A(f"s_add_u32 s{S_XB}, s{S_XB}, s{S_T1}")
    A(f"s_lshl_b32 s{S_T1}, s{S_BR}, 10"); A(f"s_add_u32 s{S_XB}, s{S_XB}, s{S_T1}")
    A(f"s_lshr_b32 s{S_T1}, s{S_HG}, 1"); A(f"s_lshl_b32 s{S_T1}, s{S_T1}, 8"); A(f"s_add_u32 s{S_XB}, s{S_XB}, s{S_T1}")
    preload(range(opt.p2_pre1))
    A("s_waitcnt vmcnt(0)")
    A("s_mov_b64 exec, 1")
    A(f"buffer_store_dwordx2 v[6:7], v5, {sWS}, s{S_FLO} offen sc1")
    A("s_mov_b64 exec, -1")
    g.stamp(9)
    A("s_barrier")
    preload(range(opt.p2_pre1, 8 + NV))
    g.ldsall()
    A(f"s_cmp_lg_u32 s{S_WV}, 0")
    A("s_cbranch_scc1 L_ook")
    if opt.poll0: A(f"s_sleep {opt.poll0}")
    A("s_branch L_opoll1")
    g.label("L_opoll")
    A(f"s_sub_u32 s{S_SPIN}, s{S_SPIN}, 1")
    A("s_cbranch_scc1 L_ook")
    A(f"s_sleep {opt.poll1}")
    g.label("L_opoll1")
    A(f"buffer_load_dwordx2 v[10:11], v8, {sWS}, s{S_FLN} offen sc1")
    A("s_waitcnt vmcnt(0)")
    A("v_cmp_ne_u64 vcc, v[10:11], v[6:7]")
    A("s_cbranch_vccnz L_opoll")
    g.label("L_ook")
    A("s_waitcnt vmcnt(0)")
    g.vm = VM()
    A("s_barrier")
    g.stamp(10)
    lq = []
    for hp in range(16):
        pre = [f"s_add_u32 s{S_T2}, s{S_OLD}, {hp*1024}"] if hp % 4 == 0 else []
        lq.append(("vm", ("of", hp), pre + [f"buffer_load_dwordx4 {vr(OF + 4*hp)}, v{V_L16}, {sWS}, s{S_T2} offen offset:{(hp % 4)*1024} sc1"]))
    for it in lq[:opt.p2_first]: g.emit(it)
    lq = lq[opt.p2_first:]
    rq = []
    for hp in range(16):
        while lq and lq[0][1][1] <= hp: g.emit(lq.pop(0))
        while rq and rq[0][1][1] <= hp: g.emit(rq.pop(0))
        g.vmwait(("of", hp))
        if hp % 4 == 0: g.stamp(3 + hp//4, kv="p2")
        mf = []
        for c in range(8):
            d = vr(ACC + 4*c)
            k_, a = freg(hp, c)
            mf.append((f"v_mfma_f32_16x16x32_bf16 {d}, {vr(a, 4, k_)}, {vr(OF + 4*hp)}, {'0' if hp == 0 else d}", [("o", hp, c)]))
        if hp >= 1 and hp - 1 + 8 + NV < 16:
            for c in range(8): rq += rd(hp - 1 + 8 + NV, c)
        run_slots(g, mf, [rq], cap=opt.p2_cap, dma=lq, dma_every=opt.p2_every, dma_phase=0)
    g.stamp(7, kv="p2")
    A(f"s_or_b32 s{S_T2}, s{S_HG}, s{S_WV}")
    A(f"s_cmp_lg_u32 s{S_T2}, 0")
    A("s_cbranch_scc1 L_nobo")
    A("s_mov_b64 exec, 1")
    A(f"buffer_store_dword v6, v5, {sWS}, s{S_EOA} offen sc1")
    A("s_mov_b64 exec, -1")
    g.label("L_nobo")
    for cp in range(4):
        o = 64 + cp*4
        for h in range(2):
            a = ACC + (2*cp + h)*4
            A(f"v_cvt_pk_bf16_f32 v{o+2*h}, v{a}, v{a+1}"); A(f"v_cvt_pk_bf16_f32 v{o+2*h+1}, v{a+2}, v{a+3}")
    for cp in range(4):
        o = 64 + cp*4
        A(f"v_permlane16_swap_b32 v{o}, v{o+2}")
        A(f"v_permlane16_swap_b32 v{o+1}, v{o+3}")
        A(f"buffer_store_dwordx4 {vr(o)}, v2, {sOUT}, s{S_XB} offen offset:{cp*64}{opt.outpol}")
    if opt.stamps:
        A("s_waitcnt vmcnt(0)")
        g.stamp(11)
        A("s_waitcnt lgkmcnt(0)")
        A(f"s_cmp_lg_u32 s{S_WV}, {opt.stamp_wave}")
        A("s_cbranch_scc1 L_end")
        if opt.dbgstamps:
            A("s_load_dwordx2 s[16:17], s[0:1], 56")
            A("v_mov_b32 v100, 0")
            for j in range(12):
                if opt.dbgbr >= 0 or j not in (4, 6, 7):
                    A(f"v_writelane_b32 v100, s{72+2*j}, {j}")
            for j, src in ((12, 0), (13, 2), (14, 3), (15, 11)):
                A(f"s_not_b32 s{S_T0}, s{72+2*src}")
                A(f"v_writelane_b32 v100, s{S_T0}, {j}")
            A("s_waitcnt lgkmcnt(0)")
            A("s_mov_b32 s18, 256"); A("s_mov_b32 s19, 0x20000")
            if opt.dbgbr >= 0:
                A(f"s_cmp_lg_u32 s{S_BR}, {opt.dbgbr}")
                A("s_cbranch_scc1 L_end")
            A(f"v_lshlrev_b32 v3, 2, v{V_L}")
            A("s_mov_b64 exec, 0xffff")
            A("buffer_atomic_umax v100, v3, s[16:19], 0 offen sc1")
            A("s_branch L_end")
        for j in range(24): A(f"v_mov_b32 v{100+j}, s{72+j}")
        A(f"s_mul_i32 s{S_T0}, s2, 96")
        A(f"s_add_u32 s{S_T0}, s{S_T0}, {WS_STAMP}")
        A("v_mov_b32 v3, 0")
        A("s_mov_b64 exec, 1")
        for j in range(6):
            A(f"buffer_store_dwordx4 v[{100+4*j}:{103+4*j}], v3, {sWS}, s{S_T0} offen offset:{16*j}")

def main():
    ap = argparse.ArgumentParser()
    ap.add_argument("-o", default="out.s")
    ap.add_argument("--stamps", type=int, default=0)
    ap.add_argument("--kvstamps", type=int, default=0)
    ap.add_argument("--p2stamps", type=int, default=0)
    ap.add_argument("--dbgstamps", type=int, default=0)
    ap.add_argument("--dbgbr", type=int, default=-1)
    ap.add_argument("--bfirst", type=int, default=0)
    ap.add_argument("--stamp-wave", type=int, default=0)
    ap.add_argument("--bar-after", type=int, default=4)
    ap.add_argument("--nt", type=int, default=1)
    ap.add_argument("--pf", type=int, default=0)
    ap.add_argument("--pre3", type=int, default=0)
    ap.add_argument("--pf-first", type=int, default=2)
    ap.add_argument("--pf-pos", type=int, default=0)
    ap.add_argument("--pf-init", type=int, default=2)
    ap.add_argument("--warmcode", type=int, default=0)
    ap.add_argument("--warmoff", type=int, default=0)
    ap.add_argument("--dma-every", type=int, default=4)
    ap.add_argument("--dma-fast", type=int, default=2)
    ap.add_argument("--cap", type=int, default=2)
    ap.add_argument("--cap-even", type=int, default=1)
    ap.add_argument("--b-cap", type=int, default=5)
    ap.add_argument("--cap2", type=int, default=3)
    ap.add_argument("--gat-at", type=int, default=27)
    ap.add_argument("--gat-every", type=int, default=1)
    ap.add_argument("--kv-sleep", type=int, default=4)
    ap.add_argument("--poll0", type=int, default=8)
    ap.add_argument("--poll1", type=int, default=6)
    ap.add_argument("--outpol", default="")
    ap.add_argument("--p2-first", type=int, default=6)
    ap.add_argument("--p2-every", type=int, default=4)
    ap.add_argument("--early-sync", type=int, default=1)
    ap.add_argument("--p2-nv", type=int, default=3)
    ap.add_argument("--p2-pre1", type=int, default=6)
    ap.add_argument("--p2-cap", type=int, default=1)
    ap.add_argument("--wo-at", type=int, default=4)
    ap.add_argument("--wc-at", type=int, default=0)
    opt = ap.parse_args()
    if opt.outpol: opt.outpol = " " + opt.outpol.replace(",", " ")
    g = G(opt)
    K = NAME + "_kernel"
    head = ["; generated by gen/gen5.py  " + " ".join(sys.argv[1:]),
            "; @launch grid=(256,1,1) block=(256,1,1) lds=163840",
            '.amdgcn_target "amdgcn-amd-amdhsa--gfx950"', ".text",
            f".globl {K}", ".p2align 8", f".type {K},@function", f"{K}:"]
    A = g.A
    g.stamp(0)
    decode(g)
    A(f"s_lshl_b32 s{S_T0}, s{S_BR}, 1")
    A(f"s_add_u32 s{S_T0}, s{S_T0}, s{S_RW}")
    for v in (1, 2, 3):
        A(f"s_cmp_eq_u32 s{S_T0}, {v}")
        A(f"s_cbranch_scc1 L_path{v}")
    for v in range(4):
        g.label(f"L_path{v}")
        phase1_path(g, v >> 1, v & 1)
    phase2(g)
    g.label("L_end")
    A("s_endpgm")
    body, n = fix_hazards(g.L)
    tail = ['.section .rodata,"a"', ".p2align 6", f".amdhsa_kernel {K}", "  .amdhsa_next_free_vgpr 512", "  .amdhsa_next_free_sgpr 102",
            "  .amdhsa_accum_offset 256", "  .amdhsa_group_segment_fixed_size 0", "  .amdhsa_kernarg_size 72",
            "  .amdhsa_user_sgpr_count 2", "  .amdhsa_user_sgpr_kernarg_segment_ptr 1",
            "  .amdhsa_system_sgpr_workgroup_id_x 1", ".end_amdhsa_kernel"]
    open(opt.o, "w").write("\n".join(head + body + tail) + "\n")
    print(f"wrote {opt.o}: {len(body)} lines, {n} nops inserted")

main()
```

```python
import sys, argparse
from asmlib import fix_hazards, VM

NAME = "concat_heads__sliding_local_dilated__linear_attn_block__prompt"
STAGE = 34816
WOFF = 18432
XCH = 4 * STAGE
WS_KV = 0x400000
WS_Z = 0x480000
WS_EO = 0x500000
WS_EK = 0x501000
WS_FL = 0x502000
WS_STAMP = 0x8000000
NEG = 0xF149F2CA
LOG2E = 0x3FB8AA3B
CSC = 0x3EB8AA3B
NCSC = 0xBEB8AA3B
EPS = 0x358637BD
SPIN = 300000

sX, sW, sWS, sWO, sOUT = "s[24:27]", "s[28:31]", "s[32:35]", "s[40:43]", "s[44:47]"
S_BR, S_RB, S_HG, S_WV, S_RW, S_CW = 48, 49, 50, 51, 52, 53
S_XB, S_HB, S_WB, S_LW, S_T0, S_T1, S_T2, S_C, S_NC, S_L2E, S_EPS, S_WOB, S_LWH = 54, 55, 56, 57, 58, 59, 60, 61, 62, 63, 64, 65, 67
S_HEAD, S_SPIN = 70, 71
S_OST, S_KVS, S_ZS, S_LWO, S_OLD, S_IDX, S_XCD = 4, 5, 6, 7, 8, 23, 22
S_PFX, S_PFW, S_FLN, S_FLO, S_EOA, S_EKA, S_TAG = 9, 10, 11, 12, 13, 14, 15
S_EO, S_EK = 36, 38
V_L = 1
V_XD = 10
V_WD = 14
V_XH, V_WO = 18, 19
V_XR = 20
V_HR = 26
V_WR = 32
V_OR = 38
V_L16 = 46
V_L8 = 47
V_MOWN, V_MPREV, V_MHALO, V_BM, V_ONES = 48, 52, 56, 64, 66
V_PF0, V_PF1 = 70, 71
V_ACC = 72
V_HACC = 136
V_WF = 144
V_HF = 176
V_QACC = 184
V_VP = 216
V_KP = 240
V_KPREV = 176
V_XA = 9
PFPOL = ""
V_WO4 = [12, 13, 16, 17]
WOB = [67584, 100352, 0, 32768]

def vr(b, n=4, k="v"): return f"{k}[{b}:{b+n-1}]"
def ldsaddr(base_reg, const):
    return f"v{base_reg + (const >> 16)}", const & 0xFFFF

class G:
    def __init__(self, opt):
        self.L = []; self.opt = opt; self.lds = []; self.vm = VM()
    def A(self, s):
        if s.endswith(":"): self.L.append(s)
        else: self.L.append("    " + s)
    def label(self, s): self.L.append(s + ":")
    def stamp(self, i, kv=False):
        o = self.opt
        if not o.stamps: return
        if o.kvstamps and i >= 3 and not kv and i != 11: return
        if kv is True and not o.kvstamps: return
        if o.p2stamps and 3 <= i <= 7 and kv != "p2": return
        if kv == "p2" and not o.p2stamps: return
        self.A(f"s_memrealtime s[{72+2*i}:{73+2*i}]")
    def emit(self, it):
        if isinstance(it, str): self.A(it)
        elif isinstance(it, list):
            for s in it: self.emit(s)
        elif it[0] == "lds":
            self.lds.append(it[1]); self.A(it[2])
        elif it[0] == "vm":
            self.vm.add(it[1])
            for s in it[2]: self.A(s)
        elif it[0] == "need": self.need(it[1])
        elif it[0] == "ldsall": self.ldsall()
        elif it[0] == "stamp": self.stamp(it[1])
        else: raise ValueError(it)
    def need(self, tag):
        idx = max((i for i, t in enumerate(self.lds) if t == tag), default=None)
        if idx is None: return
        n = len(self.lds) - 1 - idx
        self.lds = self.lds[idx + 1:]
        self.A(f"s_waitcnt lgkmcnt({min(n, 15)})")
    def ldsall(self):
        self.lds = []
        self.A("s_waitcnt lgkmcnt(0)")
    def vmwait(self, tag):
        n = self.vm.wait_n(tag)
        if n is not None: self.A(f"s_waitcnt vmcnt({n})")

def cost(it):
    if isinstance(it, str): return 1
    if isinstance(it, list): return sum(cost(x) for x in it)
    if it[0] == "vm": return len(it[2])
    return 1

def run_slots(g, mf, queues, cap=2, dma=None, dma_every=4, dma_phase=0):
    for i, (m, needs) in enumerate(mf):
        for t in needs: g.need(t)
        g.A(m)
        room = cap
        if dma and (i % dma_every) == dma_phase:
            it = dma.pop(0); g.emit(it); room -= min(cost(it), 2)
        for q in queues:
            while q and room > 0:
                it = q.pop(0); g.emit(it); room -= cost(it)

def decode(g):
    A = g.A
    A("s_cmp_ge_u32 s2, 256")
    A("s_cbranch_scc1 L_end")
    A("s_load_dwordx16 s[4:19], s[0:1], 0")
    A("s_load_dwordx2 s[20:21], s[0:1], 64")
    A("v_lshrrev_b32 v2, 6, v0")
    A(f"v_and_b32 v{V_L}, 63, v0")
    A(f"v_readfirstlane_b32 s{S_WV}, v2")
    A("s_and_b32 s22, s2, 7")
    A("s_lshr_b32 s23, s2, 3")
    A(f"s_lshr_b32 s{S_BR}, s22, 2")
    if g.opt.bfirst: A(f"s_xor_b32 s{S_BR}, s{S_BR}, 1")
    A(f"s_bfe_u32 s{S_RB}, s22, 0x10001")
    A(f"s_lshl_b32 s{S_RB}, s{S_RB}, 3")
    A(f"s_and_b32 s{S_T0}, s23, 7")
    A(f"s_add_u32 s{S_RB}, s{S_RB}, s{S_T0}")
    A(f"s_and_b32 s{S_HG}, s22, 1")
    A(f"s_lshl_b32 s{S_HG}, s{S_HG}, 2")
    A(f"s_lshr_b32 s{S_T0}, s23, 3")
    A(f"s_add_u32 s{S_T0}, s{S_T0}, s23")
    A(f"s_and_b32 s{S_T0}, s{S_T0}, 3")
    A(f"s_add_u32 s{S_HG}, s{S_HG}, s{S_T0}")
    A(f"s_lshr_b32 s{S_RW}, s{S_WV}, 1")
    A(f"s_and_b32 s{S_CW}, s{S_WV}, 1")
    l = f"v{V_L}"
    A(f"v_lshrrev_b32 v2, 3, {l}")
    A(f"v_and_b32 v3, 7, {l}")
    A(f"v_lshrrev_b32 v4, 4, {l}")
    A("v_xor_b32 v5, v3, v4")
    A("v_lshlrev_b32 v6, 11, v2")
    A(f"v_lshl_add_u32 v{V_XD}, v5, 4, v6")
    A(f"v_xor_b32 v7, 64, v{V_XD}")
    A(f"v_add_u32 v{V_XD+1}, {14*1024}, v7")
    A("v_and_b32 v5, 1, v4")
    A("v_lshlrev_b32 v5, 1, v5")
    A("v_xor_b32 v5, v3, v5")
    A("v_mul_u32_u24 v7, 3072, v2")
    A(f"v_lshl_add_u32 v{V_WD}, v5, 4, v7")
    A(f"v_xor_b32 v7, 64, v{V_WD}")
    A(f"v_add_u32 v{V_WD+1}, 22528, v7")
    A(f"s_lshl_b32 s{S_T0}, s{S_WV}, 1")
    A(f"v_add_u32 v5, s{S_T0}, v4")
    A("v_xor_b32 v5, v3, v5")
    A(f"v_lshl_add_u32 v{V_XH}, v5, 4, v6")
    A(f"s_lshl_b32 s{S_XB}, s{S_RB}, 17")
    A(f"s_lshl_b32 s{S_T0}, s{S_WV}, 15")
    A(f"s_add_u32 s{S_XB}, s{S_XB}, s{S_T0}")
    A(f"s_lshl_b32 s{S_HB}, s{S_RB}, 7")
    A(f"s_sub_i32 s{S_HB}, s{S_HB}, 16")
    A(f"s_max_i32 s{S_HB}, s{S_HB}, 0")
    A(f"s_lshl_b32 s{S_T0}, s{S_CW}, 3")
    A(f"s_add_u32 s{S_HB}, s{S_HB}, s{S_T0}")
    A(f"s_add_u32 s{S_HB}, s{S_HB}, s{S_RW}")
    A(f"s_lshl_b32 s{S_HB}, s{S_HB}, 10")
    A(f"s_mul_i32 s{S_WB}, s{S_WV}, 49152")
    A(f"s_lshl_b32 s{S_T0}, s{S_HG}, 7")
    A(f"s_add_u32 s{S_WB}, s{S_WB}, s{S_T0}")
    A(f"s_lshl_b32 s{S_LW}, s{S_WV}, 12")
    A(f"s_lshl_b32 s{S_LWH}, s{S_WV}, 9")
    A(f"s_lshl_b32 s{S_WOB}, s{S_WV}, 15")
    A(f"s_lshr_b32 s{S_T0}, s{S_HG}, 1")
    A(f"s_lshl_b32 s{S_T0}, s{S_T0}, 8")
    A(f"s_add_u32 s{S_WOB}, s{S_WOB}, s{S_T0}")
    if g.opt.pf == 4: pf4_pre(g)
    A("s_waitcnt lgkmcnt(0)")
    A(f"s_cmp_eq_u32 s{S_BR}, 0")
    A("s_cselect_b32 s24, s4, s10"); A("s_cselect_b32 s25, s5, s11"); A("s_mov_b32 s26, 0x200000"); A("s_mov_b32 s27, 0x20000")
    A("s_cselect_b32 s28, s6, s12"); A("s_cselect_b32 s29, s7, s13"); A("s_mov_b32 s30, 0x180000"); A("s_mov_b32 s31, 0x20000")
    A("s_cselect_b32 s40, s8, s14"); A("s_cselect_b32 s41, s9, s15"); A("s_mov_b32 s42, 0x80000"); A("s_mov_b32 s43, 0x20000")
    A("s_mov_b32 s32, s20"); A("s_mov_b32 s33, s21"); A("s_mov_b32 s34, 0x10000000"); A("s_mov_b32 s35, 0x20000")
    A("s_mov_b32 s44, s16"); A("s_mov_b32 s45, s17"); A("s_mov_b32 s46, 0x400000"); A("s_mov_b32 s47, 0x20000")

def chunk_dmas(g, c, halo):
    st = (c % 4) * STAGE
    nt = " nt" if g.opt.nt else ""
    tag = ("c", c)
    out = []
    if c < 8:
        for i in range(4):
            pre = [f"s_add_u32 m0, s{S_LW}, {st}", f"s_add_u32 s{S_T2}, s{S_XB}, {c*128}"] if i == 0 else []
            out.append(("vm", tag, pre + [f"buffer_load_dwordx4 v{V_XD+(i>>1)}, {sX}, s{S_T2} offen offset:{i*1024}{nt} lds"]))
        for j in range(4):
            pre = [f"s_add_u32 m0, s{S_LW}, {st + WOFF}", f"s_add_u32 s{S_T2}, s{S_WB}, {c*64*3072 + 1024}"] if j == 0 else []
            out.append(("vm", tag, pre + [f"buffer_load_dwordx4 v{V_WD+(j>>1)}, {sW}, s{S_T2} offen offset:{j*1024}{nt} lds"]))
        if halo:
            out.append(("vm", tag, [f"s_add_u32 m0, s{S_LWH}, {st + 16384}", f"s_add_u32 s{S_T2}, s{S_HB}, {c*128}",
                        "s_mov_b32 exec_hi, 0", f"buffer_load_dwordx4 v{V_XH}, {sX}, s{S_T2} offen{nt} lds", "s_mov_b32 exec_hi, -1"]))
    elif c < 10:
        h = c - 8
        for cq in range(4):
            for bb in range(2):
                pre = []
                if bb == 0:
                    if (cq & 1) == 0: pre.append(f"s_add_u32 m0, s{S_LW}, {st + (cq >> 1)*16384}")
                    pre.append(f"s_add_u32 s{S_T2}, s{S_WB}, {(4*h+cq)*64*3072 - (cq & 1)*1024}")
                out.append(("vm", tag, pre + [f"buffer_load_dwordx4 v{V_WD+bb}, {sW}, s{S_T2} offen offset:{bb*2048 + (cq & 1)*1024}{nt} lds"]))
    else:
        h = c - 10
        for b in range(8):
            pre = [f"s_add_u32 m0, s{S_LWO}, {WOB[h] + (b >> 2)*4096}",
                   f"s_add_u32 s{S_T2}, s{S_WOB}, {(128*h + 16*(b >> 2))*1024}"] if (b & 3) == 0 else []
            out.append(("vm", tag, pre + [f"buffer_load_dwordx4 v{V_WO4[b & 3]}, {sWO}, s{S_T2} offen offset:{(b & 3)*1024}{nt} lds"]))
    return out

def setup2(g, br, rw):
    A = g.A
    halo = br == 0
    l = f"v{V_L}"
    A(f"s_lshl_b32 s{S_T0}, s{S_BR}, 4"); A(f"s_add_u32 s{S_T0}, s{S_T0}, s{S_RB}")
    A(f"s_lshl_b32 s{S_EOA}, s{S_T0}, 7"); A(f"s_add_u32 s{S_EOA}, s{S_EOA}, {WS_EO}")
    A(f"s_lshl_b32 s{S_FLN}, s{S_T0}, 8"); A(f"s_add_u32 s{S_FLN}, s{S_FLN}, {WS_FL}")
    A(f"s_lshl_b32 s{S_EKA}, s{S_HG}, 7"); A(f"s_add_u32 s{S_EKA}, s{S_EKA}, {WS_EK}")
    A(f"s_load_dwordx2 s[{S_EO}:{S_EO+1}], s[20:21], s{S_EOA}")
    if br == 1: A(f"s_load_dwordx2 s[{S_EK}:{S_EK+1}], s[20:21], s{S_EKA}")
    A(f"s_lshl_b32 s{S_T1}, s{S_HG}, 1"); A(f"s_add_u32 s{S_T1}, s{S_T1}, s{S_CW}")
    A(f"s_lshl_b32 s{S_FLO}, s{S_T1}, 3"); A(f"s_add_u32 s{S_FLO}, s{S_FLO}, s{S_FLN}"); A(f"s_add_u32 s{S_FLO}, s{S_FLO}, {rw*128}")
    A(f"s_and_b32 s{S_T2}, s{S_HG}, 1"); A(f"s_lshl_b32 s{S_T2}, s{S_T2}, 7"); A(f"s_add_u32 s{S_FLN}, s{S_FLN}, s{S_T2}")
    A(f"v_lshrrev_b32 v2, 4, {l}"); A(f"v_and_b32 v3, 15, {l}")
    A("v_lshlrev_b32 v5, 1, v2"); A("v_xor_b32 v5, v3, v5"); A("v_lshlrev_b32 v6, 10, v2")
    A(f"v_lshl_add_u32 v{V_WO4[0]}, v5, 4, v6")
    A(f"v_xor_b32 v6, 128, v{V_WO4[0]}")
    A(f"v_add_u32 v{V_WO4[1]}, 3072, v6")
    A(f"v_add_u32 v{V_WO4[2]}, 6144, v{V_WO4[0]}")
    A(f"v_add_u32 v{V_WO4[3]}, 9216, v6")
    A(f"v_and_b32 v2, 15, {l}")
    A(f"v_lshrrev_b32 v3, 4, {l}")
    A("v_lshrrev_b32 v4, 1, v2")
    A("v_xor_b32 v5, v3, v4")
    A("v_lshlrev_b32 v6, 7, v2")
    A("v_lshl_add_u32 v6, v5, 4, v6")
    A("v_lshrrev_b32 v7, 3, v2")
    A("v_lshl_add_u32 v7, v7, 10, v6")
    A(f"v_add_u32 v{V_XR}, {rw*8192}, v7")
    A(f"v_xor_b32 v{V_XR+3}, 64, v{V_XR}")
    for kk in range(2):
        for b in (1, 2): A(f"v_add_u32 v{V_XR+3*kk+b}, {b<<16}, v{V_XR+3*kk}")
    if halo:
        A(f"v_add_u32 v{V_HR}, 16384, v6")
        A(f"v_xor_b32 v{V_HR+3}, 64, v{V_HR}")
        for kk in range(2):
            for b in (1, 2): A(f"v_add_u32 v{V_HR+3*kk+b}, {b<<16}, v{V_HR+3*kk}")
    A("v_lshrrev_b32 v4, 2, v2")
    A("v_and_b32 v5, 3, v2")
    A("v_lshrrev_b32 v8, 3, v2")
    A("v_and_b32 v7, 1, v3")
    A("v_lshl_or_b32 v8, v7, 1, v8")
    A("v_lshrrev_b32 v6, 1, v3")
    A("v_lshlrev_b32 v6, 12, v6")
    A("v_lshl_add_u32 v6, v7, 11, v6")
    A("v_lshl_add_u32 v6, v4, 7, v6")
    A("v_lshl_add_u32 v6, v5, 3, v6")
    A(f"s_lshl_b32 s{S_T0}, s{S_CW}, 1")
    A(f"v_xor_b32 v7, s{S_T0}, v8")
    A(f"v_lshl_add_u32 v{V_WR}, v7, 5, v6")
    A(f"v_xor_b32 v{V_WR+3}, 32, v{V_WR}")
    for hh in range(2):
        for b in (1, 2): A(f"v_add_u32 v{V_WR+3*hh+b}, {b<<16}, v{V_WR+3*hh}")
    A(f"v_lshlrev_b32 v{V_L16}, 4, {l}")
    A(f"v_lshlrev_b32 v{V_L8}, 3, {l}")
    A(f"s_mov_b32 s{S_C}, {CSC:#x}"); A(f"s_mov_b32 s{S_NC}, {NCSC:#x}")
    A(f"s_mov_b32 s{S_L2E}, {LOG2E:#x}"); A(f"s_mov_b32 s{S_EPS}, {EPS:#x}")
    A(f"s_mov_b32 s{S_SPIN}, {SPIN}")
    for i in range(4): A(f"v_mov_b32 v{V_ONES+i}, 0x3f803f80")
    A(f"s_lshl_b32 s{S_T0}, s{S_RB}, 3")
    A(f"s_add_u32 s{S_OLD}, s{S_T0}, {br*128}")
    A(f"s_add_u32 s{S_OST}, s{S_OLD}, {4*rw}")
    A(f"s_lshl_b32 s{S_OST}, s{S_OST}, 4")
    A(f"s_add_u32 s{S_OST}, s{S_OST}, s{S_T1}")
    A(f"s_lshl_b32 s{S_OST}, s{S_OST}, 10")
    A(f"s_and_b32 s{S_T1}, s{S_HG}, 1"); A(f"s_lshl_b32 s{S_T1}, s{S_T1}, 2")
    A(f"s_add_u32 s{S_OLD}, s{S_OLD}, s{S_T1}")
    A(f"s_add_u32 s{S_OLD}, s{S_OLD}, s{S_WV}")
    A(f"s_lshl_b32 s{S_OLD}, s{S_OLD}, 14")
    A(f"s_lshl_b32 s{S_LWO}, s{S_WV}, 13")
    A(f"s_lshl_b32 s{S_T0}, s{S_CW}, 13")
    A(f"v_add_u32 v{V_XA}, s{S_T0}, v{V_L16 if br else V_L8}")
    A(f"v_add_u32 v{V_XA}, {XCH}, v{V_XA}")
    if br == 1:
        A(f"s_lshl_b32 s{S_T0}, s{S_HG}, 2")
        A(f"s_lshl_b32 s{S_T1}, s{S_CW}, 1")
        A(f"s_add_u32 s{S_T0}, s{S_T0}, s{S_T1}")
        A(f"s_add_u32 s{S_HEAD}, s{S_T0}, {rw}")
        A(f"s_lshl_b32 s{S_T0}, s{S_HEAD}, 4")
        A(f"s_add_u32 s{S_T0}, s{S_T0}, s{S_RB}")
        A(f"s_lshl_b32 s{S_KVS}, s{S_T0}, 10")
        A(f"s_add_u32 s{S_KVS}, s{S_KVS}, {WS_KV}")
        A(f"s_lshl_b32 s{S_ZS}, s{S_T0}, 6")
        A(f"s_add_u32 s{S_ZS}, s{S_ZS}, {WS_Z}")
    else:
        A(f"v_and_b32 v2, 15, {l}")
        A(f"v_lshrrev_b32 v3, 4, {l}")
        A("v_lshlrev_b32 v3, 2, v3")
        A(f"v_mov_b32 v8, {NEG:#x}")
        for r in range(4):
            A(f"v_add_u32 v4, {r}, v3")
            A("v_sub_u32 v5, v2, v4")
            A("v_cmp_gt_u32 vcc, 8, v5")
            A(f"v_mov_b32 v7, {0xffff if r % 2 == 0 else 0xffff0000:#x}")
            A(f"v_cndmask_b32 v{V_MOWN+r}, v8, 0, vcc")
            A("v_cndmask_b32 v6, 0, v7, vcc")
            if r % 2 == 0: A(f"v_mov_b32 v{V_BM + r//2}, v6")
            else: A(f"v_or_b32 v{V_BM + r//2}, v{V_BM + r//2}, v6")
            A("v_add_u32 v5, 9, v2")
            A("v_cmp_ge_u32 vcc, v4, v5")
            A(f"v_cndmask_b32 v{V_MPREV+r}, v8, 0, vcc")
            if rw == 0:
                for p in range(2):
                    A(f"v_subrev_u32 v5, {8*p}, v4")
                    A("v_cmp_gt_u32 vcc, 8, v5")
                    A("v_cmp_gt_u32 s[68:69], v5, v2")
                    A("s_and_b64 vcc, vcc, s[68:69]")
                    A(f"s_cmp_eq_u32 s{S_RB}, 0")
                    A("s_cselect_b64 vcc, 0, vcc")
                    A(f"v_cndmask_b32 v{V_MHALO+4*p+r}, v8, 0, vcc")

def pf_setup(g):
    A = g.A
    l = f"v{V_L}"
    A(f"v_and_b32 v2, 31, {l}")
    A("v_lshlrev_b32 v2, 10, v2")
    A(f"v_lshrrev_b32 v3, 5, {l}")
    A(f"v_lshl_add_u32 v{V_PF0}, v3, 7, v2")
    A(f"s_lshr_b32 s{S_PFX}, s{S_RB}, 3")
    A(f"s_lshl_b32 s{S_PFX}, s{S_PFX}, 20")
    A(f"s_lshl_b32 s{S_T0}, s{S_IDX}, 15")
    A(f"s_add_u32 s{S_PFX}, s{S_PFX}, s{S_T0}")
    A(f"s_lshl_b32 s{S_T0}, s{S_WV}, 8")
    A(f"s_add_u32 s{S_PFX}, s{S_PFX}, s{S_T0}")
    A(f"v_and_b32 v4, 15, {l}")
    A("v_lshrrev_b32 v5, 2, v4")
    A("v_and_b32 v6, 3, v4")
    A(f"v_bfe_u32 v7, {l}, 4, 1")
    A("v_mul_u32_u24 v7, 3072, v7")
    A("v_mul_u32_u24 v8, 196608, v3")
    A("v_add_u32 v7, v7, v8")
    A("v_lshl_add_u32 v7, v5, 10, v7")
    A("v_lshl_add_u32 v7, v6, 7, v7")
    A("v_cmp_gt_u32 vcc, 3, v5")
    A("v_mov_b32 v8, 0x7fffffff")
    A(f"v_cndmask_b32 v{V_PF1}, v8, v7, vcc")
    A(f"s_mul_i32 s{S_PFW}, s{S_IDX}, 6144")
    A(f"s_and_b32 s{S_T0}, s{S_XCD}, 1")
    A(f"s_lshl_b32 s{S_T0}, s{S_T0}, 9")
    A(f"s_add_u32 s{S_PFW}, s{S_PFW}, s{S_T0}")
    A(f"s_mul_i32 s{S_T0}, s{S_WV}, 393216")
    A(f"s_add_u32 s{S_PFW}, s{S_PFW}, s{S_T0}")

V_PA = 252
def pf3_setup(g):
    A = g.A
    l = f"v{V_L}"
    A(f"s_lshr_b32 s{S_T0}, s{S_RB}, 3")
    A(f"s_lshl_b32 s{S_T0}, s{S_T0}, 20")
    A(f"s_lshl_b32 s{S_T1}, s{S_IDX}, 15")
    A(f"s_add_u32 s{S_T0}, s{S_T0}, s{S_T1}")
    A(f"s_lshl_b32 s{S_T1}, s{S_WV}, 13")
    A(f"s_add_u32 s{S_T0}, s{S_T0}, s{S_T1}")
    A(f"s_add_u32 s{S_PFX}, s24, s{S_T0}"); A(f"s_addc_u32 s{S_PFX+1}, s25, 0")
    A(f"v_lshlrev_b32 v2, 10, {l}")
    A(f"v_mov_b32 v3, s{S_PFX+1}")
    A(f"v_add_co_u32 v{V_PA}, vcc, s{S_PFX}, v2")
    A(f"v_addc_co_u32 v{V_PA+1}, vcc, 0, v3, vcc")
    A(f"s_mul_i32 s{S_T0}, s{S_CW}, 6")
    A(f"v_subrev_u32 v4, 8, {l}")
    A(f"v_add_u32 v4, s{S_T0}, v4")
    A("v_lshrrev_b32 v5, 2, v4"); A("v_and_b32 v4, 3, v4")
    A("v_lshlrev_b32 v5, 10, v5"); A("v_lshl_add_u32 v4, v4, 7, v5")
    A(f"s_lshl_b32 s{S_T0}, s{S_IDX}, 1"); A(f"s_add_u32 s{S_T0}, s{S_T0}, s{S_RW}")
    A(f"s_mul_i32 s{S_T0}, s{S_T0}, 3072")
    A(f"s_and_b32 s{S_T1}, s{S_XCD}, 1"); A(f"s_lshl_b32 s{S_T1}, s{S_T1}, 9")
    A(f"s_add_u32 s{S_T0}, s{S_T0}, s{S_T1}")
    A(f"s_add_u32 s{S_PFX}, s28, s{S_T0}"); A(f"s_addc_u32 s{S_PFX+1}, s29, 0")
    A(f"v_mov_b32 v3, s{S_PFX+1}")
    A(f"v_add_co_u32 v4, vcc, s{S_PFX}, v4")
    A("v_addc_co_u32 v5, vcc, 0, v3, vcc")
    A(f"v_cmp_gt_u32 vcc, 8, {l}")
    A(f"v_cndmask_b32 v{V_PA}, v4, v{V_PA}, vcc")
    A(f"v_cndmask_b32 v{V_PA+1}, v5, v{V_PA+1}, vcc")
    A("v_mov_b32 v4, 196608"); A("v_mov_b32 v5, 128")
    A(f"v_cndmask_b32 v{V_PA+2}, v4, v5, vcc")
    for _ in range(g.opt.pf_first):
        A(f"v_add_co_u32 v{V_PA}, vcc, v{V_PA}, v{V_PA+2}")
        A(f"v_addc_co_u32 v{V_PA+1}, vcc, 0, v{V_PA+1}, vcc")
def pf3_item():
    return ("vm", "pf", ["s_mov_b64 exec, 0x3fff", f"global_load_dword v{V_PA+3}, v[{V_PA}:{V_PA+1}], off{PFPOL}", "s_mov_b64 exec, -1",
                         f"v_add_co_u32 v{V_PA}, vcc, v{V_PA}, v{V_PA+2}", f"v_addc_co_u32 v{V_PA+1}, vcc, 0, v{V_PA+1}, vcc"])

def pf4_pre(g):
    A = g.A
    l = f"v{V_L}"
    A(f"s_lshr_b32 s{S_T0}, s{S_RB}, 3")
    A(f"s_lshl_b32 s{S_T0}, s{S_T0}, 20")
    A(f"s_lshl_b32 s{S_T1}, s{S_IDX}, 15")
    A(f"s_add_u32 s{S_T0}, s{S_T0}, s{S_T1}")
    A(f"s_lshl_b32 s{S_T1}, s{S_WV}, 13")
    A(f"s_add_u32 s{S_T0}, s{S_T0}, s{S_T1}")
    A(f"v_lshlrev_b32 v2, 10, {l}")
    A(f"v_add_u32 v2, s{S_T0}, v2")
    A(f"s_lshl_b32 s{S_T0}, s{S_IDX}, 1"); A(f"s_add_u32 s{S_T0}, s{S_T0}, s{S_RW}")
    A(f"s_mul_i32 s{S_T0}, s{S_T0}, 3072")
    A(f"s_and_b32 s{S_T1}, s{S_XCD}, 1"); A(f"s_lshl_b32 s{S_T1}, s{S_T1}, 9")
    A(f"s_add_u32 s{S_T0}, s{S_T0}, s{S_T1}")
    A(f"s_lshl_b32 s{S_T1}, s{S_CW}, 10"); A(f"s_add_u32 s{S_T0}, s{S_T0}, s{S_T1}")
    A(f"s_add_u32 s{S_T0}, s{S_T0}, {1024 - 8*128}")
    A(f"v_lshlrev_b32 v3, 7, {l}")
    A(f"v_add_u32 v3, s{S_T0}, v3")
    A(f"v_cmp_gt_u32 s[68:69], 8, {l}")
    A("v_mov_b32 v4, 196608"); A("v_mov_b32 v5, 128")
    A(f"v_cndmask_b32 v{V_PA+2}, v4, v5, s[68:69]")
    A(f"v_cndmask_b32 v{V_PA}, v3, v2, s[68:69]")
    for _ in range(g.opt.pf_first): A(f"v_add_u32 v{V_PA}, v{V_PA}, v{V_PA+2}")
def pf4_post(g):
    A = g.A
    A("v_mov_b32 v2, s28"); A("v_mov_b32 v3, s29"); A("v_mov_b32 v4, s24"); A("v_mov_b32 v5, s25")
    A("v_cndmask_b32 v2, v2, v4, s[68:69]"); A("v_cndmask_b32 v3, v3, v5, s[68:69]")
    A(f"v_add_co_u32 v{V_PA}, vcc, v{V_PA}, v2")
    A(f"v_addc_co_u32 v{V_PA+1}, vcc, 0, v3, vcc")
def pf4_item():
    return ("vm", "pf", ["s_mov_b64 exec, 0xfff", f"global_load_dword v{V_PA+3}, v[{V_PA}:{V_PA+1}], off{PFPOL}", "s_mov_b64 exec, -1",
                         f"v_add_co_u32 v{V_PA}, vcc, v{V_PA}, v{V_PA+2}", f"v_addc_co_u32 v{V_PA+1}, vcc, 0, v{V_PA+1}, vcc"])

def acc(Tl, hh, kv): return V_ACC + ((Tl * 2 + hh) * 2 + kv) * 4
def xf(Tl, ks): return (Tl * 16 + ks) * 4

def kv_reads(ks, halo):
    c = ks >> 1; kk = ks & 1; st = (c % 4) * STAGE; buf = ks & 1
    w = []
    for hh in range(2):
        for seg in range(2):
            for t in range(2):
                reg, off = ldsaddr(V_WR + 3*hh, st + WOFF + kk*8192 + seg*1024 + t*512)
                d = V_WF + buf*16 + (hh*2 + seg)*4 + t*2
                w.append(("lds", ("w", ks, hh, seg), f"ds_read_b64_tr_b16 v[{d}:{d+1}], {reg} offset:{off}"))
    xr = []
    for Tl in range(4):
        reg, off = ldsaddr(V_XR + 3*kk, st + (Tl >> 1)*4096 + (Tl & 1)*1024)
        xr.append(("lds", ("x", ks, Tl), f"ds_read_b128 {vr(xf(Tl, ks), 4, 'a')}, {reg} offset:{off}"))
    if halo:
        reg, off = ldsaddr(V_HR + 3*kk, st)
        xr.append(("lds", ("x", ks, 4), f"ds_read_b128 {vr(V_HF + buf*4)}, {reg} offset:{off}"))
    return [xr[0]] + w + xr[1:]

def kv_mfmas(ks, br, rw):
    buf = ks & 1
    out = []
    for Tl in range(4):
        for hh in range(2):
            for seg in range(2):
                w = vr(V_WF + buf*16 + (hh*2 + seg)*4)
                x = vr(xf(Tl, ks), 4, "a")
                d = vr(acc(Tl, hh, seg))
                c = "0" if ks == 0 else d
                a, b = (w, x) if (br == 0 and seg == 0) else (x, w)
                out.append((f"v_mfma_f32_16x16x32_bf16 {d}, {a}, {b}, {c}", [("x", ks, Tl), ("w", ks, hh, seg)]))
    if br == 0:
        for hh in range(2):
            seg = rw
            w = vr(V_WF + buf*16 + (hh*2 + seg)*4)
            x = vr(V_HF + buf*4)
            d = vr(V_HACC + hh*4)
            c = "0" if ks == 0 else d
            a, b = (w, x) if seg == 0 else (x, w)
            out.append((f"v_mfma_f32_16x16x32_bf16 {d}, {a}, {b}, {c}", [("x", ks, 4)]))
    return out

def q_read(hh, ks, slot):
    st = ((8 + (ks >> 3)) % 4) * STAGE
    cq = (ks >> 1) & 3; kk = ks & 1
    out = []
    for t in range(2):
        reg, off = ldsaddr(V_WR + 3*hh, st + (cq >> 1)*16384 + (cq & 1)*1024 + kk*8192 + t*512)
        d = V_WF + slot*4 + t*2
        out.append(("lds", ("q", hh, ks), f"ds_read_b64_tr_b16 v[{d}:{d+1}], {reg} offset:{off}"))
    return out

def phi_list(regs, tmp):
    out = []
    for i, r in enumerate(regs): out.append(f"v_mul_f32 v{tmp+i}, s{S_L2E}, v{r}")
    for i, r in enumerate(regs):
        out.append(f"v_exp_f32 v{tmp+i}, v{tmp+i} clamp")
        out.append(f"v_max_f32 v{r}, s{S_EPS}, v{r}")
    for i, r in enumerate(regs): out.append(f"v_add_f32 v{r}, v{r}, v{tmp+i}")
    return out

def npf_left(opt, c):
    return opt.pf_first + opt.pf_init + 1 + c < 8

def phase1_path(g, br, rw):
    A = g.A
    opt = g.opt
    halo = (br == 0)
    tag = f"{br}{rw}"
    g.vm = VM(); g.lds = []
    if opt.pf == 4:
        for it in chunk_dmas(g, 0, halo): g.emit(it)
        pf4_post(g)
        for _ in range(opt.pf_init): g.emit(pf4_item())
    else:
        for c in range(2):
            for it in chunk_dmas(g, c, halo): g.emit(it)
    g.stamp(1)
    if opt.pf == 3:
        pf3_setup(g)
        for _ in range(opt.pf_init): g.emit(pf3_item())
    if opt.warmcode:
        A("s_getpc_b64 s[68:69]")
        g.label(f"L_wc_{tag}")
        A(f"s_lshl_b32 s{S_T0}, s{S_CW}, 13")
        A(f"v_lshlrev_b32 v2, 7, v{V_L}")
        A(f"v_add_u32 v3, s{S_T0}, v2")
        A(f"v_min_u32 v3, L_end-L_wc_{tag}, v3")
        g.emit(("vm", "pf", [f"global_load_dword v{V_PF0}, v3, s[68:69]"]))
        A(f"v_add_u32 v3, L_phase2-L_wc_{tag}, v2")
        A(f"v_min_u32 v3, L_end-L_wc_{tag}, v3")
        g.emit(("vm", "pf", [f"global_load_dword v{V_PF1}, v3, s[68:69]"]))
    if opt.pf == 4:
        for it in chunk_dmas(g, 1, halo): g.emit(it)
    setup2(g, br, rw)
    if opt.pf in (1, 2): pf_setup(g)
    npf = opt.pf_first
    if opt.pre3:
        for it in chunk_dmas(g, 2, halo): g.emit(it)
    g.vmwait(("c", 0))
    A("s_barrier")
    g.stamp(2)
    for it in kv_reads(0, halo): g.emit(it)
    dq = []
    if not opt.pre3: dq += chunk_dmas(g, 2, halo)
    dq += chunk_dmas(g, 3, halo)
    pfi = [("vm", "pf", [f"buffer_load_dword v{V_PF0}, v{V_PF0}, {sX}, s{S_PFX} offen{PFPOL}"]),
           ("vm", "pf", [f"buffer_load_dword v{V_PF1}, v{V_PF1}, {sW}, s{S_PFW} offen{PFPOL}"])]
    if opt.pf == 3 and opt.pf_first + opt.pf_init < 8: dq.insert(0, pf3_item())
    if opt.pf == 4 and opt.pf_first + opt.pf_init < 8: dq.insert(opt.pf_pos, pf4_item())
    if opt.pf == 1: dq = pfi + dq
    if opt.pf == 2: dq = dq[:9] + pfi + dq[9:]
    for ks in range(16):
        c = ks >> 1
        mf = kv_mfmas(ks, br, rw)
        ev = opt.dma_every if len(dq) <= 10 else opt.dma_fast
        if ks & 1:
            run_slots(g, mf[:opt.bar_after], [], dma=dq, dma_every=ev, dma_phase=1)
            while dq and (dq[0][1] == "pf" or dq[0][1][1] <= c + 1): g.emit(dq.pop(0))
            g.ldsall()
            g.vmwait(("c", c + 1))
            A("s_barrier")
            g.stamp(3 + c, kv=True)
            rd = kv_reads(ks + 1, halo) if ks < 15 else q_read(0, 0, 0) + q_read(0, 1, 1) + q_read(0, 2, 2)
            nc = c + 4
            if c + 1 == opt.wo_at:
                dq.insert(0, ("vm", "pf", [f"v_lshrrev_b32 v2, 2, v{V_L}", "v_lshlrev_b32 v2, 10, v2", f"v_and_b32 v3, 3, v{V_L}",
                    "v_lshl_add_u32 v2, v3, 7, v2",
                    f"s_lshl_b32 s{S_T0}, s{S_IDX}, 14", f"s_lshl_b32 s{S_T1}, s{S_WV}, 12", f"s_add_u32 s{S_T0}, s{S_T0}, s{S_T1}",
                    f"s_and_b32 s{S_T1}, s{S_XCD}, 1", f"s_lshl_b32 s{S_T1}, s{S_T1}, 9", f"s_add_u32 s{S_T0}, s{S_T0}, s{S_T1}",
                    "s_mov_b64 exec, 0xffff", f"buffer_load_dword v{V_WO}, v2, {sWO}, s{S_T0} offen{PFPOL}", "s_mov_b64 exec, -1"]))
            if c + 1 == opt.wc_at:
                dq.insert(0, ("vm", "pf", ["s_getpc_b64 s[68:69]", f"L_wc_{tag}:", f"v_lshlrev_b32 v2, 7, v{V_L}",
                    f"s_lshl_b32 s{S_T0}, s{S_CW}, 13", f"v_add_u32 v2, s{S_T0}, v2",
                    f"v_add_u32 v3, L_q_{tag}-L_wc_{tag}, v2", f"v_add_u32 v2, {'L_phase2-L_wc_' + tag}-8192, v2",
                    f"s_cmp_eq_u32 s{S_CW}, 0", "s_cselect_b64 vcc, -1, 0", "v_cndmask_b32 v3, v2, v3, vcc",
                    f"v_min_u32 v3, L_end-L_wc_{tag}, v3",
                    f"global_load_dword v{V_PF0}, v3, s[68:69]"]))
            if opt.pf == 3 and npf_left(opt, c): dq.insert(0, pf3_item())
            if nc < 12: dq += chunk_dmas(g, nc, halo)
            if opt.pf == 4 and npf_left(opt, c): dq.insert(min(opt.pf_pos, len(dq)), pf4_item())
            run_slots(g, mf[opt.bar_after:], [rd], cap=opt.cap, dma=dq, dma_every=ev, dma_phase=ev - 1)
            for it in rd: g.emit(it)
        else:
            rd = kv_reads(ks + 1, halo)
            run_slots(g, mf, [rd], cap=opt.cap_even, dma=dq, dma_every=ev, dma_phase=ev - 1)
            for it in rd: g.emit(it)
    g.stamp(3)
    g.label(f"L_q_{tag}")
    S1 = []; P = S1.append
    if br == 0:
        order = [2, 3, 0, 1] if rw == 0 else [0, 1, 2, 3]
        if rw == 1:
            for hh in range(2):
                h = V_HACC + hh*4
                P(f"v_cvt_pk_bf16_f32 v{4+hh*2}, v{h}, v{h+1}"); P(f"v_cvt_pk_bf16_f32 v{5+hh*2}, v{h+2}, v{h+3}")
                P(("lds", "xw", f"ds_write_b64 v{V_XA}, v[{4+hh*2}:{5+hh*2}] offset:{4096 + hh*512}"))
        for Tl in order:
            for hh in range(2):
                k = acc(Tl, hh, 0); v = acc(Tl, hh, 1)
                kp = V_KP + (Tl*2 + hh)*2
                vp = V_VP + ((Tl & 1)*2 + hh)*6 + 2 + (Tl >> 1)*2
                P(f"v_cvt_pk_bf16_f32 v{kp}, v{k}, v{k+1}"); P(f"v_cvt_pk_bf16_f32 v{kp+1}, v{k+2}, v{k+3}")
                P(f"v_cvt_pk_bf16_f32 v{vp}, v{v}, v{v+1}"); P(f"v_cvt_pk_bf16_f32 v{vp+1}, v{v+2}, v{v+3}")
                if rw == 0 and Tl >= 2:
                    p = Tl & 1
                    P(("lds", "xw", f"ds_write_b64 v{V_XA}, v[{kp}:{kp+1}] offset:{(p*2+hh)*1024}"))
                    P(("lds", "xw", f"ds_write_b64 v{V_XA}, v[{vp}:{vp+1}] offset:{(p*2+hh)*1024+512}"))
        if rw == 0:
            for hh in range(2):
                h = V_HACC + hh*4
                P(f"v_cvt_pk_bf16_f32 v{V_KPREV+hh*2}, v{h}, v{h+1}"); P(f"v_cvt_pk_bf16_f32 v{V_KPREV+hh*2+1}, v{h+2}, v{h+3}")
        S1b = []
        for p in range(2):
            for hh in range(2):
                vp = V_VP + (p*2 + hh)*6
                if rw == 0:
                    S1b.append(("lds", "xr", f"ds_read_b64 v[{vp}:{vp+1}], v{V_XA} offset:{4096 + hh*512}"))
                else:
                    kp = V_KPREV + (p*2 + hh)*2
                    S1b.append(("lds", "xr", f"ds_read_b64 v[{kp}:{kp+1}], v{V_XA} offset:{(p*2+hh)*1024}"))
                    S1b.append(("lds", "xr", f"ds_read_b64 v[{vp}:{vp+1}], v{V_XA} offset:{(p*2+hh)*1024+512}"))
    else:
        PK, VV = V_VP, V_VP + 16
        TMP = V_QACC + 16
        KVR = V_HACC; KVO = V_HF
        oth = 1 - rw
        for hh in (oth, rw):
            regs = [acc(Tl, hh, 0) + r for Tl in range(4) for r in range(4)]
            S1 += phi_list(regs, TMP)
            for Tl in range(4):
                k = acc(Tl, hh, 0); v = acc(Tl, hh, 1)
                P(f"v_cvt_pk_bf16_f32 v{PK+hh*8+Tl*2}, v{k}, v{k+1}"); P(f"v_cvt_pk_bf16_f32 v{PK+hh*8+Tl*2+1}, v{k+2}, v{k+3}")
                P(f"v_cvt_pk_bf16_f32 v{VV+hh*8+Tl*2}, v{v}, v{v+1}"); P(f"v_cvt_pk_bf16_f32 v{VV+hh*8+Tl*2+1}, v{v+2}, v{v+3}")
            R = KVR if hh == rw else KVO
            d = vr(R); z = vr(R + 4)
            P(f"v_mfma_f32_16x16x32_bf16 {d}, {vr(PK+hh*8)}, {vr(VV+hh*8)}, 0")
            P(f"v_mfma_f32_16x16x32_bf16 {z}, {vr(PK+hh*8)}, {vr(V_ONES)}, 0")
            P(f"v_mfma_f32_16x16x32_bf16 {d}, {vr(PK+hh*8+4)}, {vr(VV+hh*8+4)}, {d}")
            P(f"v_mfma_f32_16x16x32_bf16 {z}, {vr(PK+hh*8+4)}, {vr(V_ONES)}, {z}")
            if hh == oth: wr_pos = len(S1) + 12
        S1.insert(wr_pos, ("lds", "xw", f"ds_write_b128 v{V_XA}, {vr(KVO)} offset:{rw*2048}"))
        S1.insert(wr_pos + 1, ("lds", "xw", f"ds_write_b128 v{V_XA}, {vr(KVO+4)} offset:{rw*2048+1024}"))
        S1b = [("lds", "xr", f"ds_read_b128 {vr(V_ACC)}, v{V_XA} offset:{oth*2048}"),
               ("lds", "xr", f"ds_read_b128 {vr(V_ACC+4)}, v{V_XA} offset:{oth*2048+1024}"),
               f"s_add_u32 s{S_TAG}, s{S_EK}, 1", f"s_and_b32 s{S_TAG}, s{S_TAG}, 0x7f", f"s_or_b32 s{S_TAG}, s{S_TAG}, 0x80",
               f"v_mov_b32 v4, s{S_TAG}", "v_mov_b32 v5, 0xff",
               f"v_lshrrev_b32 v3, 4, v{V_L}", "v_lshlrev_b32 v3, 4, v3",
               ("need", "xr")]
        for r in range(8): S1b.append(f"v_add_f32 v{KVR+r}, v{KVR+r}, v{V_ACC+r}")
        for r in range(8): S1b.append(f"v_bfi_b32 v{KVR+r}, v5, v4, v{KVR+r}")
        S1b.append(("vm", "kvst", [f"buffer_store_dwordx4 {vr(KVR)}, v{V_L16}, {sWS}, s{S_KVS} offen sc1"]))
        S1b.append(("vm", "kvst", ["s_mov_b32 s68, 0x00010001", "s_mov_b32 s69, 0x00010001", "s_mov_b64 exec, s[68:69]",
                    f"buffer_store_dwordx4 {vr(KVR+4)}, v3, {sWS}, s{S_ZS} offen sc1", "s_mov_b64 exec, -1"]))
        S1b.append(("stamp", 4))
    OUTR = V_ACC + 48
    def attention(hh):
        o_ = []; P = o_.append
        U = lambda u: V_ACC + 12*u
        QP = V_HACC
        for u in range(4):
            q = V_QACC + (hh*4 + u)*4
            P(f"v_cvt_pk_bf16_f32 v{QP+2*u}, v{q}, v{q+1}"); P(f"v_cvt_pk_bf16_f32 v{QP+2*u+1}, v{q+2}, v{q+3}")
        P(("need", "xr"))
        for u in range(4):
            tl, p = u >> 1, u & 1
            ko = V_KP + (u*2 + hh)*2
            if tl == 1: kpv, mp = V_KP + ((u-2)*2 + hh)*2, V_MPREV
            elif rw == 1: kpv, mp = V_KPREV + (p*2 + hh)*2, V_MPREV
            else: kpv, mp = V_KPREV + hh*2, V_MHALO + 4*p
            P(f"v_mfma_f32_16x16x16_bf16 {vr(U(u))}, v[{ko}:{ko+1}], v[{QP+2*u}:{QP+2*u+1}], {vr(V_MOWN)}")
            P(f"v_mfma_f32_16x16x16_bf16 {vr(U(u)+4)}, v[{kpv}:{kpv+1}], v[{QP+2*u}:{QP+2*u+1}], {vr(mp)}")
        for u in range(4):
            for r in range(4): P(f"v_max_f32 v{U(u)+r}, v{U(u)+r}, v{U(u)+4+r}")
        for u in range(4): P(f"v_max3_f32 v{U(u)+4}, v{U(u)}, v{U(u)+1}, v{U(u)+2}")
        for u in range(4): P(f"v_max_f32 v{U(u)+4}, v{U(u)+4}, v{U(u)+3}")
        for sw in ("v_permlane32_swap_b32", "v_permlane16_swap_b32"):
            for u in range(4): P(f"v_mov_b32 v{U(u)+5}, v{U(u)+4}")
            for u in range(4): P(f"{sw} v{U(u)+4}, v{U(u)+5}")
            for u in range(4): P(f"v_max_f32 v{U(u)+4}, v{U(u)+4}, v{U(u)+5}")
        for u in range(4): P(f"v_mul_f32 v{U(u)+4}, s{S_NC}, v{U(u)+4}")
        for u in range(4):
            for r in range(4): P(f"v_fma_f32 v{U(u)+r}, v{U(u)+r}, s{S_C}, v{U(u)+4}")
        for u in range(4):
            for r in range(4): P(f"v_exp_f32 v{U(u)+r}, v{U(u)+r}")
        for u in range(4):
            P(f"v_cvt_pk_bf16_f32 v{U(u)+4}, v{U(u)}, v{U(u)+1}"); P(f"v_cvt_pk_bf16_f32 v{U(u)+5}, v{U(u)+2}, v{U(u)+3}")
        for u in range(4):
            P(f"v_and_b32 v{U(u)+10}, v{U(u)+4}, v{V_BM}"); P(f"v_and_b32 v{U(u)+11}, v{U(u)+5}, v{V_BM+1}")
            P(f"v_xor_b32 v{U(u)+8}, v{U(u)+4}, v{U(u)+10}"); P(f"v_xor_b32 v{U(u)+9}, v{U(u)+5}, v{U(u)+11}")
        for u in range(4):
            q = V_QACC + (hh*4 + u)*4
            P(f"v_mfma_f32_16x16x16_bf16 {vr(q)}, v[{V_ONES}:{V_ONES+1}], v[{U(u)+4}:{U(u)+5}], 0")
        for u in range(4):
            tl, p = u >> 1, u & 1
            vp = V_VP + (p*2 + hh)*6 + 2*tl
            P(f"v_mfma_f32_16x16x32_bf16 {vr(U(u))}, {vr(vp)}, {vr(U(u)+8)}, 0")
        for u in range(4):
            q = V_QACC + (hh*4 + u)*4
            P(f"v_rcp_f32 v{q}, v{q}")
        for u in range(4):
            q = V_QACC + (hh*4 + u)*4
            for r in range(4): P(f"v_mul_f32 v{U(u)+r}, v{U(u)+r}, v{q}")
        for u in range(4):
            o = OUTR + u*4 + hh*2
            P(f"v_cvt_pk_bf16_f32 v{o}, v{U(u)}, v{U(u)+1}"); P(f"v_cvt_pk_bf16_f32 v{o+1}, v{U(u)+2}, v{U(u)+3}")
        return o_
    PQ = V_KP
    def phi_q(hh, tmp):
        o_ = phi_list([V_QACC + hh*16 + i for i in range(16)], tmp)
        for Tl in range(4):
            q = V_QACC + (hh*4 + Tl)*4
            o_.append(f"v_cvt_pk_bf16_f32 v{PQ+hh*8+Tl*2}, v{q}, v{q+1}"); o_.append(f"v_cvt_pk_bf16_f32 v{PQ+hh*8+Tl*2+1}, v{q+2}, v{q+3}")
        return o_
    PB = V_ACC
    def gather_items():
        it = []
        for j in range(16):
            pre = [f"s_add_u32 s{S_T2}, s{S_T0}, {j*1024}"] if j % 4 == 0 else []
            it.append(("vm", ("gat", j), pre + [f"buffer_load_dwordx4 {vr(PB+4*j)}, v{V_L16}, {sWS}, s{S_T2} offen offset:{(j%4)*1024} sc1"]))
        it.append(("vm", ("gat", 16), [f"buffer_load_dwordx4 {vr(V_HACC)}, v3, {sWS}, s{S_T1} offen sc1"]))
        return it
    gat_setup = [f"s_lshl_b32 s{S_T0}, s{S_HEAD}, 14", f"s_add_u32 s{S_T0}, s{S_T0}, {WS_KV}",
                 f"s_lshl_b32 s{S_T1}, s{S_HEAD}, 10", f"s_add_u32 s{S_T1}, s{S_T1}, {WS_Z}",
                 f"v_and_b32 v3, 15, v{V_L}", "v_lshlrev_b32 v3, 6, v3",
                 f"v_lshrrev_b32 v4, 4, v{V_L}", "v_lshl_add_u32 v3, v4, 4, v3"]
    S2 = attention(0) if br == 0 else phi_q(0, V_VP)

    seq = [(hh, ks) for hh in range(2) for ks in range(16)]
    PRE = 3
    B9 = 8 - PRE
    side = list(S1)
    sync_done = False
    capA = -(-sum(cost(x) for x in S1) // (4 * B9)) + 1
    gq = []
    for n, (hh, ks) in enumerate(seq):
        slot = n % 8
        if n == 16:
            for it in side: g.emit(it)
            side = list(S2)
        if n == B9:
            if br == 0:
                for it in side: g.emit(it)
                side = list(S1b)
            while dq and dq[0][1][1] <= 9: g.emit(dq.pop(0))
            g.ldsall()
            g.vmwait(("c", 9))
            A("s_barrier")
        if br == 1 and not sync_done and ((not side and (n > B9 or opt.early_sync)) or n == 15):
            for it in side: g.emit(it)
            g.ldsall()
            A("s_barrier")
            side = list(S1b); sync_done = True
        if br == 1 and n == opt.gat_at:
            for it in side: g.emit(it)
            side = []
            for it in gat_setup: g.emit(it)
            gq = gather_items()
        rd = q_read(*seq[n + PRE], (n + PRE) % 8) if n + PRE < len(seq) else []
        mf = []
        for Tl in range(4):
            d = vr(V_QACC + (hh*4 + Tl)*4)
            c = "0" if ks == 0 else d
            mf.append((f"v_mfma_f32_16x16x32_bf16 {d}, {vr(V_WF + slot*4)}, {vr(xf(Tl, ks), 4, 'a')}, {c}", [("q", hh, ks)]))
        cap = (capA if br == 0 else opt.b_cap) if n < 16 else opt.cap2
        if gq: run_slots(g, mf, [rd, side], cap=cap, dma=gq, dma_every=opt.gat_every, dma_phase=0)
        else: run_slots(g, mf, [rd, side], cap=cap, dma=dq, dma_every=4, dma_phase=3)
        for it in rd: g.emit(it)
    for it in side: g.emit(it)
    for it in dq: g.emit(it)
    for it in gq: g.emit(it)
    gq = []
    g.stamp(5)
    g.ldsall()
    g.vmwait(("c", 11))
    A("s_barrier")
    d2 = chunk_dmas(g, 12, False) + chunk_dmas(g, 13, False)
    def with_dma(items, every):
        k = 0
        for it in items:
            g.emit(it); k += 1
            if k % every == 0 and d2: g.emit(d2.pop(0))
    def spin_guard(lbl_out):
        A(f"s_sub_u32 s{S_SPIN}, s{S_SPIN}, 1")
        A(f"s_cbranch_scc1 {lbl_out}")
    if br == 0:
        with_dma(attention(1), 9)
        for it in d2: g.emit(it)
    else:
        if opt.gat_at >= 32:
            for it in gat_setup: g.emit(it)
            for it in gather_items(): g.emit(it)
        A(f"v_mov_b32 v6, s{S_TAG}")
        with_dma(phi_q(1, V_WF), 9)
        g.stamp(6)
        SUM = V_WF + 16
        def chk_sum(first):
            for j in range(16):
                if first: g.vmwait(("gat", j))
                b = PB + 4*j
                for r in range(4):
                    a_ = "0" if (j == 0 and r < 2) else f"v{4+(r&1)}"
                    A(f"v_msad_u8 v{4+(r&1)}, v{b+r}, v6, {a_}")
                for r in range(4):
                    if j == 0: A(f"v_mov_b32 v{SUM+r}, v{b+r}")
                    else: A(f"v_add_f32 v{SUM+r}, v{SUM+r}, v{b+r}")
                if first and d2 and j % 2 == 1: g.emit(d2.pop(0))
            if first: g.vmwait(("gat", 16))
            for r in range(4): A(f"v_msad_u8 v{4+(r&1)}, v{V_HACC+r}, v6, v{4+(r&1)}")
            A("v_or_b32 v4, v4, v5")
            A("v_cmp_ne_u32 vcc, 0, v4")
        chk_sum(True)
        for it in d2: g.emit(it)
        A(f"s_cbranch_vccz L_kvok_{tag}")
        g.label(f"L_kvretry_{tag}")
        spin_guard(f"L_kvok_{tag}")
        A(f"s_sleep {opt.kv_sleep}")
        sv = g.vm; g.vm = VM()
        for it in gather_items(): g.emit(it)
        g.vm = sv
        A("s_waitcnt vmcnt(0)")
        chk_sum(False)
        A(f"s_cbranch_vccnz L_kvretry_{tag}")
        g.label(f"L_kvok_{tag}")
        g.stamp(7)
        for rot in (8, 4, 2, 1):
            for r in range(4):
                A(f"v_add_f32_dpp v{V_HACC+r}, v{V_HACC+r}, v{V_HACC+r} row_ror:{rot} row_mask:0xf bank_mask:0xf")
        KZ = V_WF
        A(f"v_cvt_pk_bf16_f32 v{KZ+rw*4}, v{SUM}, v{SUM+1}"); A(f"v_cvt_pk_bf16_f32 v{KZ+rw*4+1}, v{SUM+2}, v{SUM+3}")
        A(f"v_cvt_pk_bf16_f32 v{KZ+rw*4+2}, v{V_HACC}, v{V_HACC+1}"); A(f"v_cvt_pk_bf16_f32 v{KZ+rw*4+3}, v{V_HACC+2}, v{V_HACC+3}")
        A(f"ds_write_b128 v{V_XA}, {vr(KZ+rw*4)} offset:{4096 + rw*1024}")
        NUM = V_ACC; DEN = V_QACC
        def omf(hh):
            for Tl in range(4):
                u = hh*4 + Tl; pq = PQ + hh*8 + Tl*2
                A(f"v_mfma_f32_16x16x16_bf16 {vr(DEN+4*u)}, v[{KZ+hh*4+2}:{KZ+hh*4+3}], v[{pq}:{pq+1}], 0")
                A(f"v_mfma_f32_16x16x16_bf16 {vr(NUM+4*u)}, v[{KZ+hh*4}:{KZ+hh*4+1}], v[{pq}:{pq+1}], 0")
        def ofin(us):
            for u in us: A(f"v_add_f32 v{DEN+4*u}, s{S_EPS}, v{DEN+4*u}")
            for u in us: A(f"v_rcp_f32 v{DEN+4*u}, v{DEN+4*u}")
            for u in us:
                for r in range(4): A(f"v_mul_f32 v{NUM+4*u+r}, v{NUM+4*u+r}, v{DEN+4*u}")
            for u in us:
                hh, Tl = u >> 2, u & 3
                o = OUTR + Tl*4 + hh*2
                A(f"v_cvt_pk_bf16_f32 v{o}, v{NUM+4*u}, v{NUM+4*u+1}"); A(f"v_cvt_pk_bf16_f32 v{o+1}, v{NUM+4*u+2}, v{NUM+4*u+3}")
        omf(rw)
        A("s_waitcnt lgkmcnt(0)")
        A("s_barrier")
        A(f"ds_read_b128 {vr(KZ+(1-rw)*4)}, v{V_XA} offset:{4096 + (1-rw)*1024}")
        ofin([rw*4 + i for i in range(4)])
        A("s_waitcnt lgkmcnt(0)")
        omf(1 - rw)
        if rw == 0:
            A(f"s_or_b32 s{S_T2}, s{S_RB}, s{S_CW}")
            A(f"s_cmp_lg_u32 s{S_T2}, 0")
            A(f"s_cbranch_scc1 L_nobk_{tag}")
            A(f"s_add_u32 s{S_T2}, s{S_EK}, 1")
            A(f"v_mov_b32 v4, s{S_T2}"); A("v_mov_b32 v5, 0")
            A("s_mov_b64 exec, 1")
            A(f"buffer_store_dword v4, v5, {sWS}, s{S_EKA} offen sc1")
            A("s_mov_b64 exec, -1")
            g.label(f"L_nobk_{tag}")
        ofin([(1-rw)*4 + i for i in range(4)])
    for Tl in range(4):
        A(f"s_add_u32 s{S_T2}, s{S_OST}, {Tl*16384}")
        A(f"buffer_store_dwordx4 {vr(OUTR+4*Tl)}, v{V_L16}, {sWS}, s{S_T2} offen sc1")
    g.stamp(8)
    A("s_branch L_phase2")

def phase2(g):
    A = g.A
    opt = g.opt
    g.label("L_phase2")
    g.lds = []; g.vm = VM()
    OF = 64; ACC = 128; VR0 = 20
    l = f"v{V_L}"
    A(f"v_and_b32 v2, 15, {l}"); A(f"v_lshrrev_b32 v3, 4, {l}")
    A("v_lshrrev_b32 v4, 2, v2"); A("v_and_b32 v5, 3, v2")
    A("v_lshl_add_u32 v6, v3, 2, v4")
    A("v_and_b32 v7, 7, v6")
    A("v_lshlrev_b32 v6, 8, v6"); A("v_lshl_add_u32 v6, v5, 3, v6"); A("v_lshl_add_u32 v6, v7, 5, v6")
    for c in range(8):
        A(f"v_xor_b32 v{VR0+2*c}, {c*32}, v6")
        A(f"v_add_u32 v{VR0+2*c+1}, 65536, v{VR0+2*c}")
    NV = opt.p2_nv
    def freg(hp, c):
        if hp < 8: return ("a", (hp*8 + c)*4)
        if hp < 8 + NV: return ("v", 160 + ((hp - 8)*8 + c)*4)
        return ("a", ((hp - 8 - NV)*8 + c)*4)
    def rd(hp, c):
        out = []
        k_, a = freg(hp, c)
        for t in range(2):
            const = WOB[hp >> 2] + (hp & 3)*8192 + t*4096
            out.append(("lds", ("o", hp, c), f"ds_read_b64_tr_b16 {k_}[{a+2*t}:{a+2*t+1}], v{VR0 + 2*c + (const >> 16)} offset:{const & 0xffff}"))
        return out
    def preload(hps):
        for hp in hps:
            for c in range(8):
                for it in rd(hp, c): g.emit(it)
                if len(g.lds) >= 12: g.need(g.lds[3])
    A(f"s_add_u32 s{S_T0}, s{S_EO}, 1")
    A(f"v_mov_b32 v6, s{S_T0}"); A(f"v_mov_b32 v7, s{S_EO+1}")
    A("v_mov_b32 v5, 0")
    A("v_lshlrev_b32 v8, 3, v2")
    A("v_lshlrev_b32 v2, 12, v2")
    A("v_and_b32 v4, 1, v3"); A("v_lshl_add_u32 v2, v4, 5, v2")
    A("v_lshrrev_b32 v4, 1, v3"); A("v_lshl_add_u32 v2, v4, 4, v2")
    A(f"s_lshl_b32 s{S_XB}, s{S_RB}, 18")
    A(f"s_and_b32 s{S_T1}, s{S_HG}, 1"); A(f"s_lshl_b32 s{S_T1}, s{S_T1}, 17"); A(f"s_add_u32 s{S_XB}, s{S_XB}, s{S_T1}")
    A(f"s_lshl_b32 s{S_T1}, s{S_RW}, 16"); A(f"s_add_u32 s{S_XB}, s{S_XB}, s{S_T1}")
    A(f"s_lshl_b32 s{S_T1}, s{S_CW}, 11"); A(f"s_add_u32 s{S_XB}, s{S_XB}, s{S_T1}")
    A(f"s_lshl_b32 s{S_T1}, s{S_BR}, 10"); A(f"s_add_u32 s{S_XB}, s{S_XB}, s{S_T1}")
    A(f"s_lshr_b32 s{S_T1}, s{S_HG}, 1"); A(f"s_lshl_b32 s{S_T1}, s{S_T1}, 8"); A(f"s_add_u32 s{S_XB}, s{S_XB}, s{S_T1}")
    preload(range(opt.p2_pre1))
    A("s_waitcnt vmcnt(0)")
    A("s_mov_b64 exec, 1")
    A(f"buffer_store_dwordx2 v[6:7], v5, {sWS}, s{S_FLO} offen sc1")
    A("s_mov_b64 exec, -1")
    g.stamp(9)
    A("s_barrier")
    preload(range(opt.p2_pre1, 8 + NV))
    g.ldsall()
    A(f"s_cmp_lg_u32 s{S_WV}, 0")
    A("s_cbranch_scc1 L_ook")
    if opt.poll0: A(f"s_sleep {opt.poll0}")
    A("s_branch L_opoll1")
    g.label("L_opoll")
    A(f"s_sub_u32 s{S_SPIN}, s{S_SPIN}, 1")
    A("s_cbranch_scc1 L_ook")
    A(f"s_sleep {opt.poll1}")
    g.label("L_opoll1")
    A(f"buffer_load_dwordx2 v[10:11], v8, {sWS}, s{S_FLN} offen sc1")
    A("s_waitcnt vmcnt(0)")
    A("v_cmp_ne_u64 vcc, v[10:11], v[6:7]")
    A("s_cbranch_vccnz L_opoll")
    g.label("L_ook")
    A("s_waitcnt vmcnt(0)")
    g.vm = VM()
    A("s_barrier")
    g.stamp(10)
    lq = []
    for hp in range(16):
        pre = [f"s_add_u32 s{S_T2}, s{S_OLD}, {hp*1024}"] if hp % 4 == 0 else []
        lq.append(("vm", ("of", hp), pre + [f"buffer_load_dwordx4 {vr(OF + 4*hp)}, v{V_L16}, {sWS}, s{S_T2} offen offset:{(hp % 4)*1024} sc1"]))
    for it in lq[:opt.p2_first]: g.emit(it)
    lq = lq[opt.p2_first:]
    rq = []
    for hp in range(16):
        while lq and lq[0][1][1] <= hp: g.emit(lq.pop(0))
        while rq and rq[0][1][1] <= hp: g.emit(rq.pop(0))
        g.vmwait(("of", hp))
        if hp % 4 == 0: g.stamp(3 + hp//4, kv="p2")
        mf = []
        for c in range(8):
            d = vr(ACC + 4*c)
            k_, a = freg(hp, c)
            mf.append((f"v_mfma_f32_16x16x32_bf16 {d}, {vr(a, 4, k_)}, {vr(OF + 4*hp)}, {'0' if hp == 0 else d}", [("o", hp, c)]))
        if hp >= 1 and hp - 1 + 8 + NV < 16:
            for c in range(8): rq += rd(hp - 1 + 8 + NV, c)
        run_slots(g, mf, [rq], cap=opt.p2_cap, dma=lq, dma_every=opt.p2_every, dma_phase=0)
    g.stamp(7, kv="p2")
    A(f"s_or_b32 s{S_T2}, s{S_HG}, s{S_WV}")
    A(f"s_cmp_lg_u32 s{S_T2}, 0")
    A("s_cbranch_scc1 L_nobo")
    A("s_mov_b64 exec, 1")
    A(f"buffer_store_dword v6, v5, {sWS}, s{S_EOA} offen sc1")
    A("s_mov_b64 exec, -1")
    g.label("L_nobo")
    for cp in range(4):
        o = 64 + cp*4
        for h in range(2):
            a = ACC + (2*cp + h)*4
            A(f"v_cvt_pk_bf16_f32 v{o+2*h}, v{a}, v{a+1}"); A(f"v_cvt_pk_bf16_f32 v{o+2*h+1}, v{a+2}, v{a+3}")
    for cp in range(4):
        o = 64 + cp*4
        A(f"v_permlane16_swap_b32 v{o}, v{o+2}")
        A(f"v_permlane16_swap_b32 v{o+1}, v{o+3}")
        A(f"buffer_store_dwordx4 {vr(o)}, v2, {sOUT}, s{S_XB} offen offset:{cp*64}{opt.outpol}")
    if opt.stamps:
        A("s_waitcnt vmcnt(0)")
        g.stamp(11)
        A("s_waitcnt lgkmcnt(0)")
        A(f"s_cmp_lg_u32 s{S_WV}, {opt.stamp_wave}")
        A("s_cbranch_scc1 L_end")
        if opt.dbgstamps:
            A("s_load_dwordx2 s[16:17], s[0:1], 56")
            A("v_mov_b32 v100, 0")
            for j in range(12):
                if opt.dbgbr >= 0 or j not in (4, 6, 7):
                    A(f"v_writelane_b32 v100, s{72+2*j}, {j}")
            for j, src in ((12, 0), (13, 2), (14, 3), (15, 11)):
                A(f"s_not_b32 s{S_T0}, s{72+2*src}")
                A(f"v_writelane_b32 v100, s{S_T0}, {j}")
            A("s_waitcnt lgkmcnt(0)")
            A("s_mov_b32 s18, 256"); A("s_mov_b32 s19, 0x20000")
            if opt.dbgbr >= 0:
                A(f"s_cmp_lg_u32 s{S_BR}, {opt.dbgbr}")
                A("s_cbranch_scc1 L_end")
            A(f"v_lshlrev_b32 v3, 2, v{V_L}")
            A("s_mov_b64 exec, 0xffff")
            A("buffer_atomic_umax v100, v3, s[16:19], 0 offen sc1")
            A("s_branch L_end")
        for j in range(24): A(f"v_mov_b32 v{100+j}, s{72+j}")
        A(f"s_mul_i32 s{S_T0}, s2, 96")
        A(f"s_add_u32 s{S_T0}, s{S_T0}, {WS_STAMP}")
        A("v_mov_b32 v3, 0")
        A("s_mov_b64 exec, 1")
        for j in range(6):
            A(f"buffer_store_dwordx4 v[{100+4*j}:{103+4*j}], v3, {sWS}, s{S_T0} offen offset:{16*j}")

def main():
    ap = argparse.ArgumentParser()
    ap.add_argument("-o", default="out.s")
    ap.add_argument("--stamps", type=int, default=0)
    ap.add_argument("--kvstamps", type=int, default=0)
    ap.add_argument("--p2stamps", type=int, default=0)
    ap.add_argument("--dbgstamps", type=int, default=0)
    ap.add_argument("--dbgbr", type=int, default=-1)
    ap.add_argument("--bfirst", type=int, default=0)
    ap.add_argument("--stamp-wave", type=int, default=0)
    ap.add_argument("--bar-after", type=int, default=4)
    ap.add_argument("--nt", type=int, default=0)
    ap.add_argument("--pfnt", type=int, default=0)
    ap.add_argument("--pf", type=int, default=0)
    ap.add_argument("--pre3", type=int, default=0)
    ap.add_argument("--pf-first", type=int, default=2)
    ap.add_argument("--pf-pos", type=int, default=0)
    ap.add_argument("--pf-init", type=int, default=2)
    ap.add_argument("--warmcode", type=int, default=0)
    ap.add_argument("--warmoff", type=int, default=0)
    ap.add_argument("--dma-every", type=int, default=4)
    ap.add_argument("--dma-fast", type=int, default=2)
    ap.add_argument("--cap", type=int, default=2)
    ap.add_argument("--cap-even", type=int, default=1)
    ap.add_argument("--b-cap", type=int, default=5)
    ap.add_argument("--cap2", type=int, default=3)
    ap.add_argument("--gat-at", type=int, default=27)
    ap.add_argument("--gat-every", type=int, default=1)
    ap.add_argument("--kv-sleep", type=int, default=4)
    ap.add_argument("--poll0", type=int, default=8)
    ap.add_argument("--poll1", type=int, default=6)
    ap.add_argument("--outpol", default="")
    ap.add_argument("--p2-first", type=int, default=6)
    ap.add_argument("--p2-every", type=int, default=4)
    ap.add_argument("--early-sync", type=int, default=1)
    ap.add_argument("--p2-nv", type=int, default=3)
    ap.add_argument("--p2-pre1", type=int, default=6)
    ap.add_argument("--p2-cap", type=int, default=1)
    ap.add_argument("--wo-at", type=int, default=4)
    ap.add_argument("--wc-at", type=int, default=0)
    opt = ap.parse_args()
    if opt.outpol: opt.outpol = " " + opt.outpol.replace(",", " ")
    g = G(opt)
    global PFPOL
    PFPOL = " nt" if opt.pfnt else ""
    K = NAME + "_kernel"
    head = ["; generated by gen/gen5.py  " + " ".join(sys.argv[1:]),
            "; @launch grid=(256,1,1) block=(256,1,1) lds=163840",
            '.amdgcn_target "amdgcn-amd-amdhsa--gfx950"', ".text",
            f".globl {K}", ".p2align 8", f".type {K},@function", f"{K}:"]
    A = g.A
    g.stamp(0)
    decode(g)
    A(f"s_lshl_b32 s{S_T0}, s{S_BR}, 1")
    A(f"s_add_u32 s{S_T0}, s{S_T0}, s{S_RW}")
    for v in (1, 2, 3):
        A(f"s_cmp_eq_u32 s{S_T0}, {v}")
        A(f"s_cbranch_scc1 L_path{v}")
    for v in range(4):
        g.label(f"L_path{v}")
        phase1_path(g, v >> 1, v & 1)
    phase2(g)
    g.label("L_end")
    A("s_endpgm")
    body, n = fix_hazards(g.L)
    tail = ['.section .rodata,"a"', ".p2align 6", f".amdhsa_kernel {K}", "  .amdhsa_next_free_vgpr 512", "  .amdhsa_next_free_sgpr 102",
            "  .amdhsa_accum_offset 256", "  .amdhsa_group_segment_fixed_size 0", "  .amdhsa_kernarg_size 72",
            "  .amdhsa_user_sgpr_count 2", "  .amdhsa_user_sgpr_kernarg_segment_ptr 1",
            "  .amdhsa_system_sgpr_workgroup_id_x 1", ".end_amdhsa_kernel"]
    open(opt.o, "w").write("\n".join(head + body + tail) + "\n")
    print(f"wrote {opt.o}: {len(body)} lines, {n} nops inserted")

main()
```

```python
import sys, argparse
from asmlib import fix_hazards, VM

NAME = "concat_heads__sliding_local_dilated__linear_attn_block__prompt"
STAGE = 34816
WOFF = 18432
XCH = 4 * STAGE
WS_KV = 0x400000
WS_Z = 0x480000
WS_EO = 0x500000
WS_EK = 0x501000
WS_FL = 0x502000
WS_STAMP = 0x8000000
NEG = 0xF149F2CA
LOG2E = 0x3FB8AA3B
CSC = 0x3EB8AA3B
NCSC = 0xBEB8AA3B
EPS = 0x358637BD
SPIN = 300000

sX, sW, sWS, sWO, sOUT = "s[24:27]", "s[28:31]", "s[32:35]", "s[40:43]", "s[44:47]"
S_BR, S_RB, S_HG, S_WV, S_RW, S_CW = 48, 49, 50, 51, 52, 53
S_XB, S_HB, S_WB, S_LW, S_T0, S_T1, S_T2, S_C, S_NC, S_L2E, S_EPS, S_WOB, S_LWH = 54, 55, 56, 57, 58, 59, 60, 61, 62, 63, 64, 65, 67
S_HEAD, S_SPIN = 70, 71
S_WB1 = 66
S_OST, S_KVS, S_ZS, S_LWO, S_OLD, S_IDX, S_XCD = 4, 5, 6, 7, 8, 23, 22
S_PFX, S_PFW, S_FLN, S_FLO, S_EOA, S_EKA, S_TAG = 9, 10, 11, 12, 13, 14, 15
S_EO, S_EK = 36, 38
S_ROT, S_RC = 16, 17
V_L = 1
V_XD = 10
V_WD = 14
V_XH, V_WO = 18, 19
V_XR = 20
V_HR = 26
V_WR = 32
V_OR = 38
V_L16 = 46
V_L8 = 47
V_MOWN, V_MPREV, V_MHALO, V_BM, V_ONES = 48, 52, 56, 64, 66
V_PF0, V_PF1 = 70, 71
V_ACC = 72
V_HACC = 136
V_WF = 144
V_HF = 176
V_QACC = 184
V_VP = 216
V_KP = 240
V_KPREV = 176
V_XA = 9
PFPOL = ""
V_WO4 = [12, 13, 16, 17]
WOB = [67584, 100352, 0, 32768]

def vr(b, n=4, k="v"): return f"{k}[{b}:{b+n-1}]"
def ldsaddr(base_reg, const):
    return f"v{base_reg + (const >> 16)}", const & 0xFFFF

class G:
    def __init__(self, opt):
        self.L = []; self.opt = opt; self.lds = []; self.vm = VM()
    def A(self, s):
        if s.endswith(":"): self.L.append(s)
        else: self.L.append("    " + s)
    def label(self, s): self.L.append(s + ":")
    def stamp(self, i, kv=False):
        o = self.opt
        if not o.stamps: return
        if o.kvstamps and i >= 3 and not kv and i != 11: return
        if kv is True and not o.kvstamps: return
        if o.p2stamps and 3 <= i <= 7 and kv != "p2": return
        if kv == "p2" and not o.p2stamps: return
        self.A(f"s_memrealtime s[{72+2*i}:{73+2*i}]")
    def emit(self, it):
        if isinstance(it, str): self.A(it)
        elif isinstance(it, list):
            for s in it: self.emit(s)
        elif it[0] == "lds":
            self.lds.append(it[1]); self.A(it[2])
        elif it[0] == "vm":
            self.vm.add(it[1])
            for s in it[2]: self.A(s)
        elif it[0] == "need": self.need(it[1])
        elif it[0] == "ldsall": self.ldsall()
        elif it[0] == "stamp": self.stamp(it[1])
        else: raise ValueError(it)
    def need(self, tag):
        idx = max((i for i, t in enumerate(self.lds) if t == tag), default=None)
        if idx is None: return
        n = len(self.lds) - 1 - idx
        self.lds = self.lds[idx + 1:]
        self.A(f"s_waitcnt lgkmcnt({min(n, 15)})")
    def ldsall(self):
        self.lds = []
        self.A("s_waitcnt lgkmcnt(0)")
    def vmwait(self, tag):
        n = self.vm.wait_n(tag)
        if n is not None: self.A(f"s_waitcnt vmcnt({n})")

def cost(it):
    if isinstance(it, str): return 1
    if isinstance(it, list): return sum(cost(x) for x in it)
    if it[0] == "vm": return len(it[2])
    return 1

def run_slots(g, mf, queues, cap=2, dma=None, dma_every=4, dma_phase=0):
    for i, (m, needs) in enumerate(mf):
        for t in needs: g.need(t)
        g.A(m)
        room = cap
        if dma and (i % dma_every) == dma_phase:
            it = dma.pop(0); g.emit(it); room -= min(cost(it), 2)
        for q in queues:
            while q and room > 0:
                it = q.pop(0); g.emit(it); room -= cost(it)

def decode(g):
    A = g.A
    A("s_cmp_ge_u32 s2, 256")
    A("s_cbranch_scc1 L_end")
    A("s_load_dwordx16 s[4:19], s[0:1], 0")
    A("s_load_dwordx2 s[20:21], s[0:1], 64")
    A("v_lshrrev_b32 v2, 6, v0")
    A(f"v_and_b32 v{V_L}, 63, v0")
    A(f"v_readfirstlane_b32 s{S_WV}, v2")
    A("s_and_b32 s22, s2, 7")
    A("s_lshr_b32 s23, s2, 3")
    A(f"s_lshr_b32 s{S_BR}, s22, 2")
    if g.opt.bfirst: A(f"s_xor_b32 s{S_BR}, s{S_BR}, 1")
    A(f"s_bfe_u32 s{S_RB}, s22, 0x10001")
    A(f"s_lshl_b32 s{S_RB}, s{S_RB}, 3")
    A(f"s_and_b32 s{S_T0}, s23, 7")
    A(f"s_add_u32 s{S_RB}, s{S_RB}, s{S_T0}")
    A(f"s_and_b32 s{S_HG}, s22, 1")
    A(f"s_lshl_b32 s{S_HG}, s{S_HG}, 2")
    A(f"s_lshr_b32 s{S_T0}, s23, 3")
    A(f"s_add_u32 s{S_T0}, s{S_T0}, s23")
    A(f"s_and_b32 s{S_T0}, s{S_T0}, 3")
    A(f"s_add_u32 s{S_HG}, s{S_HG}, s{S_T0}")
    A(f"s_lshr_b32 s{S_RW}, s{S_WV}, 1")
    A(f"s_and_b32 s{S_CW}, s{S_WV}, 1")
    l = f"v{V_L}"
    A(f"v_lshrrev_b32 v2, 3, {l}")
    A(f"v_and_b32 v3, 7, {l}")
    A(f"v_lshrrev_b32 v4, 4, {l}")
    A("v_xor_b32 v5, v3, v4")
    A("v_lshlrev_b32 v6, 11, v2")
    A(f"v_lshl_add_u32 v{V_XD}, v5, 4, v6")
    A(f"v_xor_b32 v7, 64, v{V_XD}")
    A(f"v_add_u32 v{V_XD+1}, {14*1024}, v7")
    A("v_and_b32 v5, 1, v4")
    A("v_lshlrev_b32 v5, 1, v5")
    A("v_xor_b32 v5, v3, v5")
    A("v_mul_u32_u24 v7, 3072, v2")
    A(f"v_lshl_add_u32 v{V_WD}, v5, 4, v7")
    A(f"v_xor_b32 v7, 64, v{V_WD}")
    A(f"v_add_u32 v{V_WD+1}, 22528, v7")
    A(f"s_lshl_b32 s{S_T0}, s{S_WV}, 1")
    A(f"v_add_u32 v5, s{S_T0}, v4")
    A("v_xor_b32 v5, v3, v5")
    A(f"v_lshl_add_u32 v{V_XH}, v5, 4, v6")
    A(f"s_lshl_b32 s{S_XB}, s{S_RB}, 17")
    A(f"s_lshl_b32 s{S_T0}, s{S_WV}, 15")
    A(f"s_add_u32 s{S_XB}, s{S_XB}, s{S_T0}")
    A(f"s_lshl_b32 s{S_HB}, s{S_RB}, 7")
    A(f"s_sub_i32 s{S_HB}, s{S_HB}, 16")
    A(f"s_max_i32 s{S_HB}, s{S_HB}, 0")
    A(f"s_lshl_b32 s{S_T0}, s{S_CW}, 3")
    A(f"s_add_u32 s{S_HB}, s{S_HB}, s{S_T0}")
    A(f"s_add_u32 s{S_HB}, s{S_HB}, s{S_RW}")
    A(f"s_lshl_b32 s{S_HB}, s{S_HB}, 10")
    A(f"s_mul_i32 s{S_WB}, s{S_WV}, 49152")
    A(f"s_lshl_b32 s{S_T0}, s{S_HG}, 7")
    A(f"s_add_u32 s{S_WB}, s{S_WB}, s{S_T0}")
    A(f"s_add_u32 s{S_WB1}, s{S_WB}, 1024")
    A(f"s_lshl_b32 s{S_LW}, s{S_WV}, 12")
    A(f"s_lshl_b32 s{S_LWH}, s{S_WV}, 9")
    A(f"s_lshl_b32 s{S_WOB}, s{S_WV}, 15")
    A(f"s_lshr_b32 s{S_T0}, s{S_HG}, 1")
    A(f"s_lshl_b32 s{S_T0}, s{S_T0}, 8")
    A(f"s_add_u32 s{S_WOB}, s{S_WOB}, s{S_T0}")
    if g.opt.pf == 4: pf4_pre(g)
    A("s_waitcnt lgkmcnt(0)")
    A(f"s_cmp_eq_u32 s{S_BR}, 0")
    A("s_cselect_b32 s24, s4, s10"); A("s_cselect_b32 s25, s5, s11"); A("s_mov_b32 s26, 0x200000"); A("s_mov_b32 s27, 0x20000")
    A("s_cselect_b32 s28, s6, s12"); A("s_cselect_b32 s29, s7, s13"); A("s_mov_b32 s30, 0x180000"); A("s_mov_b32 s31, 0x20000")
    A("s_cselect_b32 s40, s8, s14"); A("s_cselect_b32 s41, s9, s15"); A("s_mov_b32 s42, 0x80000"); A("s_mov_b32 s43, 0x20000")
    A("s_mov_b32 s32, s20"); A("s_mov_b32 s33, s21"); A("s_mov_b32 s34, 0x10000000"); A("s_mov_b32 s35, 0x20000")
    A("s_mov_b32 s44, s16"); A("s_mov_b32 s45, s17"); A("s_mov_b32 s46, 0x400000"); A("s_mov_b32 s47, 0x20000")
    if g.opt.rot == 3: A(f"s_lshl_b32 s{S_ROT}, s{S_HG}, 1")
    elif g.opt.rot == 4: A(f"s_mov_b32 s{S_ROT}, s{S_RB}")
    elif g.opt.rot == 5: A(f"s_mov_b32 s{S_ROT}, s{S_HG}")
    elif g.opt.rot == 6: A(f"s_lshl_b32 s{S_ROT}, s{S_HG}, 2")
    elif g.opt.rot == 7: A(f"s_lshl_b32 s{S_ROT}, s{S_RB}, 2")
    elif g.opt.rot == 8:
        A(f"s_xor_b32 s{S_ROT}, s{S_RB}, s{S_HG}"); A(f"s_lshl_b32 s{S_ROT}, s{S_ROT}, 2")
    elif g.opt.rot == 9: A(f"s_mov_b32 s{S_ROT}, 4")
    elif g.opt.rot:
        A(f"s_lshl_b32 s{S_ROT}, s{S_HG}, 1")
        A(f"s_add_u32 s{S_ROT}, s{S_ROT}, s{S_RB}")
        if g.opt.rot == 2:
            A(f"s_lshr_b32 s{S_T0}, s{S_HG}, 2"); A(f"s_add_u32 s{S_ROT}, s{S_ROT}, s{S_T0}")
            A(f"s_lshr_b32 s{S_T0}, s{S_RB}, 3"); A(f"s_lshl_b32 s{S_T0}, s{S_T0}, 2"); A(f"s_add_u32 s{S_ROT}, s{S_ROT}, s{S_T0}")
    else:
        A(f"s_mov_b32 s{S_ROT}, 0")

def chunk_dmas(g, c, halo):
    st = (c % 4) * STAGE
    nt = " nt" if g.opt.nt else ""
    tag = ("c", c)
    out = []
    if c < 8:
        rc = [f"s_add_u32 s{S_RC}, s{S_ROT}, {c}", f"s_and_b32 s{S_RC}, s{S_RC}, 7"]
        for i in range(4):
            pre = rc + [f"s_add_u32 m0, s{S_LW}, {st}", f"s_lshl_b32 s{S_T2}, s{S_RC}, 7", f"s_add_u32 s{S_T2}, s{S_T2}, s{S_XB}"] if i == 0 else []
            out.append(("vm", tag, pre + [f"buffer_load_dwordx4 v{V_XD+(i>>1)}, {sX}, s{S_T2} offen offset:{i*1024}{nt} lds"]))
        for j in range(4):
            pre = [f"s_add_u32 m0, s{S_LW}, {st + WOFF}", f"s_mul_i32 s{S_T2}, s{S_RC}, 196608", f"s_add_u32 s{S_T2}, s{S_T2}, s{S_WB1}"] if j == 0 else []
            out.append(("vm", tag, pre + [f"buffer_load_dwordx4 v{V_WD+(j>>1)}, {sW}, s{S_T2} offen offset:{j*1024}{nt} lds"]))
        if halo:
            out.append(("vm", tag, [f"s_add_u32 m0, s{S_LWH}, {st + 16384}", f"s_lshl_b32 s{S_T2}, s{S_RC}, 7", f"s_add_u32 s{S_T2}, s{S_T2}, s{S_HB}",
                        "s_mov_b32 exec_hi, 0", f"buffer_load_dwordx4 v{V_XH}, {sX}, s{S_T2} offen{nt} lds", "s_mov_b32 exec_hi, -1"]))
    elif c < 10:
        h = c - 8
        for cq in range(4):
            for bb in range(2):
                pre = []
                if bb == 0:
                    pre = [f"s_add_u32 s{S_RC}, s{S_ROT}, {4*h+cq}", f"s_and_b32 s{S_RC}, s{S_RC}, 7",
                           f"s_add_u32 m0, s{S_LW}, {st + (cq >> 1)*16384 + (cq & 1)*1024}",
                           f"s_mul_i32 s{S_T2}, s{S_RC}, 196608", f"s_add_u32 s{S_T2}, s{S_T2}, s{S_WB}"]
                out.append(("vm", tag, pre + [f"buffer_load_dwordx4 v{V_WD+bb}, {sW}, s{S_T2} offen offset:{bb*2048}{nt} lds"]))
    else:
        h = c - 10
        for b in range(8):
            pre = [f"s_add_u32 m0, s{S_LWO}, {WOB[h] + (b >> 2)*4096}",
                   f"s_add_u32 s{S_T2}, s{S_WOB}, {(128*h + 16*(b >> 2))*1024}"] if (b & 3) == 0 else []
            out.append(("vm", tag, pre + [f"buffer_load_dwordx4 v{V_WO4[b & 3]}, {sWO}, s{S_T2} offen offset:{(b & 3)*1024}{nt} lds"]))
    return out

def setup2(g, br, rw):
    A = g.A
    halo = br == 0
    l = f"v{V_L}"
    A(f"s_lshl_b32 s{S_T0}, s{S_BR}, 4"); A(f"s_add_u32 s{S_T0}, s{S_T0}, s{S_RB}")
    A(f"s_lshl_b32 s{S_EOA}, s{S_T0}, 7"); A(f"s_add_u32 s{S_EOA}, s{S_EOA}, {WS_EO}")
    A(f"s_lshl_b32 s{S_FLN}, s{S_T0}, 8"); A(f"s_add_u32 s{S_FLN}, s{S_FLN}, {WS_FL}")
    A(f"s_lshl_b32 s{S_EKA}, s{S_HG}, 7"); A(f"s_add_u32 s{S_EKA}, s{S_EKA}, {WS_EK}")
    A(f"s_load_dwordx2 s[{S_EO}:{S_EO+1}], s[20:21], s{S_EOA}")
    if br == 1: A(f"s_load_dwordx2 s[{S_EK}:{S_EK+1}], s[20:21], s{S_EKA}")
    A(f"s_lshl_b32 s{S_T1}, s{S_HG}, 1"); A(f"s_add_u32 s{S_T1}, s{S_T1}, s{S_CW}")
    A(f"s_lshl_b32 s{S_FLO}, s{S_T1}, 3"); A(f"s_add_u32 s{S_FLO}, s{S_FLO}, s{S_FLN}"); A(f"s_add_u32 s{S_FLO}, s{S_FLO}, {rw*128}")
    A(f"s_and_b32 s{S_T2}, s{S_HG}, 1"); A(f"s_lshl_b32 s{S_T2}, s{S_T2}, 7"); A(f"s_add_u32 s{S_FLN}, s{S_FLN}, s{S_T2}")
    A(f"v_lshrrev_b32 v2, 4, {l}"); A(f"v_and_b32 v3, 15, {l}")
    A("v_lshlrev_b32 v5, 1, v2"); A("v_xor_b32 v5, v3, v5"); A("v_lshlrev_b32 v6, 10, v2")
    A(f"v_lshl_add_u32 v{V_WO4[0]}, v5, 4, v6")
    A(f"v_xor_b32 v6, 128, v{V_WO4[0]}")
    A(f"v_add_u32 v{V_WO4[1]}, 3072, v6")
    A(f"v_add_u32 v{V_WO4[2]}, 6144, v{V_WO4[0]}")
    A(f"v_add_u32 v{V_WO4[3]}, 9216, v6")
    A(f"v_and_b32 v2, 15, {l}")
    A(f"v_lshrrev_b32 v3, 4, {l}")
    A("v_lshrrev_b32 v4, 1, v2")
    A("v_xor_b32 v5, v3, v4")
    A("v_lshlrev_b32 v6, 7, v2")
    A("v_lshl_add_u32 v6, v5, 4, v6")
    A("v_lshrrev_b32 v7, 3, v2")
    A("v_lshl_add_u32 v7, v7, 10, v6")
    A(f"v_add_u32 v{V_XR}, {rw*8192}, v7")
    A(f"v_xor_b32 v{V_XR+3}, 64, v{V_XR}")
    for kk in range(2):
        for b in (1, 2): A(f"v_add_u32 v{V_XR+3*kk+b}, {b<<16}, v{V_XR+3*kk}")
    if halo:
        A(f"v_add_u32 v{V_HR}, 16384, v6")
        A(f"v_xor_b32 v{V_HR+3}, 64, v{V_HR}")
        for kk in range(2):
            for b in (1, 2): A(f"v_add_u32 v{V_HR+3*kk+b}, {b<<16}, v{V_HR+3*kk}")
    A("v_lshrrev_b32 v4, 2, v2")
    A("v_and_b32 v5, 3, v2")
    A("v_lshrrev_b32 v8, 3, v2")
    A("v_and_b32 v7, 1, v3")
    A("v_lshl_or_b32 v8, v7, 1, v8")
    A("v_lshrrev_b32 v6, 1, v3")
    A("v_lshlrev_b32 v6, 12, v6")
    A("v_lshl_add_u32 v6, v7, 11, v6")
    A("v_lshl_add_u32 v6, v4, 7, v6")
    A("v_lshl_add_u32 v6, v5, 3, v6")
    A(f"s_lshl_b32 s{S_T0}, s{S_CW}, 1")
    A(f"v_xor_b32 v7, s{S_T0}, v8")
    A(f"v_lshl_add_u32 v{V_WR}, v7, 5, v6")
    A(f"v_xor_b32 v{V_WR+3}, 32, v{V_WR}")
    for hh in range(2):
        for b in (1, 2): A(f"v_add_u32 v{V_WR+3*hh+b}, {b<<16}, v{V_WR+3*hh}")
    A(f"v_lshlrev_b32 v{V_L16}, 4, {l}")
    A(f"v_lshlrev_b32 v{V_L8}, 3, {l}")
    A(f"s_mov_b32 s{S_C}, {CSC:#x}"); A(f"s_mov_b32 s{S_NC}, {NCSC:#x}")
    A(f"s_mov_b32 s{S_L2E}, {LOG2E:#x}"); A(f"s_mov_b32 s{S_EPS}, {EPS:#x}")
    A(f"s_mov_b32 s{S_SPIN}, {SPIN}")
    for i in range(4): A(f"v_mov_b32 v{V_ONES+i}, 0x3f803f80")
    A(f"s_lshl_b32 s{S_T0}, s{S_RB}, 3")
    A(f"s_add_u32 s{S_OLD}, s{S_T0}, {br*128}")
    A(f"s_add_u32 s{S_OST}, s{S_OLD}, {4*rw}")
    A(f"s_lshl_b32 s{S_OST}, s{S_OST}, 4")
    A(f"s_add_u32 s{S_OST}, s{S_OST}, s{S_T1}")
    A(f"s_lshl_b32 s{S_OST}, s{S_OST}, 10")
    A(f"s_and_b32 s{S_T1}, s{S_HG}, 1"); A(f"s_lshl_b32 s{S_T1}, s{S_T1}, 2")
    A(f"s_add_u32 s{S_OLD}, s{S_OLD}, s{S_T1}")
    A(f"s_add_u32 s{S_OLD}, s{S_OLD}, s{S_WV}")
    A(f"s_lshl_b32 s{S_OLD}, s{S_OLD}, 14")
    A(f"s_lshl_b32 s{S_LWO}, s{S_WV}, 13")
    A(f"s_lshl_b32 s{S_T0}, s{S_CW}, 13")
    A(f"v_add_u32 v{V_XA}, s{S_T0}, v{V_L16 if br else V_L8}")
    A(f"v_add_u32 v{V_XA}, {XCH}, v{V_XA}")
    if br == 1:
        A(f"s_lshl_b32 s{S_T0}, s{S_HG}, 2")
        A(f"s_lshl_b32 s{S_T1}, s{S_CW}, 1")
        A(f"s_add_u32 s{S_T0}, s{S_T0}, s{S_T1}")
        A(f"s_add_u32 s{S_HEAD}, s{S_T0}, {rw}")
        A(f"s_lshl_b32 s{S_T0}, s{S_HEAD}, 4")
        A(f"s_add_u32 s{S_T0}, s{S_T0}, s{S_RB}")
        A(f"s_lshl_b32 s{S_KVS}, s{S_T0}, 10")
        A(f"s_add_u32 s{S_KVS}, s{S_KVS}, {WS_KV}")
        A(f"s_lshl_b32 s{S_ZS}, s{S_T0}, 6")
        A(f"s_add_u32 s{S_ZS}, s{S_ZS}, {WS_Z}")
    else:
        A(f"v_and_b32 v2, 15, {l}")
        A(f"v_lshrrev_b32 v3, 4, {l}")
        A("v_lshlrev_b32 v3, 2, v3")
        A(f"v_mov_b32 v8, {NEG:#x}")
        for r in range(4):
            A(f"v_add_u32 v4, {r}, v3")
            A("v_sub_u32 v5, v2, v4")
            A("v_cmp_gt_u32 vcc, 8, v5")
            A(f"v_mov_b32 v7, {0xffff if r % 2 == 0 else 0xffff0000:#x}")
            A(f"v_cndmask_b32 v{V_MOWN+r}, v8, 0, vcc")
            A("v_cndmask_b32 v6, 0, v7, vcc")
            if r % 2 == 0: A(f"v_mov_b32 v{V_BM + r//2}, v6")
            else: A(f"v_or_b32 v{V_BM + r//2}, v{V_BM + r//2}, v6")
            A("v_add_u32 v5, 9, v2")
            A("v_cmp_ge_u32 vcc, v4, v5")
            A(f"v_cndmask_b32 v{V_MPREV+r}, v8, 0, vcc")
            if rw == 0:
                for p in range(2):
                    A(f"v_subrev_u32 v5, {8*p}, v4")
                    A("v_cmp_gt_u32 vcc, 8, v5")
                    A("v_cmp_gt_u32 s[68:69], v5, v2")
                    A("s_and_b64 vcc, vcc, s[68:69]")
                    A(f"s_cmp_eq_u32 s{S_RB}, 0")
                    A("s_cselect_b64 vcc, 0, vcc")
                    A(f"v_cndmask_b32 v{V_MHALO+4*p+r}, v8, 0, vcc")

def pf_setup(g):
    A = g.A
    l = f"v{V_L}"
    A(f"v_and_b32 v2, 31, {l}")
    A("v_lshlrev_b32 v2, 10, v2")
    A(f"v_lshrrev_b32 v3, 5, {l}")
    A(f"v_lshl_add_u32 v{V_PF0}, v3, 7, v2")
    A(f"s_lshr_b32 s{S_PFX}, s{S_RB}, 3")
    A(f"s_lshl_b32 s{S_PFX}, s{S_PFX}, 20")
    A(f"s_lshl_b32 s{S_T0}, s{S_IDX}, 15")
    A(f"s_add_u32 s{S_PFX}, s{S_PFX}, s{S_T0}")
    A(f"s_lshl_b32 s{S_T0}, s{S_WV}, 8")
    A(f"s_add_u32 s{S_PFX}, s{S_PFX}, s{S_T0}")
    A(f"v_and_b32 v4, 15, {l}")
    A("v_lshrrev_b32 v5, 2, v4")
    A("v_and_b32 v6, 3, v4")
    A(f"v_bfe_u32 v7, {l}, 4, 1")
    A("v_mul_u32_u24 v7, 3072, v7")
    A("v_mul_u32_u24 v8, 196608, v3")
    A("v_add_u32 v7, v7, v8")
    A("v_lshl_add_u32 v7, v5, 10, v7")
    A("v_lshl_add_u32 v7, v6, 7, v7")
    A("v_cmp_gt_u32 vcc, 3, v5")
    A("v_mov_b32 v8, 0x7fffffff")
    A(f"v_cndmask_b32 v{V_PF1}, v8, v7, vcc")
    A(f"s_mul_i32 s{S_PFW}, s{S_IDX}, 6144")
    A(f"s_and_b32 s{S_T0}, s{S_XCD}, 1")
    A(f"s_lshl_b32 s{S_T0}, s{S_T0}, 9")
    A(f"s_add_u32 s{S_PFW}, s{S_PFW}, s{S_T0}")
    A(f"s_mul_i32 s{S_T0}, s{S_WV}, 393216")
    A(f"s_add_u32 s{S_PFW}, s{S_PFW}, s{S_T0}")

V_PA = 252
def pf3_setup(g):
    A = g.A
    l = f"v{V_L}"
    A(f"s_lshr_b32 s{S_T0}, s{S_RB}, 3")
    A(f"s_lshl_b32 s{S_T0}, s{S_T0}, 20")
    A(f"s_lshl_b32 s{S_T1}, s{S_IDX}, 15")
    A(f"s_add_u32 s{S_T0}, s{S_T0}, s{S_T1}")
    A(f"s_lshl_b32 s{S_T1}, s{S_WV}, 13")
    A(f"s_add_u32 s{S_T0}, s{S_T0}, s{S_T1}")
    A(f"s_add_u32 s{S_PFX}, s24, s{S_T0}"); A(f"s_addc_u32 s{S_PFX+1}, s25, 0")
    A(f"v_lshlrev_b32 v2, 10, {l}")
    A(f"v_mov_b32 v3, s{S_PFX+1}")
    A(f"v_add_co_u32 v{V_PA}, vcc, s{S_PFX}, v2")
    A(f"v_addc_co_u32 v{V_PA+1}, vcc, 0, v3, vcc")
    A(f"s_mul_i32 s{S_T0}, s{S_CW}, 6")
    A(f"v_subrev_u32 v4, 8, {l}")
    A(f"v_add_u32 v4, s{S_T0}, v4")
    A("v_lshrrev_b32 v5, 2, v4"); A("v_and_b32 v4, 3, v4")
    A("v_lshlrev_b32 v5, 10, v5"); A("v_lshl_add_u32 v4, v4, 7, v5")
    A(f"s_lshl_b32 s{S_T0}, s{S_IDX}, 1"); A(f"s_add_u32 s{S_T0}, s{S_T0}, s{S_RW}")
    A(f"s_mul_i32 s{S_T0}, s{S_T0}, 3072")
    A(f"s_and_b32 s{S_T1}, s{S_XCD}, 1"); A(f"s_lshl_b32 s{S_T1}, s{S_T1}, 9")
    A(f"s_add_u32 s{S_T0}, s{S_T0}, s{S_T1}")
    A(f"s_add_u32 s{S_PFX}, s28, s{S_T0}"); A(f"s_addc_u32 s{S_PFX+1}, s29, 0")
    A(f"v_mov_b32 v3, s{S_PFX+1}")
    A(f"v_add_co_u32 v4, vcc, s{S_PFX}, v4")
    A("v_addc_co_u32 v5, vcc, 0, v3, vcc")
    A(f"v_cmp_gt_u32 vcc, 8, {l}")
    A(f"v_cndmask_b32 v{V_PA}, v4, v{V_PA}, vcc")
    A(f"v_cndmask_b32 v{V_PA+1}, v5, v{V_PA+1}, vcc")
    A("v_mov_b32 v4, 196608"); A("v_mov_b32 v5, 128")
    A(f"v_cndmask_b32 v{V_PA+2}, v4, v5, vcc")
    for _ in range(g.opt.pf_first):
        A(f"v_add_co_u32 v{V_PA}, vcc, v{V_PA}, v{V_PA+2}")
        A(f"v_addc_co_u32 v{V_PA+1}, vcc, 0, v{V_PA+1}, vcc")
def pf3_item():
    return ("vm", "pf", ["s_mov_b64 exec, 0x3fff", f"global_load_dword v{V_PA+3}, v[{V_PA}:{V_PA+1}], off{PFPOL}", "s_mov_b64 exec, -1",
                         f"v_add_co_u32 v{V_PA}, vcc, v{V_PA}, v{V_PA+2}", f"v_addc_co_u32 v{V_PA+1}, vcc, 0, v{V_PA+1}, vcc"])

def pf4_pre(g):
    A = g.A
    l = f"v{V_L}"
    A(f"s_lshr_b32 s{S_T0}, s{S_RB}, 3")
    A(f"s_lshl_b32 s{S_T0}, s{S_T0}, 20")
    A(f"s_lshl_b32 s{S_T1}, s{S_IDX}, 15")
    A(f"s_add_u32 s{S_T0}, s{S_T0}, s{S_T1}")
    A(f"s_lshl_b32 s{S_T1}, s{S_WV}, 13")
    A(f"s_add_u32 s{S_T0}, s{S_T0}, s{S_T1}")
    A(f"v_lshlrev_b32 v2, 10, {l}")
    A(f"v_add_u32 v2, s{S_T0}, v2")
    A(f"s_lshl_b32 s{S_T0}, s{S_IDX}, 1"); A(f"s_add_u32 s{S_T0}, s{S_T0}, s{S_RW}")
    A(f"s_mul_i32 s{S_T0}, s{S_T0}, 3072")
    A(f"s_and_b32 s{S_T1}, s{S_XCD}, 1"); A(f"s_lshl_b32 s{S_T1}, s{S_T1}, 9")
    A(f"s_add_u32 s{S_T0}, s{S_T0}, s{S_T1}")
    A(f"s_lshl_b32 s{S_T1}, s{S_CW}, 10"); A(f"s_add_u32 s{S_T0}, s{S_T0}, s{S_T1}")
    A(f"s_add_u32 s{S_T0}, s{S_T0}, {1024 - 8*128}")
    A(f"v_lshlrev_b32 v3, 7, {l}")
    A(f"v_add_u32 v3, s{S_T0}, v3")
    A(f"v_cmp_gt_u32 s[68:69], 8, {l}")
    A("v_mov_b32 v4, 196608"); A("v_mov_b32 v5, 128")
    A(f"v_cndmask_b32 v{V_PA+2}, v4, v5, s[68:69]")
    A(f"v_cndmask_b32 v{V_PA}, v3, v2, s[68:69]")
    for _ in range(g.opt.pf_first): A(f"v_add_u32 v{V_PA}, v{V_PA}, v{V_PA+2}")
def pf4_post(g):
    A = g.A
    A("v_mov_b32 v2, s28"); A("v_mov_b32 v3, s29"); A("v_mov_b32 v4, s24"); A("v_mov_b32 v5, s25")
    A("v_cndmask_b32 v2, v2, v4, s[68:69]"); A("v_cndmask_b32 v3, v3, v5, s[68:69]")
    A(f"v_add_co_u32 v{V_PA}, vcc, v{V_PA}, v2")
    A(f"v_addc_co_u32 v{V_PA+1}, vcc, 0, v3, vcc")
def pf4_item():
    return ("vm", "pf", ["s_mov_b64 exec, 0xfff", f"global_load_dword v{V_PA+3}, v[{V_PA}:{V_PA+1}], off{PFPOL}", "s_mov_b64 exec, -1",
                         f"v_add_co_u32 v{V_PA}, vcc, v{V_PA}, v{V_PA+2}", f"v_addc_co_u32 v{V_PA+1}, vcc, 0, v{V_PA+1}, vcc"])

def acc(Tl, hh, kv): return V_ACC + ((Tl * 2 + hh) * 2 + kv) * 4
def xf(Tl, ks): return (Tl * 16 + ks) * 4

def kv_reads(ks, halo):
    c = ks >> 1; kk = ks & 1; st = (c % 4) * STAGE; buf = ks & 1
    w = []
    for hh in range(2):
        for seg in range(2):
            for t in range(2):
                reg, off = ldsaddr(V_WR + 3*hh, st + WOFF + kk*8192 + seg*1024 + t*512)
                d = V_WF + buf*16 + (hh*2 + seg)*4 + t*2
                w.append(("lds", ("w", ks, hh, seg), f"ds_read_b64_tr_b16 v[{d}:{d+1}], {reg} offset:{off}"))
    xr = []
    for Tl in range(4):
        reg, off = ldsaddr(V_XR + 3*kk, st + (Tl >> 1)*4096 + (Tl & 1)*1024)
        xr.append(("lds", ("x", ks, Tl), f"ds_read_b128 {vr(xf(Tl, ks), 4, 'a')}, {reg} offset:{off}"))
    if halo:
        reg, off = ldsaddr(V_HR + 3*kk, st)
        xr.append(("lds", ("x", ks, 4), f"ds_read_b128 {vr(V_HF + buf*4)}, {reg} offset:{off}"))
    return [xr[0]] + w + xr[1:]

def kv_mfmas(ks, br, rw):
    buf = ks & 1
    out = []
    for Tl in range(4):
        for hh in range(2):
            for seg in range(2):
                w = vr(V_WF + buf*16 + (hh*2 + seg)*4)
                x = vr(xf(Tl, ks), 4, "a")
                d = vr(acc(Tl, hh, seg))
                c = "0" if ks == 0 else d
                a, b = (w, x) if (br == 0 and seg == 0) else (x, w)
                out.append((f"v_mfma_f32_16x16x32_bf16 {d}, {a}, {b}, {c}", [("x", ks, Tl), ("w", ks, hh, seg)]))
    if br == 0:
        for hh in range(2):
            seg = rw
            w = vr(V_WF + buf*16 + (hh*2 + seg)*4)
            x = vr(V_HF + buf*4)
            d = vr(V_HACC + hh*4)
            c = "0" if ks == 0 else d
            a, b = (w, x) if seg == 0 else (x, w)
            out.append((f"v_mfma_f32_16x16x32_bf16 {d}, {a}, {b}, {c}", [("x", ks, 4)]))
    return out

def q_read(hh, ks, slot):
    st = ((8 + (ks >> 3)) % 4) * STAGE
    cq = (ks >> 1) & 3; kk = ks & 1
    out = []
    for t in range(2):
        reg, off = ldsaddr(V_WR + 3*hh, st + (cq >> 1)*16384 + (cq & 1)*1024 + kk*8192 + t*512)
        d = V_WF + slot*4 + t*2
        out.append(("lds", ("q", hh, ks), f"ds_read_b64_tr_b16 v[{d}:{d+1}], {reg} offset:{off}"))
    return out

def phi_list(regs, tmp):
    out = []
    for i, r in enumerate(regs): out.append(f"v_mul_f32 v{tmp+i}, s{S_L2E}, v{r}")
    for i, r in enumerate(regs):
        out.append(f"v_exp_f32 v{tmp+i}, v{tmp+i} clamp")
        out.append(f"v_max_f32 v{r}, s{S_EPS}, v{r}")
    for i, r in enumerate(regs): out.append(f"v_add_f32 v{r}, v{r}, v{tmp+i}")
    return out

def npf_left(opt, c):
    return opt.pf_first + opt.pf_init + 1 + c < 8

def phase1_path(g, br, rw):
    A = g.A
    opt = g.opt
    halo = (br == 0)
    tag = f"{br}{rw}"
    g.vm = VM(); g.lds = []
    if opt.pf == 4:
        for it in chunk_dmas(g, 0, halo): g.emit(it)
        pf4_post(g)
        for _ in range(opt.pf_init): g.emit(pf4_item())
    else:
        for c in range(2):
            for it in chunk_dmas(g, c, halo): g.emit(it)
    g.stamp(1)
    if opt.pf == 3:
        pf3_setup(g)
        for _ in range(opt.pf_init): g.emit(pf3_item())
    if opt.warmcode:
        A("s_getpc_b64 s[68:69]")
        g.label(f"L_wc_{tag}")
        A(f"s_lshl_b32 s{S_T0}, s{S_CW}, 13")
        A(f"v_lshlrev_b32 v2, 7, v{V_L}")
        A(f"v_add_u32 v3, s{S_T0}, v2")
        A(f"v_min_u32 v3, L_end-L_wc_{tag}, v3")
        g.emit(("vm", "pf", [f"global_load_dword v{V_PF0}, v3, s[68:69]"]))
        A(f"v_add_u32 v3, L_phase2-L_wc_{tag}, v2")
        A(f"v_min_u32 v3, L_end-L_wc_{tag}, v3")
        g.emit(("vm", "pf", [f"global_load_dword v{V_PF1}, v3, s[68:69]"]))
    if opt.pf == 4:
        for it in chunk_dmas(g, 1, halo): g.emit(it)
    setup2(g, br, rw)
    if opt.pf in (1, 2): pf_setup(g)
    npf = opt.pf_first
    if opt.pre3:
        for it in chunk_dmas(g, 2, halo): g.emit(it)
    g.vmwait(("c", 0))
    A("s_barrier")
    g.stamp(2)
    for it in kv_reads(0, halo): g.emit(it)
    dq = []
    if not opt.pre3: dq += chunk_dmas(g, 2, halo)
    dq += chunk_dmas(g, 3, halo)
    pfi = [("vm", "pf", [f"buffer_load_dword v{V_PF0}, v{V_PF0}, {sX}, s{S_PFX} offen{PFPOL}"]),
           ("vm", "pf", [f"buffer_load_dword v{V_PF1}, v{V_PF1}, {sW}, s{S_PFW} offen{PFPOL}"])]
    if opt.pf == 3 and opt.pf_first + opt.pf_init < 8: dq.insert(0, pf3_item())
    if opt.pf == 4 and opt.pf_first + opt.pf_init < 8: dq.insert(opt.pf_pos, pf4_item())
    if opt.pf == 1: dq = pfi + dq
    if opt.pf == 2: dq = dq[:9] + pfi + dq[9:]
    for ks in range(16):
        c = ks >> 1
        mf = kv_mfmas(ks, br, rw)
        ev = opt.dma_every if len(dq) <= 10 else opt.dma_fast
        if ks & 1:
            run_slots(g, mf[:opt.bar_after], [], dma=dq, dma_every=ev, dma_phase=1)
            while dq and (dq[0][1] == "pf" or dq[0][1][1] <= c + 1): g.emit(dq.pop(0))
            g.ldsall()
            g.vmwait(("c", c + 1))
            A("s_barrier")
            g.stamp(3 + c, kv=True)
            rd = kv_reads(ks + 1, halo) if ks < 15 else q_read(0, 0, 0) + q_read(0, 1, 1) + q_read(0, 2, 2)
            nc = c + 4
            if c + 1 == opt.wo_at:
                dq.insert(0, ("vm", "pf", [f"v_lshrrev_b32 v2, 2, v{V_L}", "v_lshlrev_b32 v2, 10, v2", f"v_and_b32 v3, 3, v{V_L}",
                    "v_lshl_add_u32 v2, v3, 7, v2",
                    f"s_lshl_b32 s{S_T0}, s{S_IDX}, 14", f"s_lshl_b32 s{S_T1}, s{S_WV}, 12", f"s_add_u32 s{S_T0}, s{S_T0}, s{S_T1}",
                    f"s_and_b32 s{S_T1}, s{S_XCD}, 1", f"s_lshl_b32 s{S_T1}, s{S_T1}, 9", f"s_add_u32 s{S_T0}, s{S_T0}, s{S_T1}",
                    "s_mov_b64 exec, 0xffff", f"buffer_load_dword v{V_WO}, v2, {sWO}, s{S_T0} offen{PFPOL}", "s_mov_b64 exec, -1"]))
            if c + 1 == opt.wc_at:
                dq.insert(0, ("vm", "pf", ["s_getpc_b64 s[68:69]", f"L_wc_{tag}:", f"v_lshlrev_b32 v2, 7, v{V_L}",
                    f"s_lshl_b32 s{S_T0}, s{S_CW}, 13", f"v_add_u32 v2, s{S_T0}, v2",
                    f"v_add_u32 v3, L_q_{tag}-L_wc_{tag}, v2", f"v_add_u32 v2, {'L_phase2-L_wc_' + tag}-8192, v2",
                    f"s_cmp_eq_u32 s{S_CW}, 0", "s_cselect_b64 vcc, -1, 0", "v_cndmask_b32 v3, v2, v3, vcc",
                    f"v_min_u32 v3, L_end-L_wc_{tag}, v3",
                    f"global_load_dword v{V_PF0}, v3, s[68:69]"]))
            if opt.pf == 3 and npf_left(opt, c): dq.insert(0, pf3_item())
            if nc < 12: dq += chunk_dmas(g, nc, halo)
            if opt.pf == 4 and npf_left(opt, c): dq.insert(min(opt.pf_pos, len(dq)), pf4_item())
            run_slots(g, mf[opt.bar_after:], [rd], cap=opt.cap, dma=dq, dma_every=ev, dma_phase=ev - 1)
            for it in rd: g.emit(it)
        else:
            rd = kv_reads(ks + 1, halo)
            run_slots(g, mf, [rd], cap=opt.cap_even, dma=dq, dma_every=ev, dma_phase=ev - 1)
            for it in rd: g.emit(it)
    g.stamp(3)
    g.label(f"L_q_{tag}")
    S1 = []; P = S1.append
    if br == 0:
        order = [2, 3, 0, 1] if rw == 0 else [0, 1, 2, 3]
        if rw == 1:
            for hh in range(2):
                h = V_HACC + hh*4
                P(f"v_cvt_pk_bf16_f32 v{4+hh*2}, v{h}, v{h+1}"); P(f"v_cvt_pk_bf16_f32 v{5+hh*2}, v{h+2}, v{h+3}")
                P(("lds", "xw", f"ds_write_b64 v{V_XA}, v[{4+hh*2}:{5+hh*2}] offset:{4096 + hh*512}"))
        for Tl in order:
            for hh in range(2):
                k = acc(Tl, hh, 0); v = acc(Tl, hh, 1)
                kp = V_KP + (Tl*2 + hh)*2
                vp = V_VP + ((Tl & 1)*2 + hh)*6 + 2 + (Tl >> 1)*2
                P(f"v_cvt_pk_bf16_f32 v{kp}, v{k}, v{k+1}"); P(f"v_cvt_pk_bf16_f32 v{kp+1}, v{k+2}, v{k+3}")
                P(f"v_cvt_pk_bf16_f32 v{vp}, v{v}, v{v+1}"); P(f"v_cvt_pk_bf16_f32 v{vp+1}, v{v+2}, v{v+3}")
                if rw == 0 and Tl >= 2:
                    p = Tl & 1
                    P(("lds", "xw", f"ds_write_b64 v{V_XA}, v[{kp}:{kp+1}] offset:{(p*2+hh)*1024}"))
                    P(("lds", "xw", f"ds_write_b64 v{V_XA}, v[{vp}:{vp+1}] offset:{(p*2+hh)*1024+512}"))
        if rw == 0:
            for hh in range(2):
                h = V_HACC + hh*4
                P(f"v_cvt_pk_bf16_f32 v{V_KPREV+hh*2}, v{h}, v{h+1}"); P(f"v_cvt_pk_bf16_f32 v{V_KPREV+hh*2+1}, v{h+2}, v{h+3}")
        S1b = []
        for p in range(2):
            for hh in range(2):
                vp = V_VP + (p*2 + hh)*6
                if rw == 0:
                    S1b.append(("lds", "xr", f"ds_read_b64 v[{vp}:{vp+1}], v{V_XA} offset:{4096 + hh*512}"))
                else:
                    kp = V_KPREV + (p*2 + hh)*2
                    S1b.append(("lds", "xr", f"ds_read_b64 v[{kp}:{kp+1}], v{V_XA} offset:{(p*2+hh)*1024}"))
                    S1b.append(("lds", "xr", f"ds_read_b64 v[{vp}:{vp+1}], v{V_XA} offset:{(p*2+hh)*1024+512}"))
    else:
        PK, VV = V_VP, V_VP + 16
        TMP = V_QACC + 16
        KVR = V_HACC; KVO = V_HF
        oth = 1 - rw
        for hh in (oth, rw):
            regs = [acc(Tl, hh, 0) + r for Tl in range(4) for r in range(4)]
            S1 += phi_list(regs, TMP)
            for Tl in range(4):
                k = acc(Tl, hh, 0); v = acc(Tl, hh, 1)
                P(f"v_cvt_pk_bf16_f32 v{PK+hh*8+Tl*2}, v{k}, v{k+1}"); P(f"v_cvt_pk_bf16_f32 v{PK+hh*8+Tl*2+1}, v{k+2}, v{k+3}")
                P(f"v_cvt_pk_bf16_f32 v{VV+hh*8+Tl*2}, v{v}, v{v+1}"); P(f"v_cvt_pk_bf16_f32 v{VV+hh*8+Tl*2+1}, v{v+2}, v{v+3}")
            R = KVR if hh == rw else KVO
            d = vr(R); z = vr(R + 4)
            P(f"v_mfma_f32_16x16x32_bf16 {d}, {vr(PK+hh*8)}, {vr(VV+hh*8)}, 0")
            P(f"v_mfma_f32_16x16x32_bf16 {z}, {vr(PK+hh*8)}, {vr(V_ONES)}, 0")
            P(f"v_mfma_f32_16x16x32_bf16 {d}, {vr(PK+hh*8+4)}, {vr(VV+hh*8+4)}, {d}")
            P(f"v_mfma_f32_16x16x32_bf16 {z}, {vr(PK+hh*8+4)}, {vr(V_ONES)}, {z}")
            if hh == oth: wr_pos = len(S1) + 12
        S1.insert(wr_pos, ("lds", "xw", f"ds_write_b128 v{V_XA}, {vr(KVO)} offset:{rw*2048}"))
        S1.insert(wr_pos + 1, ("lds", "xw", f"ds_write_b128 v{V_XA}, {vr(KVO+4)} offset:{rw*2048+1024}"))
        S1b = [("lds", "xr", f"ds_read_b128 {vr(V_ACC)}, v{V_XA} offset:{oth*2048}"),
               ("lds", "xr", f"ds_read_b128 {vr(V_ACC+4)}, v{V_XA} offset:{oth*2048+1024}"),
               f"s_add_u32 s{S_TAG}, s{S_EK}, 1", f"s_and_b32 s{S_TAG}, s{S_TAG}, 0x7f", f"s_or_b32 s{S_TAG}, s{S_TAG}, 0x80",
               f"v_mov_b32 v4, s{S_TAG}", "v_mov_b32 v5, 0xff",
               f"v_lshrrev_b32 v3, 4, v{V_L}", "v_lshlrev_b32 v3, 4, v3",
               ("need", "xr")]
        for r in range(8): S1b.append(f"v_add_f32 v{KVR+r}, v{KVR+r}, v{V_ACC+r}")
        for r in range(8): S1b.append(f"v_bfi_b32 v{KVR+r}, v5, v4, v{KVR+r}")
        S1b.append(("vm", "kvst", [f"buffer_store_dwordx4 {vr(KVR)}, v{V_L16}, {sWS}, s{S_KVS} offen sc1"]))
        S1b.append(("vm", "kvst", ["s_mov_b32 s68, 0x00010001", "s_mov_b32 s69, 0x00010001", "s_mov_b64 exec, s[68:69]",
                    f"buffer_store_dwordx4 {vr(KVR+4)}, v3, {sWS}, s{S_ZS} offen sc1", "s_mov_b64 exec, -1"]))
        S1b.append(("stamp", 4))
    OUTR = V_ACC + 48
    def attention(hh):
        o_ = []; P = o_.append
        U = lambda u: V_ACC + 12*u
        QP = V_HACC
        for u in range(4):
            q = V_QACC + (hh*4 + u)*4
            P(f"v_cvt_pk_bf16_f32 v{QP+2*u}, v{q}, v{q+1}"); P(f"v_cvt_pk_bf16_f32 v{QP+2*u+1}, v{q+2}, v{q+3}")
        P(("need", "xr"))
        for u in range(4):
            tl, p = u >> 1, u & 1
            ko = V_KP + (u*2 + hh)*2
            if tl == 1: kpv, mp = V_KP + ((u-2)*2 + hh)*2, V_MPREV
            elif rw == 1: kpv, mp = V_KPREV + (p*2 + hh)*2, V_MPREV
            else: kpv, mp = V_KPREV + hh*2, V_MHALO + 4*p
            P(f"v_mfma_f32_16x16x16_bf16 {vr(U(u))}, v[{ko}:{ko+1}], v[{QP+2*u}:{QP+2*u+1}], {vr(V_MOWN)}")
            P(f"v_mfma_f32_16x16x16_bf16 {vr(U(u)+4)}, v[{kpv}:{kpv+1}], v[{QP+2*u}:{QP+2*u+1}], {vr(mp)}")
        for u in range(4):
            for r in range(4): P(f"v_max_f32 v{U(u)+r}, v{U(u)+r}, v{U(u)+4+r}")
        for u in range(4): P(f"v_max3_f32 v{U(u)+4}, v{U(u)}, v{U(u)+1}, v{U(u)+2}")
        for u in range(4): P(f"v_max_f32 v{U(u)+4}, v{U(u)+4}, v{U(u)+3}")
        for sw in ("v_permlane32_swap_b32", "v_permlane16_swap_b32"):
            for u in range(4): P(f"v_mov_b32 v{U(u)+5}, v{U(u)+4}")
            for u in range(4): P(f"{sw} v{U(u)+4}, v{U(u)+5}")
            for u in range(4): P(f"v_max_f32 v{U(u)+4}, v{U(u)+4}, v{U(u)+5}")
        for u in range(4): P(f"v_mul_f32 v{U(u)+4}, s{S_NC}, v{U(u)+4}")
        for u in range(4):
            for r in range(4): P(f"v_fma_f32 v{U(u)+r}, v{U(u)+r}, s{S_C}, v{U(u)+4}")
        for u in range(4):
            for r in range(4): P(f"v_exp_f32 v{U(u)+r}, v{U(u)+r}")
        for u in range(4):
            P(f"v_cvt_pk_bf16_f32 v{U(u)+4}, v{U(u)}, v{U(u)+1}"); P(f"v_cvt_pk_bf16_f32 v{U(u)+5}, v{U(u)+2}, v{U(u)+3}")
        for u in range(4):
            P(f"v_and_b32 v{U(u)+10}, v{U(u)+4}, v{V_BM}"); P(f"v_and_b32 v{U(u)+11}, v{U(u)+5}, v{V_BM+1}")
            P(f"v_xor_b32 v{U(u)+8}, v{U(u)+4}, v{U(u)+10}"); P(f"v_xor_b32 v{U(u)+9}, v{U(u)+5}, v{U(u)+11}")
        for u in range(4):
            q = V_QACC + (hh*4 + u)*4
            P(f"v_mfma_f32_16x16x16_bf16 {vr(q)}, v[{V_ONES}:{V_ONES+1}], v[{U(u)+4}:{U(u)+5}], 0")
        for u in range(4):
            tl, p = u >> 1, u & 1
            vp = V_VP + (p*2 + hh)*6 + 2*tl
            P(f"v_mfma_f32_16x16x32_bf16 {vr(U(u))}, {vr(vp)}, {vr(U(u)+8)}, 0")
        for u in range(4):
            q = V_QACC + (hh*4 + u)*4
            P(f"v_rcp_f32 v{q}, v{q}")
        for u in range(4):
            q = V_QACC + (hh*4 + u)*4
            for r in range(4): P(f"v_mul_f32 v{U(u)+r}, v{U(u)+r}, v{q}")
        for u in range(4):
            o = OUTR + u*4 + hh*2
            P(f"v_cvt_pk_bf16_f32 v{o}, v{U(u)}, v{U(u)+1}"); P(f"v_cvt_pk_bf16_f32 v{o+1}, v{U(u)+2}, v{U(u)+3}")
        return o_
    PQ = V_KP
    def phi_q(hh, tmp):
        o_ = phi_list([V_QACC + hh*16 + i for i in range(16)], tmp)
        for Tl in range(4):
            q = V_QACC + (hh*4 + Tl)*4
            o_.append(f"v_cvt_pk_bf16_f32 v{PQ+hh*8+Tl*2}, v{q}, v{q+1}"); o_.append(f"v_cvt_pk_bf16_f32 v{PQ+hh*8+Tl*2+1}, v{q+2}, v{q+3}")
        return o_
    PB = V_ACC
    def gather_items():
        it = []
        for j in range(16):
            pre = [f"s_add_u32 s{S_T2}, s{S_T0}, {j*1024}"] if j % 4 == 0 else []
            it.append(("vm", ("gat", j), pre + [f"buffer_load_dwordx4 {vr(PB+4*j)}, v{V_L16}, {sWS}, s{S_T2} offen offset:{(j%4)*1024} sc1"]))
        it.append(("vm", ("gat", 16), [f"buffer_load_dwordx4 {vr(V_HACC)}, v3, {sWS}, s{S_T1} offen sc1"]))
        return it
    gat_setup = [f"s_lshl_b32 s{S_T0}, s{S_HEAD}, 14", f"s_add_u32 s{S_T0}, s{S_T0}, {WS_KV}",
                 f"s_lshl_b32 s{S_T1}, s{S_HEAD}, 10", f"s_add_u32 s{S_T1}, s{S_T1}, {WS_Z}",
                 f"v_and_b32 v3, 15, v{V_L}", "v_lshlrev_b32 v3, 6, v3",
                 f"v_lshrrev_b32 v4, 4, v{V_L}", "v_lshl_add_u32 v3, v4, 4, v3"]
    S2 = attention(0) if br == 0 else phi_q(0, V_VP)

    seq = [(hh, ks) for hh in range(2) for ks in range(16)]
    PRE = 3
    B9 = 8 - PRE
    side = list(S1)
    sync_done = False
    capA = -(-sum(cost(x) for x in S1) // (4 * B9)) + 1
    gq = []
    for n, (hh, ks) in enumerate(seq):
        slot = n % 8
        if n == 16:
            for it in side: g.emit(it)
            side = list(S2)
        if n == B9:
            if br == 0:
                for it in side: g.emit(it)
                side = list(S1b)
            while dq and dq[0][1][1] <= 9: g.emit(dq.pop(0))
            g.ldsall()
            g.vmwait(("c", 9))
            A("s_barrier")
        if br == 1 and not sync_done and ((not side and (n > B9 or opt.early_sync)) or n == 15):
            for it in side: g.emit(it)
            g.ldsall()
            A("s_barrier")
            side = list(S1b); sync_done = True
        if br == 1 and n == opt.gat_at:
            for it in side: g.emit(it)
            side = []
            for it in gat_setup: g.emit(it)
            gq = gather_items()
        rd = q_read(*seq[n + PRE], (n + PRE) % 8) if n + PRE < len(seq) else []
        mf = []
        for Tl in range(4):
            d = vr(V_QACC + (hh*4 + Tl)*4)
            c = "0" if ks == 0 else d
            mf.append((f"v_mfma_f32_16x16x32_bf16 {d}, {vr(V_WF + slot*4)}, {vr(xf(Tl, ks), 4, 'a')}, {c}", [("q", hh, ks)]))
        cap = (capA if br == 0 else opt.b_cap) if n < 16 else opt.cap2
        if gq: run_slots(g, mf, [rd, side], cap=cap, dma=gq, dma_every=opt.gat_every, dma_phase=0)
        else: run_slots(g, mf, [rd, side], cap=cap, dma=dq, dma_every=4, dma_phase=3)
        for it in rd: g.emit(it)
    for it in side: g.emit(it)
    for it in dq: g.emit(it)
    for it in gq: g.emit(it)
    gq = []
    g.stamp(5)
    if opt.d2late:
        d2 = []
    else:
        g.ldsall()
        g.vmwait(("c", 11))
        A("s_barrier")
        d2 = chunk_dmas(g, 12, False) + chunk_dmas(g, 13, False)
    def with_dma(items, every):
        k = 0
        for it in items:
            g.emit(it); k += 1
            if k % every == 0 and d2: g.emit(d2.pop(0))
    def spin_guard(lbl_out):
        A(f"s_sub_u32 s{S_SPIN}, s{S_SPIN}, 1")
        A(f"s_cbranch_scc1 {lbl_out}")
    if br == 0:
        with_dma(attention(1), 9)
        for it in d2: g.emit(it)
    else:
        if opt.gat_at >= 32:
            for it in gat_setup: g.emit(it)
            for it in gather_items(): g.emit(it)
        A(f"v_mov_b32 v6, s{S_TAG}")
        with_dma(phi_q(1, V_WF), 9)
        g.stamp(6)
        SUM = V_WF + 16
        def chk_sum(first):
            for j in range(16):
                if first: g.vmwait(("gat", j))
                b = PB + 4*j
                for r in range(4):
                    a_ = "0" if (j == 0 and r < 2) else f"v{4+(r&1)}"
                    A(f"v_msad_u8 v{4+(r&1)}, v{b+r}, v6, {a_}")
                for r in range(4):
                    if j == 0: A(f"v_mov_b32 v{SUM+r}, v{b+r}")
                    else: A(f"v_add_f32 v{SUM+r}, v{SUM+r}, v{b+r}")
                if first and d2 and j % 2 == 1: g.emit(d2.pop(0))
            if first: g.vmwait(("gat", 16))
            for r in range(4): A(f"v_msad_u8 v{4+(r&1)}, v{V_HACC+r}, v6, v{4+(r&1)}")
            A("v_or_b32 v4, v4, v5")
            A("v_cmp_ne_u32 vcc, 0, v4")
        chk_sum(True)
        for it in d2: g.emit(it)
        A(f"s_cbranch_vccz L_kvok_{tag}")
        g.label(f"L_kvretry_{tag}")
        spin_guard(f"L_kvok_{tag}")
        A(f"s_sleep {opt.kv_sleep}")
        sv = g.vm; g.vm = VM()
        for it in gather_items(): g.emit(it)
        g.vm = sv
        A("s_waitcnt vmcnt(0)")
        chk_sum(False)
        A(f"s_cbranch_vccnz L_kvretry_{tag}")
        g.label(f"L_kvok_{tag}")
        g.stamp(7)
        for rot in (8, 4, 2, 1):
            for r in range(4):
                A(f"v_add_f32_dpp v{V_HACC+r}, v{V_HACC+r}, v{V_HACC+r} row_ror:{rot} row_mask:0xf bank_mask:0xf")
        KZ = V_WF
        A(f"v_cvt_pk_bf16_f32 v{KZ+rw*4}, v{SUM}, v{SUM+1}"); A(f"v_cvt_pk_bf16_f32 v{KZ+rw*4+1}, v{SUM+2}, v{SUM+3}")
        A(f"v_cvt_pk_bf16_f32 v{KZ+rw*4+2}, v{V_HACC}, v{V_HACC+1}"); A(f"v_cvt_pk_bf16_f32 v{KZ+rw*4+3}, v{V_HACC+2}, v{V_HACC+3}")
        A(f"ds_write_b128 v{V_XA}, {vr(KZ+rw*4)} offset:{4096 + rw*1024}")
        NUM = V_ACC; DEN = V_QACC
        def omf(hh):
            for Tl in range(4):
                u = hh*4 + Tl; pq = PQ + hh*8 + Tl*2
                A(f"v_mfma_f32_16x16x16_bf16 {vr(DEN+4*u)}, v[{KZ+hh*4+2}:{KZ+hh*4+3}], v[{pq}:{pq+1}], 0")
                A(f"v_mfma_f32_16x16x16_bf16 {vr(NUM+4*u)}, v[{KZ+hh*4}:{KZ+hh*4+1}], v[{pq}:{pq+1}], 0")
        def ofin(us):
            for u in us: A(f"v_add_f32 v{DEN+4*u}, s{S_EPS}, v{DEN+4*u}")
            for u in us: A(f"v_rcp_f32 v{DEN+4*u}, v{DEN+4*u}")
            for u in us:
                for r in range(4): A(f"v_mul_f32 v{NUM+4*u+r}, v{NUM+4*u+r}, v{DEN+4*u}")
            for u in us:
                hh, Tl = u >> 2, u & 3
                o = OUTR + Tl*4 + hh*2
                A(f"v_cvt_pk_bf16_f32 v{o}, v{NUM+4*u}, v{NUM+4*u+1}"); A(f"v_cvt_pk_bf16_f32 v{o+1}, v{NUM+4*u+2}, v{NUM+4*u+3}")
        omf(rw)
        A("s_waitcnt lgkmcnt(0)")
        A("s_barrier")
        A(f"ds_read_b128 {vr(KZ+(1-rw)*4)}, v{V_XA} offset:{4096 + (1-rw)*1024}")
        ofin([rw*4 + i for i in range(4)])
        A("s_waitcnt lgkmcnt(0)")
        omf(1 - rw)
        if rw == 0:
            A(f"s_or_b32 s{S_T2}, s{S_RB}, s{S_CW}")
            A(f"s_cmp_lg_u32 s{S_T2}, 0")
            A(f"s_cbranch_scc1 L_nobk_{tag}")
            A(f"s_add_u32 s{S_T2}, s{S_EK}, 1")
            A(f"v_mov_b32 v4, s{S_T2}"); A("v_mov_b32 v5, 0")
            A("s_mov_b64 exec, 1")
            A(f"buffer_store_dword v4, v5, {sWS}, s{S_EKA} offen sc1")
            A("s_mov_b64 exec, -1")
            g.label(f"L_nobk_{tag}")
        ofin([(1-rw)*4 + i for i in range(4)])
    for Tl in range(4):
        A(f"s_add_u32 s{S_T2}, s{S_OST}, {Tl*16384}")
        A(f"buffer_store_dwordx4 {vr(OUTR+4*Tl)}, v{V_L16}, {sWS}, s{S_T2} offen sc1")
    g.stamp(8)
    A("s_branch L_phase2")

def phase2(g):
    A = g.A
    opt = g.opt
    g.label("L_phase2")
    g.lds = []; g.vm = VM()
    OF = 64; ACC = 128; VR0 = 20
    l = f"v{V_L}"
    A(f"v_and_b32 v2, 15, {l}"); A(f"v_lshrrev_b32 v3, 4, {l}")
    A("v_lshrrev_b32 v4, 2, v2"); A("v_and_b32 v5, 3, v2")
    A("v_lshl_add_u32 v6, v3, 2, v4")
    A("v_and_b32 v7, 7, v6")
    A("v_lshlrev_b32 v6, 8, v6"); A("v_lshl_add_u32 v6, v5, 3, v6"); A("v_lshl_add_u32 v6, v7, 5, v6")
    for c in range(8):
        A(f"v_xor_b32 v{VR0+2*c}, {c*32}, v6")
        A(f"v_add_u32 v{VR0+2*c+1}, 65536, v{VR0+2*c}")
    NV = opt.p2_nv
    def freg(hp, c):
        if hp < 8: return ("a", (hp*8 + c)*4)
        if hp < 8 + NV: return ("v", 160 + ((hp - 8)*8 + c)*4)
        return ("a", ((hp - 8 - NV)*8 + c)*4)
    def rd(hp, c):
        out = []
        k_, a = freg(hp, c)
        for t in range(2):
            const = WOB[hp >> 2] + (hp & 3)*8192 + t*4096
            out.append(("lds", ("o", hp, c), f"ds_read_b64_tr_b16 {k_}[{a+2*t}:{a+2*t+1}], v{VR0 + 2*c + (const >> 16)} offset:{const & 0xffff}"))
        return out
    def preload(hps):
        for hp in hps:
            for c in range(8):
                for it in rd(hp, c): g.emit(it)
                if len(g.lds) >= 12: g.need(g.lds[3])
    A(f"s_add_u32 s{S_T0}, s{S_EO}, 1")
    A(f"v_mov_b32 v6, s{S_T0}"); A(f"v_mov_b32 v7, s{S_EO+1}")
    A("v_mov_b32 v5, 0")
    A("v_lshlrev_b32 v8, 3, v2")
    A("v_lshlrev_b32 v2, 12, v2")
    A("v_and_b32 v4, 1, v3"); A("v_lshl_add_u32 v2, v4, 5, v2")
    A("v_lshrrev_b32 v4, 1, v3"); A("v_lshl_add_u32 v2, v4, 4, v2")
    A(f"s_lshl_b32 s{S_XB}, s{S_RB}, 18")
    A(f"s_and_b32 s{S_T1}, s{S_HG}, 1"); A(f"s_lshl_b32 s{S_T1}, s{S_T1}, 17"); A(f"s_add_u32 s{S_XB}, s{S_XB}, s{S_T1}")
    A(f"s_lshl_b32 s{S_T1}, s{S_RW}, 16"); A(f"s_add_u32 s{S_XB}, s{S_XB}, s{S_T1}")
    A(f"s_lshl_b32 s{S_T1}, s{S_CW}, 11"); A(f"s_add_u32 s{S_XB}, s{S_XB}, s{S_T1}")
    A(f"s_lshl_b32 s{S_T1}, s{S_BR}, 10"); A(f"s_add_u32 s{S_XB}, s{S_XB}, s{S_T1}")
    A(f"s_lshr_b32 s{S_T1}, s{S_HG}, 1"); A(f"s_lshl_b32 s{S_T1}, s{S_T1}, 8"); A(f"s_add_u32 s{S_XB}, s{S_XB}, s{S_T1}")
    if opt.d2late:
        A("s_waitcnt vmcnt(4)")
        A("s_barrier")
        d2 = chunk_dmas(g, 12, False) + chunk_dmas(g, 13, False)
        preload(range(opt.p2_pre1))
        A("s_waitcnt vmcnt(0)")
        A("s_mov_b64 exec, 1")
        A(f"buffer_store_dwordx2 v[6:7], v5, {sWS}, s{S_FLO} offen sc1")
        A("s_mov_b64 exec, -1")
        g.stamp(9)
        for hp in range(opt.p2_pre1, 8):
            for c in range(8):
                for it in rd(hp, c): g.emit(it)
                if d2: g.emit(d2.pop(0))
                if len(g.lds) >= 12: g.need(g.lds[3])
        for it in d2: g.emit(it)
        A("s_waitcnt vmcnt(0)")
        A("s_barrier")
        preload(range(8, 8 + NV))
        g.ldsall()
    else:
        preload(range(opt.p2_pre1))
        A("s_waitcnt vmcnt(0)")
        A("s_mov_b64 exec, 1")
        A(f"buffer_store_dwordx2 v[6:7], v5, {sWS}, s{S_FLO} offen sc1")
        A("s_mov_b64 exec, -1")
        g.stamp(9)
        A("s_barrier")
        preload(range(opt.p2_pre1, 8 + NV))
        g.ldsall()
    A(f"s_cmp_lg_u32 s{S_WV}, 0")
    A("s_cbranch_scc1 L_ook")
    if opt.poll0: A(f"s_sleep {opt.poll0}")
    A("s_branch L_opoll1")
    g.label("L_opoll")
    A(f"s_sub_u32 s{S_SPIN}, s{S_SPIN}, 1")
    A("s_cbranch_scc1 L_ook")
    A(f"s_sleep {opt.poll1}")
    g.label("L_opoll1")
    A(f"buffer_load_dwordx2 v[10:11], v8, {sWS}, s{S_FLN} offen sc1")
    A("s_waitcnt vmcnt(0)")
    A("v_cmp_ne_u64 vcc, v[10:11], v[6:7]")
    A("s_cbranch_vccnz L_opoll")
    g.label("L_ook")
    A("s_waitcnt vmcnt(0)")
    g.vm = VM()
    A("s_barrier")
    g.stamp(10)
    lq = []
    for hp in range(16):
        pre = [f"s_add_u32 s{S_T2}, s{S_OLD}, {hp*1024}"] if hp % 4 == 0 else []
        lq.append(("vm", ("of", hp), pre + [f"buffer_load_dwordx4 {vr(OF + 4*hp)}, v{V_L16}, {sWS}, s{S_T2} offen offset:{(hp % 4)*1024} sc1"]))
    for it in lq[:opt.p2_first]: g.emit(it)
    lq = lq[opt.p2_first:]
    rq = []
    for hp in range(16):
        while lq and lq[0][1][1] <= hp: g.emit(lq.pop(0))
        while rq and rq[0][1][1] <= hp: g.emit(rq.pop(0))
        g.vmwait(("of", hp))
        if hp % 4 == 0: g.stamp(3 + hp//4, kv="p2")
        mf = []
        for c in range(8):
            d = vr(ACC + 4*c)
            k_, a = freg(hp, c)
            mf.append((f"v_mfma_f32_16x16x32_bf16 {d}, {vr(a, 4, k_)}, {vr(OF + 4*hp)}, {'0' if hp == 0 else d}", [("o", hp, c)]))
        if hp >= 1 and hp - 1 + 8 + NV < 16:
            for c in range(8): rq += rd(hp - 1 + 8 + NV, c)
        run_slots(g, mf, [rq], cap=opt.p2_cap, dma=lq, dma_every=opt.p2_every, dma_phase=0)
    g.stamp(7, kv="p2")
    A(f"s_or_b32 s{S_T2}, s{S_HG}, s{S_WV}")
    A(f"s_cmp_lg_u32 s{S_T2}, 0")
    A("s_cbranch_scc1 L_nobo")
    A("s_mov_b64 exec, 1")
    A(f"buffer_store_dword v6, v5, {sWS}, s{S_EOA} offen sc1")
    A("s_mov_b64 exec, -1")
    g.label("L_nobo")
    for cp in range(4):
        o = 64 + cp*4
        for h in range(2):
            a = ACC + (2*cp + h)*4
            A(f"v_cvt_pk_bf16_f32 v{o+2*h}, v{a}, v{a+1}"); A(f"v_cvt_pk_bf16_f32 v{o+2*h+1}, v{a+2}, v{a+3}")
    for cp in range(4):
        o = 64 + cp*4
        A(f"v_permlane16_swap_b32 v{o}, v{o+2}")
        A(f"v_permlane16_swap_b32 v{o+1}, v{o+3}")
        A(f"buffer_store_dwordx4 {vr(o)}, v2, {sOUT}, s{S_XB} offen offset:{cp*64}{opt.outpol}")
    if opt.stamps:
        A("s_waitcnt vmcnt(0)")
        g.stamp(11)
        A("s_waitcnt lgkmcnt(0)")
        A(f"s_cmp_lg_u32 s{S_WV}, {opt.stamp_wave}")
        A("s_cbranch_scc1 L_end")
        if opt.dbgstamps:
            A("s_load_dwordx2 s[16:17], s[0:1], 56")
            A("v_mov_b32 v100, 0")
            for j in range(12):
                if opt.dbgbr >= 0 or j not in (4, 6, 7):
                    A(f"v_writelane_b32 v100, s{72+2*j}, {j}")
            for j, src in ((12, 0), (13, 2), (14, 3), (15, 11)):
                A(f"s_not_b32 s{S_T0}, s{72+2*src}")
                A(f"v_writelane_b32 v100, s{S_T0}, {j}")
            A("s_waitcnt lgkmcnt(0)")
            A("s_mov_b32 s18, 256"); A("s_mov_b32 s19, 0x20000")
            if opt.dbgbr >= 0:
                A(f"s_cmp_lg_u32 s{S_BR}, {opt.dbgbr}")
                A("s_cbranch_scc1 L_end")
            A(f"v_lshlrev_b32 v3, 2, v{V_L}")
            A("s_mov_b64 exec, 0xffff")
            A("buffer_atomic_umax v100, v3, s[16:19], 0 offen sc1")
            A("s_branch L_end")
        for j in range(24): A(f"v_mov_b32 v{100+j}, s{72+j}")
        A(f"s_mul_i32 s{S_T0}, s2, 96")
        A(f"s_add_u32 s{S_T0}, s{S_T0}, {WS_STAMP}")
        A("v_mov_b32 v3, 0")
        A("s_mov_b64 exec, 1")
        for j in range(6):
            A(f"buffer_store_dwordx4 v[{100+4*j}:{103+4*j}], v3, {sWS}, s{S_T0} offen offset:{16*j}")

def main():
    ap = argparse.ArgumentParser()
    ap.add_argument("-o", default="out.s")
    ap.add_argument("--stamps", type=int, default=0)
    ap.add_argument("--kvstamps", type=int, default=0)
    ap.add_argument("--p2stamps", type=int, default=0)
    ap.add_argument("--dbgstamps", type=int, default=0)
    ap.add_argument("--dbgbr", type=int, default=-1)
    ap.add_argument("--bfirst", type=int, default=0)
    ap.add_argument("--stamp-wave", type=int, default=0)
    ap.add_argument("--bar-after", type=int, default=4)
    ap.add_argument("--nt", type=int, default=0)
    ap.add_argument("--pfnt", type=int, default=0)
    ap.add_argument("--pf", type=int, default=0)
    ap.add_argument("--pre3", type=int, default=0)
    ap.add_argument("--pf-first", type=int, default=2)
    ap.add_argument("--pf-pos", type=int, default=0)
    ap.add_argument("--pf-init", type=int, default=2)
    ap.add_argument("--warmcode", type=int, default=0)
    ap.add_argument("--warmoff", type=int, default=0)
    ap.add_argument("--dma-every", type=int, default=4)
    ap.add_argument("--dma-fast", type=int, default=2)
    ap.add_argument("--cap", type=int, default=2)
    ap.add_argument("--cap-even", type=int, default=1)
    ap.add_argument("--b-cap", type=int, default=5)
    ap.add_argument("--cap2", type=int, default=3)
    ap.add_argument("--gat-at", type=int, default=27)
    ap.add_argument("--gat-every", type=int, default=1)
    ap.add_argument("--kv-sleep", type=int, default=4)
    ap.add_argument("--poll0", type=int, default=8)
    ap.add_argument("--poll1", type=int, default=6)
    ap.add_argument("--outpol", default="")
    ap.add_argument("--p2-first", type=int, default=6)
    ap.add_argument("--p2-every", type=int, default=4)
    ap.add_argument("--early-sync", type=int, default=1)
    ap.add_argument("--rot", type=int, default=7)
    ap.add_argument("--d2late", type=int, default=1)
    ap.add_argument("--p2-nv", type=int, default=3)
    ap.add_argument("--p2-pre1", type=int, default=6)
    ap.add_argument("--p2-cap", type=int, default=1)
    ap.add_argument("--wo-at", type=int, default=4)
    ap.add_argument("--wc-at", type=int, default=0)
    opt = ap.parse_args()
    if opt.outpol: opt.outpol = " " + opt.outpol.replace(",", " ")
    g = G(opt)
    global PFPOL
    PFPOL = " nt" if opt.pfnt else ""
    K = NAME + "_kernel"
    head = ["; generated by gen/gen6.py  " + " ".join(sys.argv[1:]),
            "; @launch grid=(256,1,1) block=(256,1,1) lds=163840",
            '.amdgcn_target "amdgcn-amd-amdhsa--gfx950"', ".text",
            f".globl {K}", ".p2align 8", f".type {K},@function", f"{K}:"]
    A = g.A
    g.stamp(0)
    decode(g)
    A(f"s_lshl_b32 s{S_T0}, s{S_BR}, 1")
    A(f"s_add_u32 s{S_T0}, s{S_T0}, s{S_RW}")
    for v in (1, 2, 3):
        A(f"s_cmp_eq_u32 s{S_T0}, {v}")
        A(f"s_cbranch_scc1 L_path{v}")
    for v in range(4):
        g.label(f"L_path{v}")
        phase1_path(g, v >> 1, v & 1)
    phase2(g)
    g.label("L_end")
    A("s_endpgm")
    body, n = fix_hazards(g.L)
    tail = ['.section .rodata,"a"', ".p2align 6", f".amdhsa_kernel {K}", "  .amdhsa_next_free_vgpr 512", "  .amdhsa_next_free_sgpr 102",
            "  .amdhsa_accum_offset 256", "  .amdhsa_group_segment_fixed_size 0", "  .amdhsa_kernarg_size 72",
            "  .amdhsa_user_sgpr_count 2", "  .amdhsa_user_sgpr_kernarg_segment_ptr 1",
            "  .amdhsa_system_sgpr_workgroup_id_x 1", ".end_amdhsa_kernel"]
    open(opt.o, "w").write("\n".join(head + body + tail) + "\n")
    print(f"wrote {opt.o}: {len(body)} lines, {n} nops inserted")

main()
```

```python
import sys, argparse
from asmlib import fix_hazards, VM

NAME = "concat_heads__sliding_local_dilated__linear_attn_block__prompt"
STAGE = 34816
WOFF = 18432
XCH = 4 * STAGE
WS_KV = 0x400000
WS_Z = 0x480000
WS_EO = 0x500000
WS_EK = 0x501000
WS_FL = 0x502000
WS_STAMP = 0x8000000
NEG = 0xF149F2CA
LOG2E = 0x3FB8AA3B
CSC = 0x3EB8AA3B
NCSC = 0xBEB8AA3B
EPS = 0x358637BD
SPIN = 300000

sX, sW, sWS, sWO, sOUT = "s[24:27]", "s[28:31]", "s[32:35]", "s[40:43]", "s[44:47]"
S_BR, S_RB, S_HG, S_WV, S_RW, S_CW = 48, 49, 50, 51, 52, 53
S_XB, S_HB, S_WB, S_LW, S_T0, S_T1, S_T2, S_C, S_NC, S_L2E, S_EPS, S_WOB, S_LWH = 54, 55, 56, 57, 58, 59, 60, 61, 62, 63, 64, 65, 67
S_HEAD, S_SPIN = 70, 71
S_WB1 = 66
S_OST, S_KVS, S_ZS, S_LWO, S_OLD, S_IDX, S_XCD = 4, 5, 6, 7, 8, 23, 22
S_PFX, S_PFW, S_FLN, S_FLO, S_EOA, S_EKA, S_TAG = 9, 10, 11, 12, 13, 14, 15
S_EO, S_EK = 36, 38
S_ROT, S_RC = 16, 17
V_L = 1
V_XD = 10
V_WD = 14
V_XH, V_WO = 18, 19
V_XR = 20
V_HR = 26
V_WR = 32
V_OR = 38
V_L16 = 46
V_L8 = 47
V_MOWN, V_MPREV, V_MHALO, V_BM, V_ONES = 48, 52, 56, 64, 66
V_PF0, V_PF1 = 70, 71
V_ACC = 72
V_HACC = 136
V_WF = 144
V_HF = 176
V_QACC = 184
V_VP = 216
V_KP = 240
V_KPREV = 176
V_XA = 9
V_QF = 216
QE = 0
def wq_base(cq):
    if cq < QE: return None
    r = cq - QE
    st = ((8 + (r >> 2)) % 4) * STAGE
    return st + ((r & 3) >> 1)*16384 + (r & 1)*1024
PFPOL = ""
V_WO4 = [12, 13, 16, 17]
WOB = [67584, 100352, 0, 32768]

def vr(b, n=4, k="v"): return f"{k}[{b}:{b+n-1}]"
def ldsaddr(base_reg, const):
    return f"v{base_reg + (const >> 16)}", const & 0xFFFF

class G:
    def __init__(self, opt):
        self.L = []; self.opt = opt; self.lds = []; self.vm = VM()
    def A(self, s):
        if s.endswith(":"): self.L.append(s)
        else: self.L.append("    " + s)
    def label(self, s): self.L.append(s + ":")
    def stamp(self, i, kv=False):
        o = self.opt
        if not o.stamps: return
        if o.kvstamps and i >= 3 and not kv and i != 11: return
        if kv is True and not o.kvstamps: return
        if o.p2stamps and 3 <= i <= 7 and kv != "p2": return
        if kv == "p2" and not o.p2stamps: return
        self.A(f"s_memrealtime s[{72+2*i}:{73+2*i}]")
    def emit(self, it):
        if isinstance(it, str): self.A(it)
        elif isinstance(it, list):
            for s in it: self.emit(s)
        elif it[0] == "lds":
            self.lds.append(it[1]); self.A(it[2])
        elif it[0] == "vm":
            self.vm.add(it[1])
            for s in it[2]: self.A(s)
        elif it[0] == "need": self.need(it[1])
        elif it[0] == "ldsall": self.ldsall()
        elif it[0] == "stamp": self.stamp(it[1])
        else: raise ValueError(it)
    def need(self, tag):
        idx = max((i for i, t in enumerate(self.lds) if t == tag), default=None)
        if idx is None: return
        n = len(self.lds) - 1 - idx
        self.lds = self.lds[idx + 1:]
        self.A(f"s_waitcnt lgkmcnt({min(n, 15)})")
    def ldsall(self):
        self.lds = []
        self.A("s_waitcnt lgkmcnt(0)")
    def vmwait(self, tag):
        n = self.vm.wait_n(tag)
        if n is not None: self.A(f"s_waitcnt vmcnt({n})")

def cost(it):
    if isinstance(it, str): return 1
    if isinstance(it, list): return sum(cost(x) for x in it)
    if it[0] == "vm": return len(it[2])
    return 1

def run_slots(g, mf, queues, cap=2, dma=None, dma_every=4, dma_phase=0):
    for i, (m, needs) in enumerate(mf):
        for t in needs: g.need(t)
        g.A(m)
        room = cap
        if dma and (i % dma_every) == dma_phase:
            it = dma.pop(0); g.emit(it); room -= min(cost(it), 2)
        for q in queues:
            while q and room > 0:
                it = q.pop(0); g.emit(it); room -= cost(it)

def cs_(g, r): return f"s_and_b32 s{r}, s{S_HG}, 3" if g.opt.cmap else f"s_lshr_b32 s{r}, s{S_HG}, 1"
def rh_(g, r): return f"s_lshr_b32 s{r}, s{S_HG}, 2" if g.opt.cmap else f"s_and_b32 s{r}, s{S_HG}, 1"

def decode(g):
    A = g.A
    A("s_cmp_ge_u32 s2, 256")
    A("s_cbranch_scc1 L_end")
    A("s_load_dwordx16 s[4:19], s[0:1], 0")
    A("s_load_dwordx2 s[20:21], s[0:1], 64")
    A("v_lshrrev_b32 v2, 6, v0")
    A(f"v_and_b32 v{V_L}, 63, v0")
    A(f"v_readfirstlane_b32 s{S_WV}, v2")
    A("s_and_b32 s22, s2, 7")
    A("s_lshr_b32 s23, s2, 3")
    A(f"s_lshr_b32 s{S_BR}, s22, 2")
    if g.opt.bfirst: A(f"s_xor_b32 s{S_BR}, s{S_BR}, 1")
    A(f"s_bfe_u32 s{S_RB}, s22, 0x10001")
    A(f"s_lshl_b32 s{S_RB}, s{S_RB}, 3")
    A(f"s_and_b32 s{S_T0}, s23, 7")
    A(f"s_add_u32 s{S_RB}, s{S_RB}, s{S_T0}")
    A(f"s_and_b32 s{S_HG}, s22, 1")
    A(f"s_lshl_b32 s{S_HG}, s{S_HG}, 2")
    A(f"s_lshr_b32 s{S_T0}, s23, 3")
    A(f"s_add_u32 s{S_T0}, s{S_T0}, s23")
    A(f"s_and_b32 s{S_T0}, s{S_T0}, 3")
    A(f"s_add_u32 s{S_HG}, s{S_HG}, s{S_T0}")
    A(f"s_lshr_b32 s{S_RW}, s{S_WV}, 1")
    A(f"s_and_b32 s{S_CW}, s{S_WV}, 1")
    l = f"v{V_L}"
    A(f"v_lshrrev_b32 v2, 3, {l}")
    A(f"v_and_b32 v3, 7, {l}")
    A(f"v_lshrrev_b32 v4, 4, {l}")
    A("v_xor_b32 v5, v3, v4")
    A("v_lshlrev_b32 v6, 11, v2")
    A(f"v_lshl_add_u32 v{V_XD}, v5, 4, v6")
    A(f"v_xor_b32 v7, 64, v{V_XD}")
    A(f"v_add_u32 v{V_XD+1}, {14*1024}, v7")
    A("v_and_b32 v5, 1, v4")
    A("v_lshlrev_b32 v5, 1, v5")
    A("v_xor_b32 v5, v3, v5")
    A("v_mul_u32_u24 v7, 3072, v2")
    A(f"v_lshl_add_u32 v{V_WD}, v5, 4, v7")
    A(f"v_xor_b32 v7, 64, v{V_WD}")
    A(f"v_add_u32 v{V_WD+1}, 22528, v7")
    A(f"s_lshl_b32 s{S_T0}, s{S_WV}, 1")
    A(f"v_add_u32 v5, s{S_T0}, v4")
    A("v_xor_b32 v5, v3, v5")
    A(f"v_lshl_add_u32 v{V_XH}, v5, 4, v6")
    A(f"s_lshl_b32 s{S_XB}, s{S_RB}, 17")
    A(f"s_lshl_b32 s{S_T0}, s{S_WV}, 15")
    A(f"s_add_u32 s{S_XB}, s{S_XB}, s{S_T0}")
    A(f"s_lshl_b32 s{S_HB}, s{S_RB}, 7")
    A(f"s_sub_i32 s{S_HB}, s{S_HB}, 16")
    A(f"s_max_i32 s{S_HB}, s{S_HB}, 0")
    A(f"s_lshl_b32 s{S_T0}, s{S_CW}, 3")
    A(f"s_add_u32 s{S_HB}, s{S_HB}, s{S_T0}")
    A(f"s_add_u32 s{S_HB}, s{S_HB}, s{S_RW}")
    A(f"s_lshl_b32 s{S_HB}, s{S_HB}, 10")
    A(f"s_mul_i32 s{S_WB}, s{S_WV}, 49152")
    A(f"s_lshl_b32 s{S_T0}, s{S_HG}, 7")
    A(f"s_add_u32 s{S_WB}, s{S_WB}, s{S_T0}")
    A(f"s_add_u32 s{S_WB1}, s{S_WB}, 1024")
    A(f"s_lshl_b32 s{S_LW}, s{S_WV}, 12")
    A(f"s_lshl_b32 s{S_LWH}, s{S_WV}, 9")
    A(f"s_lshl_b32 s{S_WOB}, s{S_WV}, 15")
    A(cs_(g, S_T0))
    A(f"s_lshl_b32 s{S_T0}, s{S_T0}, 8")
    A(f"s_add_u32 s{S_WOB}, s{S_WOB}, s{S_T0}")
    if g.opt.pf == 4: pf4_pre(g)
    A("s_waitcnt lgkmcnt(0)")
    A(f"s_cmp_eq_u32 s{S_BR}, 0")
    A("s_cselect_b32 s24, s4, s10"); A("s_cselect_b32 s25, s5, s11"); A("s_mov_b32 s26, 0x200000"); A("s_mov_b32 s27, 0x20000")
    A("s_cselect_b32 s28, s6, s12"); A("s_cselect_b32 s29, s7, s13"); A("s_mov_b32 s30, 0x180000"); A("s_mov_b32 s31, 0x20000")
    A("s_cselect_b32 s40, s8, s14"); A("s_cselect_b32 s41, s9, s15"); A("s_mov_b32 s42, 0x80000"); A("s_mov_b32 s43, 0x20000")
    A("s_mov_b32 s32, s20"); A("s_mov_b32 s33, s21"); A("s_mov_b32 s34, 0x10000000"); A("s_mov_b32 s35, 0x20000")
    A("s_mov_b32 s44, s16"); A("s_mov_b32 s45, s17"); A("s_mov_b32 s46, 0x400000"); A("s_mov_b32 s47, 0x20000")
    if g.opt.rot == 3: A(f"s_lshl_b32 s{S_ROT}, s{S_HG}, 1")
    elif g.opt.rot == 4: A(f"s_mov_b32 s{S_ROT}, s{S_RB}")
    elif g.opt.rot == 5: A(f"s_mov_b32 s{S_ROT}, s{S_HG}")
    elif g.opt.rot == 6: A(f"s_lshl_b32 s{S_ROT}, s{S_HG}, 2")
    elif g.opt.rot == 7: A(f"s_lshl_b32 s{S_ROT}, s{S_RB}, 2")
    elif g.opt.rot == 8:
        A(f"s_xor_b32 s{S_ROT}, s{S_RB}, s{S_HG}"); A(f"s_lshl_b32 s{S_ROT}, s{S_ROT}, 2")
    elif g.opt.rot == 9: A(f"s_mov_b32 s{S_ROT}, 4")
    elif g.opt.rot:
        A(f"s_lshl_b32 s{S_ROT}, s{S_HG}, 1")
        A(f"s_add_u32 s{S_ROT}, s{S_ROT}, s{S_RB}")
        if g.opt.rot == 2:
            A(f"s_lshr_b32 s{S_T0}, s{S_HG}, 2"); A(f"s_add_u32 s{S_ROT}, s{S_ROT}, s{S_T0}")
            A(f"s_lshr_b32 s{S_T0}, s{S_RB}, 3"); A(f"s_lshl_b32 s{S_T0}, s{S_T0}, 2"); A(f"s_add_u32 s{S_ROT}, s{S_ROT}, s{S_T0}")
    else:
        A(f"s_mov_b32 s{S_ROT}, 0")

def chunk_dmas(g, c, halo):
    st = (c % 4) * STAGE
    nt = " nt" if g.opt.nt else ""
    tag = ("c", c)
    out = []
    if c < 8:
        rc = [f"s_add_u32 s{S_RC}, s{S_ROT}, {c}", f"s_and_b32 s{S_RC}, s{S_RC}, 7"]
        for i in range(4):
            pre = rc + [f"s_add_u32 m0, s{S_LW}, {st}", f"s_lshl_b32 s{S_T2}, s{S_RC}, 7", f"s_add_u32 s{S_T2}, s{S_T2}, s{S_XB}"] if i == 0 else []
            out.append(("vm", tag, pre + [f"buffer_load_dwordx4 v{V_XD+(i>>1)}, {sX}, s{S_T2} offen offset:{i*1024}{nt} lds"]))
        for j in range(4):
            pre = [f"s_add_u32 m0, s{S_LW}, {st + WOFF}", f"s_mul_i32 s{S_T2}, s{S_RC}, 196608", f"s_add_u32 s{S_T2}, s{S_T2}, s{S_WB1}"] if j == 0 else []
            out.append(("vm", tag, pre + [f"buffer_load_dwordx4 v{V_WD+(j>>1)}, {sW}, s{S_T2} offen offset:{j*1024}{nt} lds"]))
        if c < QE:
            for bb in range(2):
                pre = [f"s_lshl_b32 s{S_T2}, s{S_WV}, 11", f"s_add_u32 m0, s{S_T2}, {XCH + c*8192 - 1024}",
                       f"s_mul_i32 s{S_T2}, s{S_RC}, 196608", f"s_add_u32 s{S_T2}, s{S_T2}, s{S_WB}"] if bb == 0 else []
                pre = [f"s_lshl_b32 s{S_T1}, s{S_WV}, 11", f"s_add_u32 m0, s{S_T1}, {XCH + c*8192 + bb*1024 - bb*2048}"] + \
                      ([f"s_mul_i32 s{S_T2}, s{S_RC}, 196608", f"s_add_u32 s{S_T2}, s{S_T2}, s{S_WB}"] if bb == 0 else [])
                out.append(("vm", tag, pre + [f"buffer_load_dwordx4 v{V_WD+bb}, {sW}, s{S_T2} offen offset:{bb*2048}{nt} lds"]))
        if halo:
            out.append(("vm", tag, [f"s_add_u32 m0, s{S_LWH}, {st + 16384}", f"s_lshl_b32 s{S_T2}, s{S_RC}, 7", f"s_add_u32 s{S_T2}, s{S_T2}, s{S_HB}",
                        "s_mov_b32 exec_hi, 0", f"buffer_load_dwordx4 v{V_XH}, {sX}, s{S_T2} offen{nt} lds", "s_mov_b32 exec_hi, -1"]))
    elif c < 10:
        h = c - 8
        for cq in range(QE + 4*h, min(QE + 4*h + 4, 8)):
            for bb in range(2):
                pre = []
                if bb == 0:
                    pre = [f"s_add_u32 s{S_RC}, s{S_ROT}, {cq}", f"s_and_b32 s{S_RC}, s{S_RC}, 7",
                           f"s_add_u32 m0, s{S_LW}, {wq_base(cq)}",
                           f"s_mul_i32 s{S_T2}, s{S_RC}, 196608", f"s_add_u32 s{S_T2}, s{S_T2}, s{S_WB}"]
                out.append(("vm", tag, pre + [f"buffer_load_dwordx4 v{V_WD+bb}, {sW}, s{S_T2} offen offset:{bb*2048}{nt} lds"]))
    else:
        h = c - 10
        for b in range(8):
            pre = [f"s_add_u32 m0, s{S_LWO}, {WOB[h] + (b >> 2)*4096}",
                   f"s_add_u32 s{S_T2}, s{S_WOB}, {(128*h + 16*(b >> 2))*1024}"] if (b & 3) == 0 else []
            out.append(("vm", tag, pre + [f"buffer_load_dwordx4 v{V_WO4[b & 3]}, {sWO}, s{S_T2} offen offset:{(b & 3)*1024}{nt} lds"]))
    return out

def setup2(g, br, rw):
    A = g.A
    halo = br == 0
    l = f"v{V_L}"
    A(f"s_lshl_b32 s{S_T0}, s{S_BR}, 4"); A(f"s_add_u32 s{S_T0}, s{S_T0}, s{S_RB}")
    A(f"s_lshl_b32 s{S_EOA}, s{S_T0}, 7"); A(f"s_add_u32 s{S_EOA}, s{S_EOA}, {WS_EO}")
    A(f"s_lshl_b32 s{S_FLN}, s{S_T0}, 8"); A(f"s_add_u32 s{S_FLN}, s{S_FLN}, {WS_FL}")
    A(f"s_lshl_b32 s{S_EKA}, s{S_HG}, 7"); A(f"s_add_u32 s{S_EKA}, s{S_EKA}, {WS_EK}")
    A(f"s_load_dwordx2 s[{S_EO}:{S_EO+1}], s[20:21], s{S_EOA}")
    if br == 1: A(f"s_load_dwordx2 s[{S_EK}:{S_EK+1}], s[20:21], s{S_EKA}")
    A(f"s_lshl_b32 s{S_T1}, s{S_HG}, 1"); A(f"s_add_u32 s{S_T1}, s{S_T1}, s{S_CW}")
    A(f"s_lshl_b32 s{S_FLO}, s{S_T1}, 3"); A(f"s_add_u32 s{S_FLO}, s{S_FLO}, s{S_FLN}"); A(f"s_add_u32 s{S_FLO}, s{S_FLO}, {rw*128}")
    A(rh_(g, S_T2)); A(f"s_lshl_b32 s{S_T2}, s{S_T2}, 7"); A(f"s_add_u32 s{S_FLN}, s{S_FLN}, s{S_T2}")
    A(f"v_lshrrev_b32 v2, 4, {l}"); A(f"v_and_b32 v3, 15, {l}")
    A("v_lshlrev_b32 v5, 1, v2"); A("v_xor_b32 v5, v3, v5"); A("v_lshlrev_b32 v6, 10, v2")
    A(f"v_lshl_add_u32 v{V_WO4[0]}, v5, 4, v6")
    A(f"v_xor_b32 v6, 128, v{V_WO4[0]}")
    A(f"v_add_u32 v{V_WO4[1]}, 3072, v6")
    A(f"v_add_u32 v{V_WO4[2]}, 6144, v{V_WO4[0]}")
    A(f"v_add_u32 v{V_WO4[3]}, 9216, v6")
    A(f"v_and_b32 v2, 15, {l}")
    A(f"v_lshrrev_b32 v3, 4, {l}")
    A("v_lshrrev_b32 v4, 1, v2")
    A("v_xor_b32 v5, v3, v4")
    A("v_lshlrev_b32 v6, 7, v2")
    A("v_lshl_add_u32 v6, v5, 4, v6")
    A("v_lshrrev_b32 v7, 3, v2")
    A("v_lshl_add_u32 v7, v7, 10, v6")
    A(f"v_add_u32 v{V_XR}, {rw*8192}, v7")
    A(f"v_xor_b32 v{V_XR+3}, 64, v{V_XR}")
    for kk in range(2):
        for b in (1, 2): A(f"v_add_u32 v{V_XR+3*kk+b}, {b<<16}, v{V_XR+3*kk}")
    if halo:
        A(f"v_add_u32 v{V_HR}, 16384, v6")
        A(f"v_xor_b32 v{V_HR+3}, 64, v{V_HR}")
        for kk in range(2):
            for b in (1, 2): A(f"v_add_u32 v{V_HR+3*kk+b}, {b<<16}, v{V_HR+3*kk}")
    A("v_lshrrev_b32 v4, 2, v2")
    A("v_and_b32 v5, 3, v2")
    A("v_lshrrev_b32 v8, 3, v2")
    A("v_and_b32 v7, 1, v3")
    A("v_lshl_or_b32 v8, v7, 1, v8")
    A("v_lshrrev_b32 v6, 1, v3")
    A("v_lshlrev_b32 v6, 12, v6")
    A("v_lshl_add_u32 v6, v7, 11, v6")
    A("v_lshl_add_u32 v6, v4, 7, v6")
    A("v_lshl_add_u32 v6, v5, 3, v6")
    A(f"s_lshl_b32 s{S_T0}, s{S_CW}, 1")
    A(f"v_xor_b32 v7, s{S_T0}, v8")
    A(f"v_lshl_add_u32 v{V_WR}, v7, 5, v6")
    A(f"v_xor_b32 v{V_WR+3}, 32, v{V_WR}")
    for hh in range(2):
        for b in (1, 2): A(f"v_add_u32 v{V_WR+3*hh+b}, {b<<16}, v{V_WR+3*hh}")
    if QE:
        A("v_lshlrev_b32 v6, 10, v3")
        A(f"v_sub_u32 v38, v{V_WR+2}, v6"); A(f"v_sub_u32 v39, v{V_WR+5}, v6")
    A(f"v_lshlrev_b32 v{V_L16}, 4, {l}")
    A(f"v_lshlrev_b32 v{V_L8}, 3, {l}")
    A(f"s_mov_b32 s{S_C}, {CSC:#x}"); A(f"s_mov_b32 s{S_NC}, {NCSC:#x}")
    A(f"s_mov_b32 s{S_L2E}, {LOG2E:#x}"); A(f"s_mov_b32 s{S_EPS}, {EPS:#x}")
    A(f"s_mov_b32 s{S_SPIN}, {SPIN}")
    A(f"s_mov_b32 s18, {LOG2E:#x}"); A(f"s_mov_b32 s19, {LOG2E:#x}"); A(f"s_mov_b32 s96, {CSC:#x}"); A(f"s_mov_b32 s97, {CSC:#x}")
    for i in range(4): A(f"v_mov_b32 v{V_ONES+i}, 0x3f803f80")
    A(f"s_lshl_b32 s{S_T0}, s{S_RB}, 3")
    A(f"s_add_u32 s{S_OLD}, s{S_T0}, {br*128}")
    A(f"s_add_u32 s{S_OST}, s{S_OLD}, {4*rw}")
    A(f"s_lshl_b32 s{S_OST}, s{S_OST}, 4")
    A(f"s_add_u32 s{S_OST}, s{S_OST}, s{S_T1}")
    A(f"s_lshl_b32 s{S_OST}, s{S_OST}, 10")
    A(rh_(g, S_T1)); A(f"s_lshl_b32 s{S_T1}, s{S_T1}, 2")
    A(f"s_add_u32 s{S_OLD}, s{S_OLD}, s{S_T1}")
    A(f"s_add_u32 s{S_OLD}, s{S_OLD}, s{S_WV}")
    A(f"s_lshl_b32 s{S_OLD}, s{S_OLD}, 14")
    A(f"s_lshl_b32 s{S_LWO}, s{S_WV}, 13")
    A(f"s_lshl_b32 s{S_T0}, s{S_CW}, 13")
    A(f"v_add_u32 v{V_XA}, s{S_T0}, v{V_L16 if br else V_L8}")
    A(f"v_add_u32 v{V_XA}, {XCH}, v{V_XA}")
    if br == 1:
        A(f"s_lshl_b32 s{S_T0}, s{S_HG}, 2")
        A(f"s_lshl_b32 s{S_T1}, s{S_CW}, 1")
        A(f"s_add_u32 s{S_T0}, s{S_T0}, s{S_T1}")
        A(f"s_add_u32 s{S_HEAD}, s{S_T0}, {rw}")
        A(f"s_lshl_b32 s{S_T0}, s{S_HEAD}, 4")
        A(f"s_add_u32 s{S_T0}, s{S_T0}, s{S_RB}")
        A(f"s_lshl_b32 s{S_KVS}, s{S_T0}, 10")
        A(f"s_add_u32 s{S_KVS}, s{S_KVS}, {WS_KV}")
        A(f"s_lshl_b32 s{S_ZS}, s{S_T0}, 6")
        A(f"s_add_u32 s{S_ZS}, s{S_ZS}, {WS_Z}")
    else:
        A(f"v_and_b32 v2, 15, {l}")
        A(f"v_lshrrev_b32 v3, 4, {l}")
        A("v_lshlrev_b32 v3, 2, v3")
        A(f"v_mov_b32 v8, {NEG:#x}")
        for r in range(4):
            A(f"v_add_u32 v4, {r}, v3")
            A("v_sub_u32 v5, v2, v4")
            A("v_cmp_gt_u32 vcc, 8, v5")
            A(f"v_mov_b32 v7, {0xffff if r % 2 == 0 else 0xffff0000:#x}")
            A(f"v_cndmask_b32 v{V_MOWN+r}, v8, 0, vcc")
            A("v_cndmask_b32 v6, 0, v7, vcc")
            if r % 2 == 0: A(f"v_mov_b32 v{V_BM + r//2}, v6")
            else: A(f"v_or_b32 v{V_BM + r//2}, v{V_BM + r//2}, v6")
            A("v_add_u32 v5, 9, v2")
            A("v_cmp_ge_u32 vcc, v4, v5")
            A(f"v_cndmask_b32 v{V_MPREV+r}, v8, 0, vcc")
            if rw == 0:
                for p in range(2):
                    A(f"v_subrev_u32 v5, {8*p}, v4")
                    A("v_cmp_gt_u32 vcc, 8, v5")
                    A("v_cmp_gt_u32 s[68:69], v5, v2")
                    A("s_and_b64 vcc, vcc, s[68:69]")
                    A(f"s_cmp_eq_u32 s{S_RB}, 0")
                    A("s_cselect_b64 vcc, 0, vcc")
                    A(f"v_cndmask_b32 v{V_MHALO+4*p+r}, v8, 0, vcc")

def pf_setup(g):
    A = g.A
    l = f"v{V_L}"
    A(f"v_and_b32 v2, 31, {l}")
    A("v_lshlrev_b32 v2, 10, v2")
    A(f"v_lshrrev_b32 v3, 5, {l}")
    A(f"v_lshl_add_u32 v{V_PF0}, v3, 7, v2")
    A(f"s_lshr_b32 s{S_PFX}, s{S_RB}, 3")
    A(f"s_lshl_b32 s{S_PFX}, s{S_PFX}, 20")
    A(f"s_lshl_b32 s{S_T0}, s{S_IDX}, 15")
    A(f"s_add_u32 s{S_PFX}, s{S_PFX}, s{S_T0}")
    A(f"s_lshl_b32 s{S_T0}, s{S_WV}, 8")
    A(f"s_add_u32 s{S_PFX}, s{S_PFX}, s{S_T0}")
    A(f"v_and_b32 v4, 15, {l}")
    A("v_lshrrev_b32 v5, 2, v4")
    A("v_and_b32 v6, 3, v4")
    A(f"v_bfe_u32 v7, {l}, 4, 1")
    A("v_mul_u32_u24 v7, 3072, v7")
    A("v_mul_u32_u24 v8, 196608, v3")
    A("v_add_u32 v7, v7, v8")
    A("v_lshl_add_u32 v7, v5, 10, v7")
    A("v_lshl_add_u32 v7, v6, 7, v7")
    A("v_cmp_gt_u32 vcc, 3, v5")
    A("v_mov_b32 v8, 0x7fffffff")
    A(f"v_cndmask_b32 v{V_PF1}, v8, v7, vcc")
    A(f"s_mul_i32 s{S_PFW}, s{S_IDX}, 6144")
    A(f"s_and_b32 s{S_T0}, s{S_XCD}, 1")
    A(f"s_lshl_b32 s{S_T0}, s{S_T0}, 9")
    A(f"s_add_u32 s{S_PFW}, s{S_PFW}, s{S_T0}")
    A(f"s_mul_i32 s{S_T0}, s{S_WV}, 393216")
    A(f"s_add_u32 s{S_PFW}, s{S_PFW}, s{S_T0}")

V_PA = 252
def pf3_setup(g):
    A = g.A
    l = f"v{V_L}"
    A(f"s_lshr_b32 s{S_T0}, s{S_RB}, 3")
    A(f"s_lshl_b32 s{S_T0}, s{S_T0}, 20")
    A(f"s_lshl_b32 s{S_T1}, s{S_IDX}, 15")
    A(f"s_add_u32 s{S_T0}, s{S_T0}, s{S_T1}")
    A(f"s_lshl_b32 s{S_T1}, s{S_WV}, 13")
    A(f"s_add_u32 s{S_T0}, s{S_T0}, s{S_T1}")
    A(f"s_add_u32 s{S_PFX}, s24, s{S_T0}"); A(f"s_addc_u32 s{S_PFX+1}, s25, 0")
    A(f"v_lshlrev_b32 v2, 10, {l}")
    A(f"v_mov_b32 v3, s{S_PFX+1}")
    A(f"v_add_co_u32 v{V_PA}, vcc, s{S_PFX}, v2")
    A(f"v_addc_co_u32 v{V_PA+1}, vcc, 0, v3, vcc")
    A(f"s_mul_i32 s{S_T0}, s{S_CW}, 6")
    A(f"v_subrev_u32 v4, 8, {l}")
    A(f"v_add_u32 v4, s{S_T0}, v4")
    A("v_lshrrev_b32 v5, 2, v4"); A("v_and_b32 v4, 3, v4")
    A("v_lshlrev_b32 v5, 10, v5"); A("v_lshl_add_u32 v4, v4, 7, v5")
    A(f"s_lshl_b32 s{S_T0}, s{S_IDX}, 1"); A(f"s_add_u32 s{S_T0}, s{S_T0}, s{S_RW}")
    A(f"s_mul_i32 s{S_T0}, s{S_T0}, 3072")
    A(f"s_and_b32 s{S_T1}, s{S_XCD}, 1"); A(f"s_lshl_b32 s{S_T1}, s{S_T1}, 9")
    A(f"s_add_u32 s{S_T0}, s{S_T0}, s{S_T1}")
    A(f"s_add_u32 s{S_PFX}, s28, s{S_T0}"); A(f"s_addc_u32 s{S_PFX+1}, s29, 0")
    A(f"v_mov_b32 v3, s{S_PFX+1}")
    A(f"v_add_co_u32 v4, vcc, s{S_PFX}, v4")
    A("v_addc_co_u32 v5, vcc, 0, v3, vcc")
    A(f"v_cmp_gt_u32 vcc, 8, {l}")
    A(f"v_cndmask_b32 v{V_PA}, v4, v{V_PA}, vcc")
    A(f"v_cndmask_b32 v{V_PA+1}, v5, v{V_PA+1}, vcc")
    A("v_mov_b32 v4, 196608"); A("v_mov_b32 v5, 128")
    A(f"v_cndmask_b32 v{V_PA+2}, v4, v5, vcc")
    for _ in range(g.opt.pf_first):
        A(f"v_add_co_u32 v{V_PA}, vcc, v{V_PA}, v{V_PA+2}")
        A(f"v_addc_co_u32 v{V_PA+1}, vcc, 0, v{V_PA+1}, vcc")
def pf3_item():
    return ("vm", "pf", ["s_mov_b64 exec, 0x3fff", f"global_load_dword v{V_PA+3}, v[{V_PA}:{V_PA+1}], off{PFPOL}", "s_mov_b64 exec, -1",
                         f"v_add_co_u32 v{V_PA}, vcc, v{V_PA}, v{V_PA+2}", f"v_addc_co_u32 v{V_PA+1}, vcc, 0, v{V_PA+1}, vcc"])

def pf4_pre(g):
    A = g.A
    l = f"v{V_L}"
    A(f"s_lshr_b32 s{S_T0}, s{S_RB}, 3")
    A(f"s_lshl_b32 s{S_T0}, s{S_T0}, 20")
    A(f"s_lshl_b32 s{S_T1}, s{S_IDX}, 15")
    A(f"s_add_u32 s{S_T0}, s{S_T0}, s{S_T1}")
    A(f"s_lshl_b32 s{S_T1}, s{S_WV}, 13")
    A(f"s_add_u32 s{S_T0}, s{S_T0}, s{S_T1}")
    A(f"v_lshlrev_b32 v2, 10, {l}")
    A(f"v_add_u32 v2, s{S_T0}, v2")
    A(f"s_lshl_b32 s{S_T0}, s{S_IDX}, 1"); A(f"s_add_u32 s{S_T0}, s{S_T0}, s{S_RW}")
    A(f"s_mul_i32 s{S_T0}, s{S_T0}, 3072")
    A(f"s_and_b32 s{S_T1}, s{S_XCD}, 1"); A(f"s_lshl_b32 s{S_T1}, s{S_T1}, 9")
    A(f"s_add_u32 s{S_T0}, s{S_T0}, s{S_T1}")
    A(f"s_lshl_b32 s{S_T1}, s{S_CW}, 10"); A(f"s_add_u32 s{S_T0}, s{S_T0}, s{S_T1}")
    A(f"s_add_u32 s{S_T0}, s{S_T0}, {1024 - 8*128}")
    A(f"v_lshlrev_b32 v3, 7, {l}")
    A(f"v_add_u32 v3, s{S_T0}, v3")
    A(f"v_cmp_gt_u32 s[68:69], 8, {l}")
    A("v_mov_b32 v4, 196608"); A("v_mov_b32 v5, 128")
    A(f"v_cndmask_b32 v{V_PA+2}, v4, v5, s[68:69]")
    A(f"v_cndmask_b32 v{V_PA}, v3, v2, s[68:69]")
    for _ in range(g.opt.pf_first): A(f"v_add_u32 v{V_PA}, v{V_PA}, v{V_PA+2}")
def pf4_post(g):
    A = g.A
    A("v_mov_b32 v2, s28"); A("v_mov_b32 v3, s29"); A("v_mov_b32 v4, s24"); A("v_mov_b32 v5, s25")
    A("v_cndmask_b32 v2, v2, v4, s[68:69]"); A("v_cndmask_b32 v3, v3, v5, s[68:69]")
    A(f"v_add_co_u32 v{V_PA}, vcc, v{V_PA}, v2")
    A(f"v_addc_co_u32 v{V_PA+1}, vcc, 0, v3, vcc")
def pf4_item():
    return ("vm", "pf", ["s_mov_b64 exec, 0xfff", f"global_load_dword v{V_PA+3}, v[{V_PA}:{V_PA+1}], off{PFPOL}", "s_mov_b64 exec, -1",
                         f"v_add_co_u32 v{V_PA}, vcc, v{V_PA}, v{V_PA+2}", f"v_addc_co_u32 v{V_PA+1}, vcc, 0, v{V_PA+1}, vcc"])

def acc(Tl, hh, kv): return V_ACC + ((Tl * 2 + hh) * 2 + kv) * 4
def xf(Tl, ks): return (Tl * 16 + ks) * 4

def kv_reads(ks, halo):
    c = ks >> 1; kk = ks & 1; st = (c % 4) * STAGE; buf = ks & 1
    w = []
    for hh in range(2):
        for seg in range(2):
            for t in range(2):
                reg, off = ldsaddr(V_WR + 3*hh, st + WOFF + kk*8192 + seg*1024 + t*512)
                d = V_WF + buf*16 + (hh*2 + seg)*4 + t*2
                w.append(("lds", ("w", ks, hh, seg), f"ds_read_b64_tr_b16 v[{d}:{d+1}], {reg} offset:{off}"))
    xr = []
    for Tl in range(4):
        reg, off = ldsaddr(V_XR + 3*kk, st + (Tl >> 1)*4096 + (Tl & 1)*1024)
        xr.append(("lds", ("x", ks, Tl), f"ds_read_b128 {vr(xf(Tl, ks), 4, 'a')}, {reg} offset:{off}"))
    if halo:
        reg, off = ldsaddr(V_HR + 3*kk, st)
        xr.append(("lds", ("x", ks, 4), f"ds_read_b128 {vr(V_HF + buf*4)}, {reg} offset:{off}"))
    qr = []
    if c < QE:
        for hh in range(2):
            for t in range(2):
                d = V_QF + buf*8 + hh*4 + t*2
                qr.append(("lds", ("q", hh, ks), f"ds_read_b64_tr_b16 v[{d}:{d+1}], v{38+hh} offset:{XCH - 131072 + c*8192 + kk*4096 + t*512}"))
    return [xr[0]] + w + xr[1:] + qr

def kv_mfmas(ks, br, rw):
    buf = ks & 1
    out = []
    for Tl in range(4):
        for hh in range(2):
            for seg in range(2):
                w = vr(V_WF + buf*16 + (hh*2 + seg)*4)
                x = vr(xf(Tl, ks), 4, "a")
                d = vr(acc(Tl, hh, seg))
                c = "0" if ks == 0 else d
                a, b = (w, x) if (br == 0 and seg == 0) else (x, w)
                out.append((f"v_mfma_f32_16x16x32_bf16 {d}, {a}, {b}, {c}", [("x", ks, Tl), ("w", ks, hh, seg)]))
    if br == 0:
        for hh in range(2):
            seg = rw
            w = vr(V_WF + buf*16 + (hh*2 + seg)*4)
            x = vr(V_HF + buf*4)
            d = vr(V_HACC + hh*4)
            c = "0" if ks == 0 else d
            a, b = (w, x) if seg == 0 else (x, w)
            out.append((f"v_mfma_f32_16x16x32_bf16 {d}, {a}, {b}, {c}", [("x", ks, 4)]))
    if (ks >> 1) < QE:
        for hh in range(2):
            for Tl in range(4):
                d = vr(V_QACC + (hh*4 + Tl)*4)
                out.append((f"v_mfma_f32_16x16x32_bf16 {d}, {vr(V_QF + buf*8 + hh*4)}, {vr(xf(Tl, ks), 4, 'a')}, {'0' if ks == 0 else d}", [("q", hh, ks)]))
    return out

def q_read(hh, ks, slot):
    out = []
    for t in range(2):
        reg, off = ldsaddr(V_WR + 3*hh, wq_base(ks >> 1) + (ks & 1)*8192 + t*512)
        d = V_WF + slot*4 + t*2
        out.append(("lds", ("q", hh, ks), f"ds_read_b64_tr_b16 v[{d}:{d+1}], {reg} offset:{off}"))
    return out

def phi_list(regs, tmp, pk=False):
    out = []
    if pk:
        for i in range(0, len(regs), 2): out.append(f"v_pk_mul_f32 v[{tmp+i}:{tmp+i+1}], v[{regs[i]}:{regs[i]+1}], s[18:19]")
        for i, r in enumerate(regs):
            out.append(f"v_exp_f32 v{tmp+i}, v{tmp+i} clamp")
            out.append(f"v_max_f32 v{r}, s{S_EPS}, v{r}")
        for i in range(0, len(regs), 2): out.append(f"v_pk_add_f32 v[{regs[i]}:{regs[i]+1}], v[{regs[i]}:{regs[i]+1}], v[{tmp+i}:{tmp+i+1}]")
        return out
    for i, r in enumerate(regs): out.append(f"v_mul_f32 v{tmp+i}, s{S_L2E}, v{r}")
    for i, r in enumerate(regs):
        out.append(f"v_exp_f32 v{tmp+i}, v{tmp+i} clamp")
        out.append(f"v_max_f32 v{r}, s{S_EPS}, v{r}")
    for i, r in enumerate(regs): out.append(f"v_add_f32 v{r}, v{r}, v{tmp+i}")
    return out

def npf_left(opt, c):
    return opt.pf_first + opt.pf_init + 1 + c < 8

def phase1_path(g, br, rw):
    A = g.A
    opt = g.opt
    halo = (br == 0)
    tag = f"{br}{rw}"
    g.vm = VM(); g.lds = []
    if opt.pf == 4:
        for it in chunk_dmas(g, 0, halo): g.emit(it)
        pf4_post(g)
        for _ in range(opt.pf_init): g.emit(pf4_item())
    else:
        for c in range(2):
            for it in chunk_dmas(g, c, halo): g.emit(it)
    g.stamp(1)
    if opt.pf == 3:
        pf3_setup(g)
        for _ in range(opt.pf_init): g.emit(pf3_item())
    if opt.warmcode:
        A("s_getpc_b64 s[68:69]")
        g.label(f"L_wc_{tag}")
        A(f"s_lshl_b32 s{S_T0}, s{S_CW}, 13")
        A(f"v_lshlrev_b32 v2, 7, v{V_L}")
        A(f"v_add_u32 v3, s{S_T0}, v2")
        A(f"v_min_u32 v3, L_end-L_wc_{tag}, v3")
        g.emit(("vm", "pf", [f"global_load_dword v{V_PF0}, v3, s[68:69]"]))
        A(f"v_add_u32 v3, L_phase2-L_wc_{tag}, v2")
        A(f"v_min_u32 v3, L_end-L_wc_{tag}, v3")
        g.emit(("vm", "pf", [f"global_load_dword v{V_PF1}, v3, s[68:69]"]))
    if opt.pf == 4:
        for it in chunk_dmas(g, 1, halo): g.emit(it)
    setup2(g, br, rw)
    if opt.pf in (1, 2): pf_setup(g)
    npf = opt.pf_first
    if opt.pre3:
        for it in chunk_dmas(g, 2, halo): g.emit(it)
    g.vmwait(("c", 0))
    A("s_barrier")
    g.stamp(2)
    for it in kv_reads(0, halo): g.emit(it)
    dq = []
    if not opt.pre3: dq += chunk_dmas(g, 2, halo)
    dq += chunk_dmas(g, 3, halo)
    pfi = [("vm", "pf", [f"buffer_load_dword v{V_PF0}, v{V_PF0}, {sX}, s{S_PFX} offen{PFPOL}"]),
           ("vm", "pf", [f"buffer_load_dword v{V_PF1}, v{V_PF1}, {sW}, s{S_PFW} offen{PFPOL}"])]
    if opt.pf == 3 and opt.pf_first + opt.pf_init < 8: dq.insert(0, pf3_item())
    if opt.pf == 4 and opt.pf_first + opt.pf_init < 8: dq.insert(opt.pf_pos, pf4_item())
    if opt.pf == 1: dq = pfi + dq
    if opt.pf == 2: dq = dq[:9] + pfi + dq[9:]
    for ks in range(16):
        c = ks >> 1
        mf = kv_mfmas(ks, br, rw)
        ev = opt.dma_every if len(dq) <= 10 else opt.dma_fast
        if ks & 1:
            run_slots(g, mf[:opt.bar_after], [], dma=dq, dma_every=ev, dma_phase=1)
            while dq and (dq[0][1] == "pf" or dq[0][1][1] <= c + 1): g.emit(dq.pop(0))
            g.ldsall()
            g.vmwait(("c", c + 1))
            A("s_barrier")
            g.stamp(3 + c, kv=True)
            rd = kv_reads(ks + 1, halo) if ks < 15 else q_read(0, 2*QE, 0) + q_read(0, 2*QE + 1, 1) + q_read(0, 2*QE + 2, 2)
            nc = c + 4
            if c + 1 == opt.wo_at:
                dq.insert(0, ("vm", "pf", [f"v_lshrrev_b32 v2, 2, v{V_L}", "v_lshlrev_b32 v2, 10, v2", f"v_and_b32 v3, 3, v{V_L}",
                    "v_lshl_add_u32 v2, v3, 7, v2",
                    f"s_lshl_b32 s{S_T0}, s{S_IDX}, 14", f"s_lshl_b32 s{S_T1}, s{S_WV}, 12", f"s_add_u32 s{S_T0}, s{S_T0}, s{S_T1}",
                    f"s_and_b32 s{S_T1}, s{S_XCD}, 1", f"s_lshl_b32 s{S_T1}, s{S_T1}, 9", f"s_add_u32 s{S_T0}, s{S_T0}, s{S_T1}",
                    "s_mov_b64 exec, 0xffff", f"buffer_load_dword v{V_WO}, v2, {sWO}, s{S_T0} offen{PFPOL}", "s_mov_b64 exec, -1"]))
            if c + 1 == opt.wc_at:
                dq.insert(0, ("vm", "pf", ["s_getpc_b64 s[68:69]", f"L_wc_{tag}:", f"v_lshlrev_b32 v2, 7, v{V_L}",
                    f"s_lshl_b32 s{S_T0}, s{S_CW}, 13", f"v_add_u32 v2, s{S_T0}, v2",
                    f"v_add_u32 v3, L_q_{tag}-L_wc_{tag}, v2", f"v_add_u32 v2, {'L_phase2-L_wc_' + tag}-8192, v2",
                    f"s_cmp_eq_u32 s{S_CW}, 0", "s_cselect_b64 vcc, -1, 0", "v_cndmask_b32 v3, v2, v3, vcc",
                    f"v_min_u32 v3, L_end-L_wc_{tag}, v3",
                    f"global_load_dword v{V_PF0}, v3, s[68:69]"]))
            if opt.pf == 3 and npf_left(opt, c): dq.insert(0, pf3_item())
            if nc < 12: dq += chunk_dmas(g, nc, halo)
            if opt.pf == 4 and npf_left(opt, c): dq.insert(min(opt.pf_pos, len(dq)), pf4_item())
            run_slots(g, mf[opt.bar_after:], [rd], cap=opt.cap, dma=dq, dma_every=ev, dma_phase=ev - 1)
            for it in rd: g.emit(it)
        else:
            rd = kv_reads(ks + 1, halo)
            run_slots(g, mf, [rd], cap=opt.cap_even, dma=dq, dma_every=ev, dma_phase=ev - 1)
            for it in rd: g.emit(it)
    g.stamp(3)
    g.label(f"L_q_{tag}")
    S1 = []; P = S1.append
    if br == 0:
        order = [2, 3, 0, 1] if rw == 0 else [0, 1, 2, 3]
        if rw == 1:
            for hh in range(2):
                h = V_HACC + hh*4
                P(f"v_cvt_pk_bf16_f32 v{4+hh*2}, v{h}, v{h+1}"); P(f"v_cvt_pk_bf16_f32 v{5+hh*2}, v{h+2}, v{h+3}")
                P(("lds", "xw", f"ds_write_b64 v{V_XA}, v[{4+hh*2}:{5+hh*2}] offset:{4096 + hh*512}"))
        for Tl in order:
            for hh in range(2):
                k = acc(Tl, hh, 0); v = acc(Tl, hh, 1)
                kp = V_KP + (Tl*2 + hh)*2
                vp = V_VP + ((Tl & 1)*2 + hh)*6 + 2 + (Tl >> 1)*2
                P(f"v_cvt_pk_bf16_f32 v{kp}, v{k}, v{k+1}"); P(f"v_cvt_pk_bf16_f32 v{kp+1}, v{k+2}, v{k+3}")
                P(f"v_cvt_pk_bf16_f32 v{vp}, v{v}, v{v+1}"); P(f"v_cvt_pk_bf16_f32 v{vp+1}, v{v+2}, v{v+3}")
                if rw == 0 and Tl >= 2:
                    p = Tl & 1
                    P(("lds", "xw", f"ds_write_b64 v{V_XA}, v[{kp}:{kp+1}] offset:{(p*2+hh)*1024}"))
                    P(("lds", "xw", f"ds_write_b64 v{V_XA}, v[{vp}:{vp+1}] offset:{(p*2+hh)*1024+512}"))
        if rw == 0:
            for hh in range(2):
                h = V_HACC + hh*4
                P(f"v_cvt_pk_bf16_f32 v{V_KPREV+hh*2}, v{h}, v{h+1}"); P(f"v_cvt_pk_bf16_f32 v{V_KPREV+hh*2+1}, v{h+2}, v{h+3}")
        S1b = []
        for p in range(2):
            for hh in range(2):
                vp = V_VP + (p*2 + hh)*6
                if rw == 0:
                    S1b.append(("lds", "xr", f"ds_read_b64 v[{vp}:{vp+1}], v{V_XA} offset:{4096 + hh*512}"))
                else:
                    kp = V_KPREV + (p*2 + hh)*2
                    S1b.append(("lds", "xr", f"ds_read_b64 v[{kp}:{kp+1}], v{V_XA} offset:{(p*2+hh)*1024}"))
                    S1b.append(("lds", "xr", f"ds_read_b64 v[{vp}:{vp+1}], v{V_XA} offset:{(p*2+hh)*1024+512}"))
    else:
        PK, VV = V_VP, V_VP + 16
        TMP = V_QACC + 16 if QE == 0 else V_KP
        KVR = V_HACC; KVO = V_HF
        oth = 1 - rw
        for hh in (oth, rw):
            regs = [acc(Tl, hh, 0) + r for Tl in range(4) for r in range(4)]
            S1 += phi_list(regs, TMP, opt.pk)
            for Tl in range(4):
                k = acc(Tl, hh, 0); v = acc(Tl, hh, 1)
                P(f"v_cvt_pk_bf16_f32 v{PK+hh*8+Tl*2}, v{k}, v{k+1}"); P(f"v_cvt_pk_bf16_f32 v{PK+hh*8+Tl*2+1}, v{k+2}, v{k+3}")
                P(f"v_cvt_pk_bf16_f32 v{VV+hh*8+Tl*2}, v{v}, v{v+1}"); P(f"v_cvt_pk_bf16_f32 v{VV+hh*8+Tl*2+1}, v{v+2}, v{v+3}")
            R = KVR if hh == rw else KVO
            d = vr(R); z = vr(R + 4)
            P(f"v_mfma_f32_16x16x32_bf16 {d}, {vr(PK+hh*8)}, {vr(VV+hh*8)}, 0")
            P(f"v_mfma_f32_16x16x32_bf16 {z}, {vr(PK+hh*8)}, {vr(V_ONES)}, 0")
            P(f"v_mfma_f32_16x16x32_bf16 {d}, {vr(PK+hh*8+4)}, {vr(VV+hh*8+4)}, {d}")
            P(f"v_mfma_f32_16x16x32_bf16 {z}, {vr(PK+hh*8+4)}, {vr(V_ONES)}, {z}")
            if hh == oth: wr_pos = len(S1) + 12
        S1.insert(wr_pos, ("lds", "xw", f"ds_write_b128 v{V_XA}, {vr(KVO)} offset:{rw*2048}"))
        S1.insert(wr_pos + 1, ("lds", "xw", f"ds_write_b128 v{V_XA}, {vr(KVO+4)} offset:{rw*2048+1024}"))
        S1b = [("lds", "xr", f"ds_read_b128 {vr(V_ACC)}, v{V_XA} offset:{oth*2048}"),
               ("lds", "xr", f"ds_read_b128 {vr(V_ACC+4)}, v{V_XA} offset:{oth*2048+1024}"),
               f"s_add_u32 s{S_TAG}, s{S_EK}, 1", f"s_and_b32 s{S_TAG}, s{S_TAG}, 0x7f", f"s_or_b32 s{S_TAG}, s{S_TAG}, 0x80",
               f"v_mov_b32 v4, s{S_TAG}", "v_mov_b32 v5, 0xff",
               f"v_lshrrev_b32 v3, 4, v{V_L}", "v_lshlrev_b32 v3, 4, v3",
               ("need", "xr")]
        for r in range(0, 8, 2): S1b.append(f"v_pk_add_f32 v[{KVR+r}:{KVR+r+1}], v[{KVR+r}:{KVR+r+1}], v[{V_ACC+r}:{V_ACC+r+1}]")
        for r in range(0, 8, opt.tagstep): S1b.append(f"v_bfi_b32 v{KVR+r}, v5, v4, v{KVR+r}")
        S1b.append(("vm", "kvst", [f"buffer_store_dwordx4 {vr(KVR)}, v{V_L16}, {sWS}, s{S_KVS} offen sc1"]))
        S1b.append(("vm", "kvst", ["s_mov_b32 s68, 0x00010001", "s_mov_b32 s69, 0x00010001", "s_mov_b64 exec, s[68:69]",
                    f"buffer_store_dwordx4 {vr(KVR+4)}, v3, {sWS}, s{S_ZS} offen sc1", "s_mov_b64 exec, -1"]))
        S1b.append(("stamp", 4))
    OUTR = V_ACC + 48
    def attention(hh):
        o_ = []; P = o_.append
        U = lambda u: V_ACC + 12*u
        QP = V_HACC
        for u in range(4):
            q = V_QACC + (hh*4 + u)*4
            P(f"v_cvt_pk_bf16_f32 v{QP+2*u}, v{q}, v{q+1}"); P(f"v_cvt_pk_bf16_f32 v{QP+2*u+1}, v{q+2}, v{q+3}")
        P(("need", "xr"))
        for u in range(4):
            tl, p = u >> 1, u & 1
            ko = V_KP + (u*2 + hh)*2
            if tl == 1: kpv, mp = V_KP + ((u-2)*2 + hh)*2, V_MPREV
            elif rw == 1: kpv, mp = V_KPREV + (p*2 + hh)*2, V_MPREV
            else: kpv, mp = V_KPREV + hh*2, V_MHALO + 4*p
            P(f"v_mfma_f32_16x16x16_bf16 {vr(U(u))}, v[{ko}:{ko+1}], v[{QP+2*u}:{QP+2*u+1}], {vr(V_MOWN)}")
            P(f"v_mfma_f32_16x16x16_bf16 {vr(U(u)+4)}, v[{kpv}:{kpv+1}], v[{QP+2*u}:{QP+2*u+1}], {vr(mp)}")
        for u in range(4):
            for r in range(4): P(f"v_max_f32 v{U(u)+r}, v{U(u)+r}, v{U(u)+4+r}")
        for u in range(4): P(f"v_max3_f32 v{U(u)+4}, v{U(u)}, v{U(u)+1}, v{U(u)+2}")
        for u in range(4): P(f"v_max_f32 v{U(u)+4}, v{U(u)+4}, v{U(u)+3}")
        for sw in ("v_permlane32_swap_b32", "v_permlane16_swap_b32"):
            for u in range(4): P(f"v_mov_b32 v{U(u)+5}, v{U(u)+4}")
            for u in range(4): P(f"{sw} v{U(u)+4}, v{U(u)+5}")
            for u in range(4): P(f"v_max_f32 v{U(u)+4}, v{U(u)+4}, v{U(u)+5}")
        for u in range(4): P(f"v_mul_f32 v{U(u)+4}, s{S_NC}, v{U(u)+4}")
        pk = opt.pk and (hh == 1 or opt.pk > 1)
        for u in range(4):
            if pk:
                for r in (0, 2): P(f"v_pk_fma_f32 v[{U(u)+r}:{U(u)+r+1}], v[{U(u)+r}:{U(u)+r+1}], s[96:97], v[{U(u)+4}:{U(u)+5}] op_sel_hi:[1,1,0]")
            else:
                for r in range(4): P(f"v_fma_f32 v{U(u)+r}, v{U(u)+r}, s{S_C}, v{U(u)+4}")
        for u in range(4):
            for r in range(4): P(f"v_exp_f32 v{U(u)+r}, v{U(u)+r}")
        for u in range(4):
            P(f"v_cvt_pk_bf16_f32 v{U(u)+4}, v{U(u)}, v{U(u)+1}"); P(f"v_cvt_pk_bf16_f32 v{U(u)+5}, v{U(u)+2}, v{U(u)+3}")
        for u in range(4):
            P(f"v_and_b32 v{U(u)+10}, v{U(u)+4}, v{V_BM}"); P(f"v_and_b32 v{U(u)+11}, v{U(u)+5}, v{V_BM+1}")
            P(f"v_xor_b32 v{U(u)+8}, v{U(u)+4}, v{U(u)+10}"); P(f"v_xor_b32 v{U(u)+9}, v{U(u)+5}, v{U(u)+11}")
        for u in range(4):
            q = V_QACC + (hh*4 + u)*4
            P(f"v_mfma_f32_16x16x16_bf16 {vr(q)}, v[{V_ONES}:{V_ONES+1}], v[{U(u)+4}:{U(u)+5}], 0")
        for u in range(4):
            tl, p = u >> 1, u & 1
            vp = V_VP + (p*2 + hh)*6 + 2*tl
            P(f"v_mfma_f32_16x16x32_bf16 {vr(U(u))}, {vr(vp)}, {vr(U(u)+8)}, 0")
        for u in range(4):
            q = V_QACC + (hh*4 + u)*4
            P(f"v_rcp_f32 v{q}, v{q}")
        for u in range(4):
            q = V_QACC + (hh*4 + u)*4
            if pk:
                for r in (0, 2): P(f"v_pk_mul_f32 v[{U(u)+r}:{U(u)+r+1}], v[{U(u)+r}:{U(u)+r+1}], v[{q}:{q+1}] op_sel_hi:[1,0]")
            else:
                for r in range(4): P(f"v_mul_f32 v{U(u)+r}, v{U(u)+r}, v{q}")
        for u in range(4):
            o = OUTR + u*4 + hh*2
            P(f"v_cvt_pk_bf16_f32 v{o}, v{U(u)}, v{U(u)+1}"); P(f"v_cvt_pk_bf16_f32 v{o+1}, v{U(u)+2}, v{U(u)+3}")
        return o_
    PQ = V_KP
    def phi_q(hh, tmp):
        o_ = phi_list([V_QACC + hh*16 + i for i in range(16)], tmp, opt.pk and (hh == 1 or opt.pk > 1))
        for Tl in range(4):
            q = V_QACC + (hh*4 + Tl)*4
            o_.append(f"v_cvt_pk_bf16_f32 v{PQ+hh*8+Tl*2}, v{q}, v{q+1}"); o_.append(f"v_cvt_pk_bf16_f32 v{PQ+hh*8+Tl*2+1}, v{q+2}, v{q+3}")
        return o_
    PB = V_ACC
    def gather_items():
        it = []
        for j in range(16):
            pre = [f"s_add_u32 s{S_T2}, s{S_T0}, {j*1024}"] if j % 4 == 0 else []
            it.append(("vm", ("gat", j), pre + [f"buffer_load_dwordx4 {vr(PB+4*j)}, v{V_L16}, {sWS}, s{S_T2} offen offset:{(j%4)*1024} sc1"]))
        it.append(("vm", ("gat", 16), [f"buffer_load_dwordx4 {vr(V_HACC)}, v3, {sWS}, s{S_T1} offen sc1"]))
        return it
    gat_setup = [f"s_lshl_b32 s{S_T0}, s{S_HEAD}, 14", f"s_add_u32 s{S_T0}, s{S_T0}, {WS_KV}",
                 f"s_lshl_b32 s{S_T1}, s{S_HEAD}, 10", f"s_add_u32 s{S_T1}, s{S_T1}, {WS_Z}",
                 f"v_and_b32 v3, 15, v{V_L}", "v_lshlrev_b32 v3, 6, v3",
                 f"v_lshrrev_b32 v4, 4, v{V_L}", "v_lshl_add_u32 v3, v4, 4, v3"]
    S2 = attention(0) if br == 0 else phi_q(0, V_VP)

    K0 = 2*QE
    NH = 16 - K0
    seq = [(hh, ks) for hh in range(2) for ks in range(K0, 16)]
    PRE = 3
    B9 = 8 - PRE
    side = list(S1)
    sync_done = False
    capA = -(-sum(cost(x) for x in S1) // (4 * B9)) + 1
    gq = []
    for n, (hh, ks) in enumerate(seq):
        slot = n % 8
        if n == NH:
            for it in side: g.emit(it)
            side = list(S2)
        if n == B9:
            if br == 0:
                for it in side: g.emit(it)
                side = list(S1b)
            while dq and dq[0][1][1] <= 9: g.emit(dq.pop(0))
            g.ldsall()
            g.vmwait(("c", 9))
            A("s_barrier")
        if br == 1 and not sync_done and ((not side and (n > B9 or opt.early_sync)) or n == NH - 1):
            for it in side: g.emit(it)
            g.ldsall()
            A("s_barrier")
            side = list(S1b); sync_done = True
        if br == 1 and n == opt.gat_at:
            for it in side: g.emit(it)
            side = []
            for it in gat_setup: g.emit(it)
            gq = gather_items()
        rd = q_read(*seq[n + PRE], (n + PRE) % 8) if n + PRE < len(seq) else []
        mf = []
        for Tl in range(4):
            d = vr(V_QACC + (hh*4 + Tl)*4)
            c = "0" if ks == 0 else d
            mf.append((f"v_mfma_f32_16x16x32_bf16 {d}, {vr(V_WF + slot*4)}, {vr(xf(Tl, ks), 4, 'a')}, {c}", [("q", hh, ks)]))
        cap = (capA if br == 0 else opt.b_cap) if n < NH else opt.cap2
        if gq: run_slots(g, mf, [rd, side], cap=cap, dma=gq, dma_every=opt.gat_every, dma_phase=0)
        else: run_slots(g, mf, [rd, side], cap=cap, dma=dq, dma_every=4, dma_phase=3)
        for it in rd: g.emit(it)
    for it in side: g.emit(it)
    for it in dq: g.emit(it)
    for it in gq: g.emit(it)
    gq = []
    g.stamp(5)
    if opt.d2late:
        d2 = []
    else:
        g.ldsall()
        g.vmwait(("c", 11))
        A("s_barrier")
        d2 = chunk_dmas(g, 12, False) + chunk_dmas(g, 13, False)
    def with_dma(items, every):
        k = 0
        for it in items:
            g.emit(it); k += 1
            if k % every == 0 and d2: g.emit(d2.pop(0))
    def spin_guard(lbl_out):
        A(f"s_sub_u32 s{S_SPIN}, s{S_SPIN}, 1")
        A(f"s_cbranch_scc1 {lbl_out}")
    if br == 0:
        with_dma(attention(1), 9)
        for it in d2: g.emit(it)
    else:
        if opt.gat_at >= 2*NH:
            for it in gat_setup: g.emit(it)
            for it in gather_items(): g.emit(it)
        A(f"v_mov_b32 v6, s{S_TAG}")
        with_dma(phi_q(1, V_WF), 9)
        g.stamp(6)
        SUM = V_WF + 16
        def chk_sum(first):
            for j in range(16):
                if first: g.vmwait(("gat", j))
                b = PB + 4*j
                for k_, r in enumerate(range(0, 4, opt.tagstep)):
                    a_ = "0" if (j == 0 and k_ < 2) else f"v{4+(k_&1)}"
                    A(f"v_msad_u8 v{4+(k_&1)}, v{b+r}, v6, {a_}")
                for r in range(0, 4, 2):
                    if j == 0: A(f"v_pk_add_f32 v[{SUM+r}:{SUM+r+1}], v[{b+r}:{b+r+1}], v[{b+4+r}:{b+5+r}]") if False else None
                    if j == 1: A(f"v_pk_add_f32 v[{SUM+r}:{SUM+r+1}], v[{PB+r}:{PB+r+1}], v[{b+r}:{b+r+1}]")
                    elif j > 1: A(f"v_pk_add_f32 v[{SUM+r}:{SUM+r+1}], v[{SUM+r}:{SUM+r+1}], v[{b+r}:{b+r+1}]")
                if first and d2 and j % 2 == 1: g.emit(d2.pop(0))
            if first: g.vmwait(("gat", 16))
            for k_, r in enumerate(range(0, 4, opt.tagstep)): A(f"v_msad_u8 v{4+(k_&1)}, v{V_HACC+r}, v6, v{4+(k_&1)}")
            A("v_or_b32 v4, v4, v5")
            A("v_cmp_ne_u32 vcc, 0, v4")
        chk_sum(True)
        for it in d2: g.emit(it)
        A(f"s_cbranch_vccz L_kvok_{tag}")
        g.label(f"L_kvretry_{tag}")
        spin_guard(f"L_kvok_{tag}")
        A(f"s_sleep {opt.kv_sleep}")
        sv = g.vm; g.vm = VM()
        for it in gather_items(): g.emit(it)
        g.vm = sv
        A("s_waitcnt vmcnt(0)")
        chk_sum(False)
        A(f"s_cbranch_vccnz L_kvretry_{tag}")
        g.label(f"L_kvok_{tag}")
        g.stamp(7)
        for rot in (8, 4, 2, 1):
            for r in range(4):
                A(f"v_add_f32_dpp v{V_HACC+r}, v{V_HACC+r}, v{V_HACC+r} row_ror:{rot} row_mask:0xf bank_mask:0xf")
        KZ = V_WF
        A(f"v_cvt_pk_bf16_f32 v{KZ+rw*4}, v{SUM}, v{SUM+1}"); A(f"v_cvt_pk_bf16_f32 v{KZ+rw*4+1}, v{SUM+2}, v{SUM+3}")
        A(f"v_cvt_pk_bf16_f32 v{KZ+rw*4+2}, v{V_HACC}, v{V_HACC+1}"); A(f"v_cvt_pk_bf16_f32 v{KZ+rw*4+3}, v{V_HACC+2}, v{V_HACC+3}")
        A(f"ds_write_b128 v{V_XA}, {vr(KZ+rw*4)} offset:{4096 + rw*1024}")
        NUM = V_ACC; DEN = V_QACC
        def omf(hh):
            for Tl in range(4):
                u = hh*4 + Tl; pq = PQ + hh*8 + Tl*2
                A(f"v_mfma_f32_16x16x16_bf16 {vr(DEN+4*u)}, v[{KZ+hh*4+2}:{KZ+hh*4+3}], v[{pq}:{pq+1}], 0")
                A(f"v_mfma_f32_16x16x16_bf16 {vr(NUM+4*u)}, v[{KZ+hh*4}:{KZ+hh*4+1}], v[{pq}:{pq+1}], 0")
        def ofin(us):
            for u in us: A(f"v_add_f32 v{DEN+4*u}, s{S_EPS}, v{DEN+4*u}")
            for u in us: A(f"v_rcp_f32 v{DEN+4*u}, v{DEN+4*u}")
            for u in us:
                for r in (0, 2): A(f"v_pk_mul_f32 v[{NUM+4*u+r}:{NUM+4*u+r+1}], v[{NUM+4*u+r}:{NUM+4*u+r+1}], v[{DEN+4*u}:{DEN+4*u+1}] op_sel_hi:[1,0]")
            for u in us:
                hh, Tl = u >> 2, u & 3
                o = OUTR + Tl*4 + hh*2
                A(f"v_cvt_pk_bf16_f32 v{o}, v{NUM+4*u}, v{NUM+4*u+1}"); A(f"v_cvt_pk_bf16_f32 v{o+1}, v{NUM+4*u+2}, v{NUM+4*u+3}")
        omf(rw)
        A("s_waitcnt lgkmcnt(0)")
        A("s_barrier")
        A(f"ds_read_b128 {vr(KZ+(1-rw)*4)}, v{V_XA} offset:{4096 + (1-rw)*1024}")
        ofin([rw*4 + i for i in range(4)])
        A("s_waitcnt lgkmcnt(0)")
        omf(1 - rw)
        if rw == 0:
            A(f"s_or_b32 s{S_T2}, s{S_RB}, s{S_CW}")
            A(f"s_cmp_lg_u32 s{S_T2}, 0")
            A(f"s_cbranch_scc1 L_nobk_{tag}")
            A(f"s_add_u32 s{S_T2}, s{S_EK}, 1")
            A(f"v_mov_b32 v4, s{S_T2}"); A("v_mov_b32 v5, 0")
            A("s_mov_b64 exec, 1")
            A(f"buffer_store_dword v4, v5, {sWS}, s{S_EKA} offen sc1")
            A("s_mov_b64 exec, -1")
            g.label(f"L_nobk_{tag}")
        ofin([(1-rw)*4 + i for i in range(4)])
    for Tl in range(4):
        A(f"s_add_u32 s{S_T2}, s{S_OST}, {Tl*16384}")
        A(f"buffer_store_dwordx4 {vr(OUTR+4*Tl)}, v{V_L16}, {sWS}, s{S_T2} offen sc1")
    g.stamp(8)
    A("s_branch L_phase2")

def phase2(g):
    A = g.A
    opt = g.opt
    g.label("L_phase2")
    g.lds = []; g.vm = VM()
    OF = 64; ACC = 128; VR0 = 20
    l = f"v{V_L}"
    A(f"v_and_b32 v2, 15, {l}"); A(f"v_lshrrev_b32 v3, 4, {l}")
    A("v_lshrrev_b32 v4, 2, v2"); A("v_and_b32 v5, 3, v2")
    A("v_lshl_add_u32 v6, v3, 2, v4")
    A("v_and_b32 v7, 7, v6")
    A("v_lshlrev_b32 v6, 8, v6"); A("v_lshl_add_u32 v6, v5, 3, v6"); A("v_lshl_add_u32 v6, v7, 5, v6")
    for c in range(8):
        A(f"v_xor_b32 v{VR0+2*c}, {c*32}, v6")
        A(f"v_add_u32 v{VR0+2*c+1}, 65536, v{VR0+2*c}")
    NV = opt.p2_nv
    def freg(hp, c):
        if hp < 8: return ("a", (hp*8 + c)*4)
        if hp < 8 + NV: return ("v", 160 + ((hp - 8)*8 + c)*4)
        return ("a", ((hp - 8 - NV)*8 + c)*4)
    def rd(hp, c):
        out = []
        k_, a = freg(hp, c)
        for t in range(2):
            const = WOB[hp >> 2] + (hp & 3)*8192 + t*4096
            out.append(("lds", ("o", hp, c), f"ds_read_b64_tr_b16 {k_}[{a+2*t}:{a+2*t+1}], v{VR0 + 2*c + (const >> 16)} offset:{const & 0xffff}"))
        return out
    def preload(hps):
        for hp in hps:
            for c in range(8):
                for it in rd(hp, c): g.emit(it)
                if len(g.lds) >= 12: g.need(g.lds[3])
    A(f"s_add_u32 s{S_T0}, s{S_EO}, 1")
    A(f"v_mov_b32 v6, s{S_T0}"); A(f"v_mov_b32 v7, s{S_EO+1}")
    A("v_mov_b32 v5, 0")
    A("v_lshlrev_b32 v8, 3, v2")
    A("v_lshlrev_b32 v2, 12, v2")
    A("v_and_b32 v4, 1, v3"); A("v_lshl_add_u32 v2, v4, 5, v2")
    A("v_lshrrev_b32 v4, 1, v3"); A("v_lshl_add_u32 v2, v4, 4, v2")
    A(f"s_lshl_b32 s{S_XB}, s{S_RB}, 18")
    A(rh_(g, S_T1)); A(f"s_lshl_b32 s{S_T1}, s{S_T1}, 17"); A(f"s_add_u32 s{S_XB}, s{S_XB}, s{S_T1}")
    A(f"s_lshl_b32 s{S_T1}, s{S_RW}, 16"); A(f"s_add_u32 s{S_XB}, s{S_XB}, s{S_T1}")
    A(f"s_lshl_b32 s{S_T1}, s{S_CW}, 11"); A(f"s_add_u32 s{S_XB}, s{S_XB}, s{S_T1}")
    A(f"s_lshl_b32 s{S_T1}, s{S_BR}, 10"); A(f"s_add_u32 s{S_XB}, s{S_XB}, s{S_T1}")
    A(cs_(g, S_T1)); A(f"s_lshl_b32 s{S_T1}, s{S_T1}, 8"); A(f"s_add_u32 s{S_XB}, s{S_XB}, s{S_T1}")
    if opt.d2late:
        A("s_waitcnt vmcnt(4)")
        A("s_barrier")
        d2 = chunk_dmas(g, 12, False) + chunk_dmas(g, 13, False)
        preload(range(opt.p2_pre1))
        A("s_waitcnt vmcnt(0)")
        A("s_mov_b64 exec, 1")
        A(f"buffer_store_dwordx2 v[6:7], v5, {sWS}, s{S_FLO} offen sc1")
        A("s_mov_b64 exec, -1")
        g.stamp(9)
        for hp in range(opt.p2_pre1, 8):
            for c in range(8):
                for it in rd(hp, c): g.emit(it)
                if d2: g.emit(d2.pop(0))
                if len(g.lds) >= 12: g.need(g.lds[3])
        for it in d2: g.emit(it)
        A("s_waitcnt vmcnt(0)")
        A("s_barrier")
        preload(range(8, 8 + NV))
        g.ldsall()
    else:
        preload(range(opt.p2_pre1))
        A("s_waitcnt vmcnt(0)")
        A("s_mov_b64 exec, 1")
        A(f"buffer_store_dwordx2 v[6:7], v5, {sWS}, s{S_FLO} offen sc1")
        A("s_mov_b64 exec, -1")
        g.stamp(9)
        A("s_barrier")
        preload(range(opt.p2_pre1, 8 + NV))
        g.ldsall()
    A(f"s_cmp_lg_u32 s{S_WV}, 0")
    A("s_cbranch_scc1 L_ook")
    if opt.poll0: A(f"s_sleep {opt.poll0}")
    A("s_branch L_opoll1")
    g.label("L_opoll")
    A(f"s_sub_u32 s{S_SPIN}, s{S_SPIN}, 1")
    A("s_cbranch_scc1 L_ook")
    A(f"s_sleep {opt.poll1}")
    g.label("L_opoll1")
    A(f"buffer_load_dwordx2 v[10:11], v8, {sWS}, s{S_FLN} offen sc1")
    A("s_waitcnt vmcnt(0)")
    A("v_cmp_ne_u64 vcc, v[10:11], v[6:7]")
    A("s_cbranch_vccnz L_opoll")
    g.label("L_ook")
    A("s_waitcnt vmcnt(0)")
    g.vm = VM()
    A("s_barrier")
    g.stamp(10)
    lq = []
    for hp in range(16):
        pre = [f"s_add_u32 s{S_T2}, s{S_OLD}, {hp*1024}"] if hp % 4 == 0 else []
        lq.append(("vm", ("of", hp), pre + [f"buffer_load_dwordx4 {vr(OF + 4*hp)}, v{V_L16}, {sWS}, s{S_T2} offen offset:{(hp % 4)*1024} sc1"]))
    for it in lq[:opt.p2_first]: g.emit(it)
    lq = lq[opt.p2_first:]
    rq = []
    for hp in range(16):
        while lq and lq[0][1][1] <= hp: g.emit(lq.pop(0))
        while rq and rq[0][1][1] <= hp: g.emit(rq.pop(0))
        g.vmwait(("of", hp))
        if hp % 4 == 0: g.stamp(3 + hp//4, kv="p2")
        mf = []
        for c in range(8):
            d = vr(ACC + 4*c)
            k_, a = freg(hp, c)
            mf.append((f"v_mfma_f32_16x16x32_bf16 {d}, {vr(a, 4, k_)}, {vr(OF + 4*hp)}, {'0' if hp == 0 else d}", [("o", hp, c)]))
        if hp >= 1 and hp - 1 + 8 + NV < 16:
            for c in range(8): rq += rd(hp - 1 + 8 + NV, c)
        run_slots(g, mf, [rq], cap=opt.p2_cap, dma=lq, dma_every=opt.p2_every, dma_phase=0)
    g.stamp(7, kv="p2")
    A(f"s_or_b32 s{S_T2}, s{S_HG}, s{S_WV}")
    A(f"s_cmp_lg_u32 s{S_T2}, 0")
    A("s_cbranch_scc1 L_nobo")
    A("s_mov_b64 exec, 1")
    A(f"buffer_store_dword v6, v5, {sWS}, s{S_EOA} offen sc1")
    A("s_mov_b64 exec, -1")
    g.label("L_nobo")
    for cp in range(4):
        o = 64 + cp*4
        for h in range(2):
            a = ACC + (2*cp + h)*4
            A(f"v_cvt_pk_bf16_f32 v{o+2*h}, v{a}, v{a+1}"); A(f"v_cvt_pk_bf16_f32 v{o+2*h+1}, v{a+2}, v{a+3}")
    for cp in range(4):
        o = 64 + cp*4
        A(f"v_permlane16_swap_b32 v{o}, v{o+2}")
        A(f"v_permlane16_swap_b32 v{o+1}, v{o+3}")
        A(f"buffer_store_dwordx4 {vr(o)}, v2, {sOUT}, s{S_XB} offen offset:{cp*64}{opt.outpol}")
    if opt.stamps:
        A("s_waitcnt vmcnt(0)")
        g.stamp(11)
        A("s_waitcnt lgkmcnt(0)")
        A(f"s_cmp_lg_u32 s{S_WV}, {opt.stamp_wave}")
        A("s_cbranch_scc1 L_end")
        if opt.dbgstamps:
            A("s_load_dwordx2 s[16:17], s[0:1], 56")
            A("v_mov_b32 v100, 0")
            for j in range(12):
                if opt.dbgbr >= 0 or j not in (4, 6, 7):
                    A(f"v_writelane_b32 v100, s{72+2*j}, {j}")
            for j, src in ((12, 0), (13, 2), (14, 3), (15, 11)):
                A(f"s_not_b32 s{S_T0}, s{72+2*src}")
                A(f"v_writelane_b32 v100, s{S_T0}, {j}")
            A("s_waitcnt lgkmcnt(0)")
            A("s_mov_b32 s18, 256"); A("s_mov_b32 s19, 0x20000")
            if opt.dbgbr >= 0:
                A(f"s_cmp_lg_u32 s{S_BR}, {opt.dbgbr}")
                A("s_cbranch_scc1 L_end")
            A(f"v_lshlrev_b32 v3, 2, v{V_L}")
            A("s_mov_b64 exec, 0xffff")
            A("buffer_atomic_umax v100, v3, s[16:19], 0 offen sc1")
            A("s_branch L_end")
        for j in range(24): A(f"v_mov_b32 v{100+j}, s{72+j}")
        A(f"s_mul_i32 s{S_T0}, s2, 96")
        A(f"s_add_u32 s{S_T0}, s{S_T0}, {WS_STAMP}")
        A("v_mov_b32 v3, 0")
        A("s_mov_b64 exec, 1")
        for j in range(6):
            A(f"buffer_store_dwordx4 v[{100+4*j}:{103+4*j}], v3, {sWS}, s{S_T0} offen offset:{16*j}")

def main():
    ap = argparse.ArgumentParser()
    ap.add_argument("-o", default="out.s")
    ap.add_argument("--stamps", type=int, default=0)
    ap.add_argument("--kvstamps", type=int, default=0)
    ap.add_argument("--p2stamps", type=int, default=0)
    ap.add_argument("--dbgstamps", type=int, default=0)
    ap.add_argument("--dbgbr", type=int, default=-1)
    ap.add_argument("--bfirst", type=int, default=0)
    ap.add_argument("--stamp-wave", type=int, default=0)
    ap.add_argument("--bar-after", type=int, default=4)
    ap.add_argument("--nt", type=int, default=0)
    ap.add_argument("--pfnt", type=int, default=0)
    ap.add_argument("--pf", type=int, default=0)
    ap.add_argument("--pre3", type=int, default=0)
    ap.add_argument("--pf-first", type=int, default=2)
    ap.add_argument("--pf-pos", type=int, default=0)
    ap.add_argument("--pf-init", type=int, default=2)
    ap.add_argument("--warmcode", type=int, default=0)
    ap.add_argument("--warmoff", type=int, default=0)
    ap.add_argument("--dma-every", type=int, default=4)
    ap.add_argument("--dma-fast", type=int, default=2)
    ap.add_argument("--cap", type=int, default=2)
    ap.add_argument("--cap-even", type=int, default=1)
    ap.add_argument("--b-cap", type=int, default=5)
    ap.add_argument("--cap2", type=int, default=3)
    ap.add_argument("--gat-at", type=int, default=27)
    ap.add_argument("--gat-every", type=int, default=1)
    ap.add_argument("--kv-sleep", type=int, default=4)
    ap.add_argument("--poll0", type=int, default=8)
    ap.add_argument("--poll1", type=int, default=6)
    ap.add_argument("--outpol", default="")
    ap.add_argument("--p2-first", type=int, default=6)
    ap.add_argument("--p2-every", type=int, default=4)
    ap.add_argument("--early-sync", type=int, default=1)
    ap.add_argument("--rot", type=int, default=7)
    ap.add_argument("--d2late", type=int, default=0)
    ap.add_argument("--qearly", type=int, default=0)
    ap.add_argument("--cmap", type=int, default=1)
    ap.add_argument("--pk", type=int, default=1)
    ap.add_argument("--tagstep", type=int, default=2)
    ap.add_argument("--p2-nv", type=int, default=3)
    ap.add_argument("--p2-pre1", type=int, default=6)
    ap.add_argument("--p2-cap", type=int, default=1)
    ap.add_argument("--wo-at", type=int, default=4)
    ap.add_argument("--wc-at", type=int, default=0)
    opt = ap.parse_args()
    if opt.outpol: opt.outpol = " " + opt.outpol.replace(",", " ")
    g = G(opt)
    global QE
    QE = opt.qearly
    global PFPOL
    PFPOL = " nt" if opt.pfnt else ""
    K = NAME + "_kernel"
    head = ["; generated by gen/gen8.py  " + " ".join(sys.argv[1:]),
            "; @launch grid=(256,1,1) block=(256,1,1) lds=163840",
            '.amdgcn_target "amdgcn-amd-amdhsa--gfx950"', ".text",
            f".globl {K}", ".p2align 8", f".type {K},@function", f"{K}:"]
    A = g.A
    g.stamp(0)
    decode(g)
    A(f"s_lshl_b32 s{S_T0}, s{S_BR}, 1")
    A(f"s_add_u32 s{S_T0}, s{S_T0}, s{S_RW}")
    for v in (1, 2, 3):
        A(f"s_cmp_eq_u32 s{S_T0}, {v}")
        A(f"s_cbranch_scc1 L_path{v}")
    for v in range(4):
        g.label(f"L_path{v}")
        phase1_path(g, v >> 1, v & 1)
    phase2(g)
    g.label("L_end")
    A("s_endpgm")
    body, n = fix_hazards(g.L)
    tail = ['.section .rodata,"a"', ".p2align 6", f".amdhsa_kernel {K}", "  .amdhsa_next_free_vgpr 512", "  .amdhsa_next_free_sgpr 102",
            "  .amdhsa_accum_offset 256", "  .amdhsa_group_segment_fixed_size 0", "  .amdhsa_kernarg_size 72",
            "  .amdhsa_user_sgpr_count 2", "  .amdhsa_user_sgpr_kernarg_segment_ptr 1",
            "  .amdhsa_system_sgpr_workgroup_id_x 1", ".end_amdhsa_kernel"]
    open(opt.o, "w").write("\n".join(head + body + tail) + "\n")
    print(f"wrote {opt.o}: {len(body)} lines, {n} nops inserted")

main()
```

```python
import sys, argparse
from asmlib import fix_hazards, VM

NAME = "concat_heads__sliding_local_dilated__linear_attn_block__prompt"
STAGE = 34816
WOFF = 18432
XCH = 4 * STAGE
WS_KV = 0x400000
WS_Z = 0x480000
WS_EO = 0x500000
WS_EK = 0x501000
WS_FL = 0x502000
WS_STAMP = 0x8000000
NEG = 0xF149F2CA
LOG2E = 0x3FB8AA3B
CSC = 0x3EB8AA3B
NCSC = 0xBEB8AA3B
EPS = 0x358637BD
SPIN = 300000

sX, sW, sWS, sWO, sOUT = "s[24:27]", "s[28:31]", "s[32:35]", "s[40:43]", "s[44:47]"
S_BR, S_RB, S_HG, S_WV, S_RW, S_CW = 48, 49, 50, 51, 52, 53
S_XB, S_HB, S_WB, S_LW, S_T0, S_T1, S_T2, S_C, S_NC, S_L2E, S_EPS, S_WOB, S_LWH = 54, 55, 56, 57, 58, 59, 60, 61, 62, 63, 64, 65, 67
S_HEAD, S_SPIN = 70, 71
S_WB1 = 66
S_OST, S_KVS, S_ZS, S_LWO, S_OLD, S_IDX, S_XCD = 4, 5, 6, 7, 8, 23, 22
S_PFX, S_PFW, S_FLN, S_FLO, S_EOA, S_EKA, S_TAG = 9, 10, 11, 12, 13, 14, 15
S_EO, S_EK = 36, 38
S_ROT, S_RC = 16, 17
V_L = 1
V_XD = 10
V_WD = 14
V_XH, V_WO = 18, 19
V_XR = 20
V_HR = 26
V_WR = 32
V_OR = 38
V_L16 = 46
V_L8 = 47
V_MOWN, V_MPREV, V_MHALO, V_BM, V_ONES = 48, 52, 56, 64, 66
V_PF0, V_PF1 = 70, 71
V_ACC = 72
V_HACC = 136
V_WF = 144
V_HF = 176
V_QACC = 184
V_VP = 216
V_KP = 240
V_KPREV = 176
V_XA = 9
V_QF = 216
QE = 0
def wq_base(cq):
    if cq < QE: return None
    r = cq - QE
    st = ((8 + (r >> 2)) % 4) * STAGE
    return st + ((r & 3) >> 1)*16384 + (r & 1)*1024
PFPOL = ""
V_WO4 = [12, 13, 16, 17]
WOB = [67584, 100352, 0, 32768]

def vr(b, n=4, k="v"): return f"{k}[{b}:{b+n-1}]"
def ldsaddr(base_reg, const):
    return f"v{base_reg + (const >> 16)}", const & 0xFFFF

class G:
    def __init__(self, opt):
        self.L = []; self.opt = opt; self.lds = []; self.vm = VM()
    def A(self, s):
        if s.endswith(":"): self.L.append(s)
        else: self.L.append("    " + s)
    def label(self, s): self.L.append(s + ":")
    def stamp(self, i, kv=False):
        o = self.opt
        if not o.stamps: return
        if o.kvstamps and i >= 3 and not kv and i != 11: return
        if kv is True and not o.kvstamps: return
        if o.p2stamps and 3 <= i <= 7 and kv != "p2": return
        if kv == "p2" and not o.p2stamps: return
        self.A(f"s_memrealtime s[{72+2*i}:{73+2*i}]")
    def emit(self, it):
        if isinstance(it, str): self.A(it)
        elif isinstance(it, list):
            for s in it: self.emit(s)
        elif it[0] == "lds":
            self.lds.append(it[1]); self.A(it[2])
        elif it[0] == "vm":
            self.vm.add(it[1])
            for s in it[2]: self.A(s)
        elif it[0] == "need": self.need(it[1])
        elif it[0] == "ldsall": self.ldsall()
        elif it[0] == "stamp": self.stamp(it[1])
        else: raise ValueError(it)
    def need(self, tag):
        idx = max((i for i, t in enumerate(self.lds) if t == tag), default=None)
        if idx is None: return
        n = len(self.lds) - 1 - idx
        self.lds = self.lds[idx + 1:]
        self.A(f"s_waitcnt lgkmcnt({min(n, 15)})")
    def ldsall(self):
        self.lds = []
        self.A("s_waitcnt lgkmcnt(0)")
    def vmwait(self, tag):
        n = self.vm.wait_n(tag)
        if n is not None: self.A(f"s_waitcnt vmcnt({n})")

def cost(it):
    if isinstance(it, str): return 1
    if isinstance(it, list): return sum(cost(x) for x in it)
    if it[0] == "vm": return len(it[2])
    return 1

def run_slots(g, mf, queues, cap=2, dma=None, dma_every=4, dma_phase=0):
    for i, (m, needs) in enumerate(mf):
        for t in needs: g.need(t)
        g.A(m)
        room = cap
        if dma and (i % dma_every) == dma_phase:
            it = dma.pop(0); g.emit(it); room -= min(cost(it), 2)
        for q in queues:
            while q and room > 0:
                it = q.pop(0); g.emit(it); room -= cost(it)

def cs_(g, r): return f"s_and_b32 s{r}, s{S_HG}, 3" if g.opt.cmap else f"s_lshr_b32 s{r}, s{S_HG}, 1"
def rh_(g, r): return f"s_lshr_b32 s{r}, s{S_HG}, 2" if g.opt.cmap else f"s_and_b32 s{r}, s{S_HG}, 1"

def decode(g):
    A = g.A
    A("s_cmp_ge_u32 s2, 256")
    A("s_cbranch_scc1 L_end")
    A("s_load_dwordx16 s[4:19], s[0:1], 0")
    A("s_load_dwordx2 s[20:21], s[0:1], 64")
    A("v_lshrrev_b32 v2, 6, v0")
    A(f"v_and_b32 v{V_L}, 63, v0")
    A(f"v_readfirstlane_b32 s{S_WV}, v2")
    A("s_and_b32 s22, s2, 7")
    A("s_lshr_b32 s23, s2, 3")
    A(f"s_lshr_b32 s{S_BR}, s22, 2")
    if g.opt.bfirst: A(f"s_xor_b32 s{S_BR}, s{S_BR}, 1")
    A(f"s_bfe_u32 s{S_RB}, s22, 0x10001")
    A(f"s_lshl_b32 s{S_RB}, s{S_RB}, 3")
    A(f"s_and_b32 s{S_T0}, s23, 7")
    A(f"s_add_u32 s{S_RB}, s{S_RB}, s{S_T0}")
    A(f"s_and_b32 s{S_HG}, s22, 1")
    A(f"s_lshl_b32 s{S_HG}, s{S_HG}, 2")
    A(f"s_lshr_b32 s{S_T0}, s23, 3")
    A(f"s_add_u32 s{S_T0}, s{S_T0}, s23")
    A(f"s_and_b32 s{S_T0}, s{S_T0}, 3")
    A(f"s_add_u32 s{S_HG}, s{S_HG}, s{S_T0}")
    A(f"s_lshr_b32 s{S_RW}, s{S_WV}, 1")
    A(f"s_and_b32 s{S_CW}, s{S_WV}, 1")
    l = f"v{V_L}"
    A(f"v_lshrrev_b32 v2, 3, {l}")
    A(f"v_and_b32 v3, 7, {l}")
    A(f"v_lshrrev_b32 v4, 4, {l}")
    A("v_xor_b32 v5, v3, v4")
    A("v_lshlrev_b32 v6, 11, v2")
    A(f"v_lshl_add_u32 v{V_XD}, v5, 4, v6")
    A(f"v_xor_b32 v7, 64, v{V_XD}")
    A(f"v_add_u32 v{V_XD+1}, {14*1024}, v7")
    A("v_and_b32 v5, 1, v4")
    A("v_lshlrev_b32 v5, 1, v5")
    A("v_xor_b32 v5, v3, v5")
    A("v_mul_u32_u24 v7, 3072, v2")
    A(f"v_lshl_add_u32 v{V_WD}, v5, 4, v7")
    A(f"v_xor_b32 v7, 64, v{V_WD}")
    A(f"v_add_u32 v{V_WD+1}, 22528, v7")
    A(f"s_lshl_b32 s{S_T0}, s{S_WV}, 1")
    A(f"v_add_u32 v5, s{S_T0}, v4")
    A("v_xor_b32 v5, v3, v5")
    A(f"v_lshl_add_u32 v{V_XH}, v5, 4, v6")
    A(f"s_lshl_b32 s{S_XB}, s{S_RB}, 17")
    A(f"s_lshl_b32 s{S_T0}, s{S_WV}, 15")
    A(f"s_add_u32 s{S_XB}, s{S_XB}, s{S_T0}")
    A(f"s_lshl_b32 s{S_HB}, s{S_RB}, 7")
    A(f"s_sub_i32 s{S_HB}, s{S_HB}, 16")
    A(f"s_max_i32 s{S_HB}, s{S_HB}, 0")
    A(f"s_lshl_b32 s{S_T0}, s{S_CW}, 3")
    A(f"s_add_u32 s{S_HB}, s{S_HB}, s{S_T0}")
    A(f"s_add_u32 s{S_HB}, s{S_HB}, s{S_RW}")
    A(f"s_lshl_b32 s{S_HB}, s{S_HB}, 10")
    A(f"s_mul_i32 s{S_WB}, s{S_WV}, 49152")
    A(f"s_lshl_b32 s{S_T0}, s{S_HG}, 7")
    A(f"s_add_u32 s{S_WB}, s{S_WB}, s{S_T0}")
    A(f"s_add_u32 s{S_WB1}, s{S_WB}, 1024")
    A(f"s_lshl_b32 s{S_LW}, s{S_WV}, 12")
    A(f"s_lshl_b32 s{S_LWH}, s{S_WV}, 9")
    A(f"s_lshl_b32 s{S_WOB}, s{S_WV}, 15")
    A(cs_(g, S_T0))
    A(f"s_lshl_b32 s{S_T0}, s{S_T0}, 8")
    A(f"s_add_u32 s{S_WOB}, s{S_WOB}, s{S_T0}")
    if g.opt.pf == 4: pf4_pre(g)
    A("s_waitcnt lgkmcnt(0)")
    A(f"s_cmp_eq_u32 s{S_BR}, 0")
    A("s_cselect_b32 s24, s4, s10"); A("s_cselect_b32 s25, s5, s11"); A("s_mov_b32 s26, 0x200000"); A("s_mov_b32 s27, 0x20000")
    A("s_cselect_b32 s28, s6, s12"); A("s_cselect_b32 s29, s7, s13"); A("s_mov_b32 s30, 0x180000"); A("s_mov_b32 s31, 0x20000")
    A("s_cselect_b32 s40, s8, s14"); A("s_cselect_b32 s41, s9, s15"); A("s_mov_b32 s42, 0x80000"); A("s_mov_b32 s43, 0x20000")
    A("s_mov_b32 s32, s20"); A("s_mov_b32 s33, s21"); A("s_mov_b32 s34, 0x10000000"); A("s_mov_b32 s35, 0x20000")
    A("s_mov_b32 s44, s16"); A("s_mov_b32 s45, s17"); A("s_mov_b32 s46, 0x400000"); A("s_mov_b32 s47, 0x20000")
    if g.opt.rot == 3: A(f"s_lshl_b32 s{S_ROT}, s{S_HG}, 1")
    elif g.opt.rot == 4: A(f"s_mov_b32 s{S_ROT}, s{S_RB}")
    elif g.opt.rot == 5: A(f"s_mov_b32 s{S_ROT}, s{S_HG}")
    elif g.opt.rot == 6: A(f"s_lshl_b32 s{S_ROT}, s{S_HG}, 2")
    elif g.opt.rot == 7: A(f"s_lshl_b32 s{S_ROT}, s{S_RB}, 2")
    elif g.opt.rot == 8:
        A(f"s_xor_b32 s{S_ROT}, s{S_RB}, s{S_HG}"); A(f"s_lshl_b32 s{S_ROT}, s{S_ROT}, 2")
    elif g.opt.rot == 10: A(f"s_lshl_b32 s{S_ROT}, s{S_RB}, 1")
    elif g.opt.rot == 11:
        A(f"s_lshl_b32 s{S_ROT}, s{S_HG}, 2"); A(f"s_add_u32 s{S_ROT}, s{S_ROT}, s{S_RB}")
    elif g.opt.rot == 9: A(f"s_mov_b32 s{S_ROT}, 4")
    elif g.opt.rot:
        A(f"s_lshl_b32 s{S_ROT}, s{S_HG}, 1")
        A(f"s_add_u32 s{S_ROT}, s{S_ROT}, s{S_RB}")
        if g.opt.rot == 2:
            A(f"s_lshr_b32 s{S_T0}, s{S_HG}, 2"); A(f"s_add_u32 s{S_ROT}, s{S_ROT}, s{S_T0}")
            A(f"s_lshr_b32 s{S_T0}, s{S_RB}, 3"); A(f"s_lshl_b32 s{S_T0}, s{S_T0}, 2"); A(f"s_add_u32 s{S_ROT}, s{S_ROT}, s{S_T0}")
    else:
        A(f"s_mov_b32 s{S_ROT}, 0")

def chunk_dmas(g, c, halo):
    st = (c % 4) * STAGE
    nt = " nt" if g.opt.nt else ""
    tag = ("c", c)
    out = []
    if c < 8:
        rc = [f"s_add_u32 s{S_RC}, s{S_ROT}, {c}", f"s_and_b32 s{S_RC}, s{S_RC}, 7"]
        for i in range(4):
            pre = rc + [f"s_add_u32 m0, s{S_LW}, {st}", f"s_lshl_b32 s{S_T2}, s{S_RC}, 7", f"s_add_u32 s{S_T2}, s{S_T2}, s{S_XB}"] if i == 0 else []
            out.append(("vm", tag, pre + [f"buffer_load_dwordx4 v{V_XD+(i>>1)}, {sX}, s{S_T2} offen offset:{i*1024}{nt} lds"]))
        for j in range(4):
            pre = [f"s_add_u32 m0, s{S_LW}, {st + WOFF}", f"s_mul_i32 s{S_T2}, s{S_RC}, 196608", f"s_add_u32 s{S_T2}, s{S_T2}, s{S_WB1}"] if j == 0 else []
            out.append(("vm", tag, pre + [f"buffer_load_dwordx4 v{V_WD+(j>>1)}, {sW}, s{S_T2} offen offset:{j*1024}{nt} lds"]))
        if c < QE:
            for bb in range(2):
                pre = [f"s_lshl_b32 s{S_T2}, s{S_WV}, 11", f"s_add_u32 m0, s{S_T2}, {XCH + c*8192 - 1024}",
                       f"s_mul_i32 s{S_T2}, s{S_RC}, 196608", f"s_add_u32 s{S_T2}, s{S_T2}, s{S_WB}"] if bb == 0 else []
                pre = [f"s_lshl_b32 s{S_T1}, s{S_WV}, 11", f"s_add_u32 m0, s{S_T1}, {XCH + c*8192 + bb*1024 - bb*2048}"] + \
                      ([f"s_mul_i32 s{S_T2}, s{S_RC}, 196608", f"s_add_u32 s{S_T2}, s{S_T2}, s{S_WB}"] if bb == 0 else [])
                out.append(("vm", tag, pre + [f"buffer_load_dwordx4 v{V_WD+bb}, {sW}, s{S_T2} offen offset:{bb*2048}{nt} lds"]))
        if halo:
            out.append(("vm", tag, [f"s_add_u32 m0, s{S_LWH}, {st + 16384}", f"s_lshl_b32 s{S_T2}, s{S_RC}, 7", f"s_add_u32 s{S_T2}, s{S_T2}, s{S_HB}",
                        "s_mov_b32 exec_hi, 0", f"buffer_load_dwordx4 v{V_XH}, {sX}, s{S_T2} offen{nt} lds", "s_mov_b32 exec_hi, -1"]))
    elif c < 10:
        h = c - 8
        for cq in range(QE + 4*h, min(QE + 4*h + 4, 8)):
            for bb in range(2):
                pre = []
                if bb == 0:
                    pre = [f"s_add_u32 s{S_RC}, s{S_ROT}, {cq}", f"s_and_b32 s{S_RC}, s{S_RC}, 7",
                           f"s_add_u32 m0, s{S_LW}, {wq_base(cq)}",
                           f"s_mul_i32 s{S_T2}, s{S_RC}, 196608", f"s_add_u32 s{S_T2}, s{S_T2}, s{S_WB}"]
                out.append(("vm", tag, pre + [f"buffer_load_dwordx4 v{V_WD+bb}, {sW}, s{S_T2} offen offset:{bb*2048}{nt} lds"]))
    else:
        h = c - 10
        for b in range(8):
            pre = [f"s_add_u32 m0, s{S_LWO}, {WOB[h] + (b >> 2)*4096}",
                   f"s_add_u32 s{S_T2}, s{S_WOB}, {(128*h + 16*(b >> 2))*1024}"] if (b & 3) == 0 else []
            out.append(("vm", tag, pre + [f"buffer_load_dwordx4 v{V_WO4[b & 3]}, {sWO}, s{S_T2} offen offset:{(b & 3)*1024}{nt} lds"]))
    return out

def setup2(g, br, rw):
    A = g.A
    halo = br == 0
    l = f"v{V_L}"
    A(f"s_lshl_b32 s{S_T0}, s{S_BR}, 4"); A(f"s_add_u32 s{S_T0}, s{S_T0}, s{S_RB}")
    A(f"s_lshl_b32 s{S_EOA}, s{S_T0}, 7"); A(f"s_add_u32 s{S_EOA}, s{S_EOA}, {WS_EO}")
    A(f"s_lshl_b32 s{S_FLN}, s{S_T0}, 8"); A(f"s_add_u32 s{S_FLN}, s{S_FLN}, {WS_FL}")
    A(f"s_lshl_b32 s{S_EKA}, s{S_HG}, 7"); A(f"s_add_u32 s{S_EKA}, s{S_EKA}, {WS_EK}")
    A(f"s_load_dwordx2 s[{S_EO}:{S_EO+1}], s[20:21], s{S_EOA}")
    if br == 1: A(f"s_load_dwordx2 s[{S_EK}:{S_EK+1}], s[20:21], s{S_EKA}")
    A(f"s_lshl_b32 s{S_T1}, s{S_HG}, 1"); A(f"s_add_u32 s{S_T1}, s{S_T1}, s{S_CW}")
    A(f"s_lshl_b32 s{S_FLO}, s{S_T1}, 3"); A(f"s_add_u32 s{S_FLO}, s{S_FLO}, s{S_FLN}"); A(f"s_add_u32 s{S_FLO}, s{S_FLO}, {rw*128}")
    A(rh_(g, S_T2)); A(f"s_lshl_b32 s{S_T2}, s{S_T2}, 7"); A(f"s_add_u32 s{S_FLN}, s{S_FLN}, s{S_T2}")
    A(f"v_lshrrev_b32 v2, 4, {l}"); A(f"v_and_b32 v3, 15, {l}")
    A("v_lshlrev_b32 v5, 1, v2"); A("v_xor_b32 v5, v3, v5"); A("v_lshlrev_b32 v6, 10, v2")
    A(f"v_lshl_add_u32 v{V_WO4[0]}, v5, 4, v6")
    A(f"v_xor_b32 v6, 128, v{V_WO4[0]}")
    A(f"v_add_u32 v{V_WO4[1]}, 3072, v6")
    A(f"v_add_u32 v{V_WO4[2]}, 6144, v{V_WO4[0]}")
    A(f"v_add_u32 v{V_WO4[3]}, 9216, v6")
    A(f"v_and_b32 v2, 15, {l}")
    A(f"v_lshrrev_b32 v3, 4, {l}")
    A("v_lshrrev_b32 v4, 1, v2")
    A("v_xor_b32 v5, v3, v4")
    A("v_lshlrev_b32 v6, 7, v2")
    A("v_lshl_add_u32 v6, v5, 4, v6")
    A("v_lshrrev_b32 v7, 3, v2")
    A("v_lshl_add_u32 v7, v7, 10, v6")
    A(f"v_add_u32 v{V_XR}, {rw*8192}, v7")
    A(f"v_xor_b32 v{V_XR+3}, 64, v{V_XR}")
    for kk in range(2):
        for b in (1, 2): A(f"v_add_u32 v{V_XR+3*kk+b}, {b<<16}, v{V_XR+3*kk}")
    if halo:
        A(f"v_add_u32 v{V_HR}, 16384, v6")
        A(f"v_xor_b32 v{V_HR+3}, 64, v{V_HR}")
        for kk in range(2):
            for b in (1, 2): A(f"v_add_u32 v{V_HR+3*kk+b}, {b<<16}, v{V_HR+3*kk}")
    A("v_lshrrev_b32 v4, 2, v2")
    A("v_and_b32 v5, 3, v2")
    A("v_lshrrev_b32 v8, 3, v2")
    A("v_and_b32 v7, 1, v3")
    A("v_lshl_or_b32 v8, v7, 1, v8")
    A("v_lshrrev_b32 v6, 1, v3")
    A("v_lshlrev_b32 v6, 12, v6")
    A("v_lshl_add_u32 v6, v7, 11, v6")
    A("v_lshl_add_u32 v6, v4, 7, v6")
    A("v_lshl_add_u32 v6, v5, 3, v6")
    A(f"s_lshl_b32 s{S_T0}, s{S_CW}, 1")
    A(f"v_xor_b32 v7, s{S_T0}, v8")
    A(f"v_lshl_add_u32 v{V_WR}, v7, 5, v6")
    A(f"v_xor_b32 v{V_WR+3}, 32, v{V_WR}")
    for hh in range(2):
        for b in (1, 2): A(f"v_add_u32 v{V_WR+3*hh+b}, {b<<16}, v{V_WR+3*hh}")
    if QE:
        A("v_lshlrev_b32 v6, 10, v3")
        A(f"v_sub_u32 v38, v{V_WR+2}, v6"); A(f"v_sub_u32 v39, v{V_WR+5}, v6")
    A(f"v_lshlrev_b32 v{V_L16}, 4, {l}")
    A(f"v_lshlrev_b32 v{V_L8}, 3, {l}")
    A(f"s_mov_b32 s{S_C}, {CSC:#x}"); A(f"s_mov_b32 s{S_NC}, {NCSC:#x}")
    A(f"s_mov_b32 s{S_L2E}, {LOG2E:#x}"); A(f"s_mov_b32 s{S_EPS}, {EPS:#x}")
    A(f"s_mov_b32 s{S_SPIN}, {SPIN}")
    A(f"s_mov_b32 s18, {LOG2E:#x}"); A(f"s_mov_b32 s19, {LOG2E:#x}"); A(f"s_mov_b32 s96, {CSC:#x}"); A(f"s_mov_b32 s97, {CSC:#x}")
    for i in range(4): A(f"v_mov_b32 v{V_ONES+i}, 0x3f803f80")
    A(f"s_lshl_b32 s{S_T0}, s{S_RB}, 3")
    A(f"s_add_u32 s{S_OLD}, s{S_T0}, {br*128}")
    A(f"s_add_u32 s{S_OST}, s{S_OLD}, {4*rw}")
    A(f"s_lshl_b32 s{S_OST}, s{S_OST}, 4")
    A(f"s_add_u32 s{S_OST}, s{S_OST}, s{S_T1}")
    A(f"s_lshl_b32 s{S_OST}, s{S_OST}, 10")
    A(rh_(g, S_T1)); A(f"s_lshl_b32 s{S_T1}, s{S_T1}, 2")
    A(f"s_add_u32 s{S_OLD}, s{S_OLD}, s{S_T1}")
    A(f"s_add_u32 s{S_OLD}, s{S_OLD}, s{S_WV}")
    A(f"s_lshl_b32 s{S_OLD}, s{S_OLD}, 14")
    A(f"s_lshl_b32 s{S_LWO}, s{S_WV}, 13")
    A(f"s_lshl_b32 s{S_T0}, s{S_CW}, 13")
    A(f"v_add_u32 v{V_XA}, s{S_T0}, v{V_L16 if br else V_L8}")
    A(f"v_add_u32 v{V_XA}, {XCH}, v{V_XA}")
    if br == 1:
        A(f"s_lshl_b32 s{S_T0}, s{S_HG}, 2")
        A(f"s_lshl_b32 s{S_T1}, s{S_CW}, 1")
        A(f"s_add_u32 s{S_T0}, s{S_T0}, s{S_T1}")
        A(f"s_add_u32 s{S_HEAD}, s{S_T0}, {rw}")
        A(f"s_lshl_b32 s{S_T0}, s{S_HEAD}, 4")
        A(f"s_add_u32 s{S_T0}, s{S_T0}, s{S_RB}")
        A(f"s_lshl_b32 s{S_KVS}, s{S_T0}, 10")
        A(f"s_add_u32 s{S_KVS}, s{S_KVS}, {WS_KV}")
        A(f"s_lshl_b32 s{S_ZS}, s{S_T0}, 6")
        A(f"s_add_u32 s{S_ZS}, s{S_ZS}, {WS_Z}")
    else:
        A(f"v_and_b32 v2, 15, {l}")
        A(f"v_lshrrev_b32 v3, 4, {l}")
        A("v_lshlrev_b32 v3, 2, v3")
        A(f"v_mov_b32 v8, {NEG:#x}")
        for r in range(4):
            A(f"v_add_u32 v4, {r}, v3")
            A("v_sub_u32 v5, v2, v4")
            A("v_cmp_gt_u32 vcc, 8, v5")
            A(f"v_mov_b32 v7, {0xffff if r % 2 == 0 else 0xffff0000:#x}")
            A(f"v_cndmask_b32 v{V_MOWN+r}, v8, 0, vcc")
            A("v_cndmask_b32 v6, 0, v7, vcc")
            if r % 2 == 0: A(f"v_mov_b32 v{V_BM + r//2}, v6")
            else: A(f"v_or_b32 v{V_BM + r//2}, v{V_BM + r//2}, v6")
            A("v_add_u32 v5, 9, v2")
            A("v_cmp_ge_u32 vcc, v4, v5")
            A(f"v_cndmask_b32 v{V_MPREV+r}, v8, 0, vcc")
            if rw == 0:
                for p in range(2):
                    A(f"v_subrev_u32 v5, {8*p}, v4")
                    A("v_cmp_gt_u32 vcc, 8, v5")
                    A("v_cmp_gt_u32 s[68:69], v5, v2")
                    A("s_and_b64 vcc, vcc, s[68:69]")
                    A(f"s_cmp_eq_u32 s{S_RB}, 0")
                    A("s_cselect_b64 vcc, 0, vcc")
                    A(f"v_cndmask_b32 v{V_MHALO+4*p+r}, v8, 0, vcc")

def pf_setup(g):
    A = g.A
    l = f"v{V_L}"
    A(f"v_and_b32 v2, 31, {l}")
    A("v_lshlrev_b32 v2, 10, v2")
    A(f"v_lshrrev_b32 v3, 5, {l}")
    A(f"v_lshl_add_u32 v{V_PF0}, v3, 7, v2")
    A(f"s_lshr_b32 s{S_PFX}, s{S_RB}, 3")
    A(f"s_lshl_b32 s{S_PFX}, s{S_PFX}, 20")
    A(f"s_lshl_b32 s{S_T0}, s{S_IDX}, 15")
    A(f"s_add_u32 s{S_PFX}, s{S_PFX}, s{S_T0}")
    A(f"s_lshl_b32 s{S_T0}, s{S_WV}, 8")
    A(f"s_add_u32 s{S_PFX}, s{S_PFX}, s{S_T0}")
    A(f"v_and_b32 v4, 15, {l}")
    A("v_lshrrev_b32 v5, 2, v4")
    A("v_and_b32 v6, 3, v4")
    A(f"v_bfe_u32 v7, {l}, 4, 1")
    A("v_mul_u32_u24 v7, 3072, v7")
    A("v_mul_u32_u24 v8, 196608, v3")
    A("v_add_u32 v7, v7, v8")
    A("v_lshl_add_u32 v7, v5, 10, v7")
    A("v_lshl_add_u32 v7, v6, 7, v7")
    A("v_cmp_gt_u32 vcc, 3, v5")
    A("v_mov_b32 v8, 0x7fffffff")
    A(f"v_cndmask_b32 v{V_PF1}, v8, v7, vcc")
    A(f"s_mul_i32 s{S_PFW}, s{S_IDX}, 6144")
    A(f"s_and_b32 s{S_T0}, s{S_XCD}, 1")
    A(f"s_lshl_b32 s{S_T0}, s{S_T0}, 9")
    A(f"s_add_u32 s{S_PFW}, s{S_PFW}, s{S_T0}")
    A(f"s_mul_i32 s{S_T0}, s{S_WV}, 393216")
    A(f"s_add_u32 s{S_PFW}, s{S_PFW}, s{S_T0}")

V_PA = 252
def pf3_setup(g):
    A = g.A
    l = f"v{V_L}"
    A(f"s_lshr_b32 s{S_T0}, s{S_RB}, 3")
    A(f"s_lshl_b32 s{S_T0}, s{S_T0}, 20")
    A(f"s_lshl_b32 s{S_T1}, s{S_IDX}, 15")
    A(f"s_add_u32 s{S_T0}, s{S_T0}, s{S_T1}")
    A(f"s_lshl_b32 s{S_T1}, s{S_WV}, 13")
    A(f"s_add_u32 s{S_T0}, s{S_T0}, s{S_T1}")
    A(f"s_add_u32 s{S_PFX}, s24, s{S_T0}"); A(f"s_addc_u32 s{S_PFX+1}, s25, 0")
    A(f"v_lshlrev_b32 v2, 10, {l}")
    A(f"v_mov_b32 v3, s{S_PFX+1}")
    A(f"v_add_co_u32 v{V_PA}, vcc, s{S_PFX}, v2")
    A(f"v_addc_co_u32 v{V_PA+1}, vcc, 0, v3, vcc")
    A(f"s_mul_i32 s{S_T0}, s{S_CW}, 6")
    A(f"v_subrev_u32 v4, 8, {l}")
    A(f"v_add_u32 v4, s{S_T0}, v4")
    A("v_lshrrev_b32 v5, 2, v4"); A("v_and_b32 v4, 3, v4")
    A("v_lshlrev_b32 v5, 10, v5"); A("v_lshl_add_u32 v4, v4, 7, v5")
    A(f"s_lshl_b32 s{S_T0}, s{S_IDX}, 1"); A(f"s_add_u32 s{S_T0}, s{S_T0}, s{S_RW}")
    A(f"s_mul_i32 s{S_T0}, s{S_T0}, 3072")
    A(f"s_and_b32 s{S_T1}, s{S_XCD}, 1"); A(f"s_lshl_b32 s{S_T1}, s{S_T1}, 9")
    A(f"s_add_u32 s{S_T0}, s{S_T0}, s{S_T1}")
    A(f"s_add_u32 s{S_PFX}, s28, s{S_T0}"); A(f"s_addc_u32 s{S_PFX+1}, s29, 0")
    A(f"v_mov_b32 v3, s{S_PFX+1}")
    A(f"v_add_co_u32 v4, vcc, s{S_PFX}, v4")
    A("v_addc_co_u32 v5, vcc, 0, v3, vcc")
    A(f"v_cmp_gt_u32 vcc, 8, {l}")
    A(f"v_cndmask_b32 v{V_PA}, v4, v{V_PA}, vcc")
    A(f"v_cndmask_b32 v{V_PA+1}, v5, v{V_PA+1}, vcc")
    A("v_mov_b32 v4, 196608"); A("v_mov_b32 v5, 128")
    A(f"v_cndmask_b32 v{V_PA+2}, v4, v5, vcc")
    for _ in range(g.opt.pf_first):
        A(f"v_add_co_u32 v{V_PA}, vcc, v{V_PA}, v{V_PA+2}")
        A(f"v_addc_co_u32 v{V_PA+1}, vcc, 0, v{V_PA+1}, vcc")
def pf3_item():
    return ("vm", "pf", ["s_mov_b64 exec, 0x3fff", f"global_load_dword v{V_PA+3}, v[{V_PA}:{V_PA+1}], off{PFPOL}", "s_mov_b64 exec, -1",
                         f"v_add_co_u32 v{V_PA}, vcc, v{V_PA}, v{V_PA+2}", f"v_addc_co_u32 v{V_PA+1}, vcc, 0, v{V_PA+1}, vcc"])

def pf4_pre(g):
    A = g.A
    l = f"v{V_L}"
    A(f"s_lshr_b32 s{S_T0}, s{S_RB}, 3")
    A(f"s_lshl_b32 s{S_T0}, s{S_T0}, 20")
    A(f"s_lshl_b32 s{S_T1}, s{S_IDX}, 15")
    A(f"s_add_u32 s{S_T0}, s{S_T0}, s{S_T1}")
    A(f"s_lshl_b32 s{S_T1}, s{S_WV}, 13")
    A(f"s_add_u32 s{S_T0}, s{S_T0}, s{S_T1}")
    A(f"v_lshlrev_b32 v2, 10, {l}")
    A(f"v_add_u32 v2, s{S_T0}, v2")
    A(f"s_lshl_b32 s{S_T0}, s{S_IDX}, 1"); A(f"s_add_u32 s{S_T0}, s{S_T0}, s{S_RW}")
    A(f"s_mul_i32 s{S_T0}, s{S_T0}, 3072")
    A(f"s_and_b32 s{S_T1}, s{S_XCD}, 1"); A(f"s_lshl_b32 s{S_T1}, s{S_T1}, 9")
    A(f"s_add_u32 s{S_T0}, s{S_T0}, s{S_T1}")
    A(f"s_lshl_b32 s{S_T1}, s{S_CW}, 10"); A(f"s_add_u32 s{S_T0}, s{S_T0}, s{S_T1}")
    A(f"s_add_u32 s{S_T0}, s{S_T0}, {1024 - 8*128}")
    A(f"v_lshlrev_b32 v3, 7, {l}")
    A(f"v_add_u32 v3, s{S_T0}, v3")
    A(f"v_cmp_gt_u32 s[68:69], 8, {l}")
    A("v_mov_b32 v4, 196608"); A("v_mov_b32 v5, 128")
    A(f"v_cndmask_b32 v{V_PA+2}, v4, v5, s[68:69]")
    A(f"v_cndmask_b32 v{V_PA}, v3, v2, s[68:69]")
    for _ in range(g.opt.pf_first): A(f"v_add_u32 v{V_PA}, v{V_PA}, v{V_PA+2}")
def pf4_post(g):
    A = g.A
    A("v_mov_b32 v2, s28"); A("v_mov_b32 v3, s29"); A("v_mov_b32 v4, s24"); A("v_mov_b32 v5, s25")
    A("v_cndmask_b32 v2, v2, v4, s[68:69]"); A("v_cndmask_b32 v3, v3, v5, s[68:69]")
    A(f"v_add_co_u32 v{V_PA}, vcc, v{V_PA}, v2")
    A(f"v_addc_co_u32 v{V_PA+1}, vcc, 0, v3, vcc")
def pf4_item():
    return ("vm", "pf", ["s_mov_b64 exec, 0xfff", f"global_load_dword v{V_PA+3}, v[{V_PA}:{V_PA+1}], off{PFPOL}", "s_mov_b64 exec, -1",
                         f"v_add_co_u32 v{V_PA}, vcc, v{V_PA}, v{V_PA+2}", f"v_addc_co_u32 v{V_PA+1}, vcc, 0, v{V_PA+1}, vcc"])

def acc(Tl, hh, kv): return V_ACC + ((Tl * 2 + hh) * 2 + kv) * 4
def xf(Tl, ks): return (Tl * 16 + ks) * 4

def kv_reads(ks, halo):
    c = ks >> 1; kk = ks & 1; st = (c % 4) * STAGE; buf = ks & 1
    w = []
    for hh in range(2):
        for seg in range(2):
            for t in range(2):
                reg, off = ldsaddr(V_WR + 3*hh, st + WOFF + kk*8192 + seg*1024 + t*512)
                d = V_WF + buf*16 + (hh*2 + seg)*4 + t*2
                w.append(("lds", ("w", ks, hh, seg), f"ds_read_b64_tr_b16 v[{d}:{d+1}], {reg} offset:{off}"))
    xr = []
    for Tl in range(4):
        reg, off = ldsaddr(V_XR + 3*kk, st + (Tl >> 1)*4096 + (Tl & 1)*1024)
        xr.append(("lds", ("x", ks, Tl), f"ds_read_b128 {vr(xf(Tl, ks), 4, 'a')}, {reg} offset:{off}"))
    if halo:
        reg, off = ldsaddr(V_HR + 3*kk, st)
        xr.append(("lds", ("x", ks, 4), f"ds_read_b128 {vr(V_HF + buf*4)}, {reg} offset:{off}"))
    qr = []
    if c < QE:
        for hh in range(2):
            for t in range(2):
                d = V_QF + buf*8 + hh*4 + t*2
                qr.append(("lds", ("q", hh, ks), f"ds_read_b64_tr_b16 v[{d}:{d+1}], v{38+hh} offset:{XCH - 131072 + c*8192 + kk*4096 + t*512}"))
    return [xr[0]] + w + xr[1:] + qr

def kv_mfmas(ks, br, rw):
    buf = ks & 1
    out = []
    for Tl in range(4):
        for hh in range(2):
            for seg in range(2):
                w = vr(V_WF + buf*16 + (hh*2 + seg)*4)
                x = vr(xf(Tl, ks), 4, "a")
                d = vr(acc(Tl, hh, seg))
                c = "0" if ks == 0 else d
                a, b = (w, x) if (br == 0 and seg == 0) else (x, w)
                out.append((f"v_mfma_f32_16x16x32_bf16 {d}, {a}, {b}, {c}", [("x", ks, Tl), ("w", ks, hh, seg)]))
    if br == 0:
        for hh in range(2):
            seg = rw
            w = vr(V_WF + buf*16 + (hh*2 + seg)*4)
            x = vr(V_HF + buf*4)
            d = vr(V_HACC + hh*4)
            c = "0" if ks == 0 else d
            a, b = (w, x) if seg == 0 else (x, w)
            out.append((f"v_mfma_f32_16x16x32_bf16 {d}, {a}, {b}, {c}", [("x", ks, 4)]))
    if (ks >> 1) < QE:
        for hh in range(2):
            for Tl in range(4):
                d = vr(V_QACC + (hh*4 + Tl)*4)
                out.append((f"v_mfma_f32_16x16x32_bf16 {d}, {vr(V_QF + buf*8 + hh*4)}, {vr(xf(Tl, ks), 4, 'a')}, {'0' if ks == 0 else d}", [("q", hh, ks)]))
    return out

def q_read(hh, ks, slot):
    out = []
    for t in range(2):
        reg, off = ldsaddr(V_WR + 3*hh, wq_base(ks >> 1) + (ks & 1)*8192 + t*512)
        d = V_WF + slot*4 + t*2
        out.append(("lds", ("q", hh, ks), f"ds_read_b64_tr_b16 v[{d}:{d+1}], {reg} offset:{off}"))
    return out

def phi_list(regs, tmp, pk=False):
    out = []
    if pk:
        for i in range(0, len(regs), 2): out.append(f"v_pk_mul_f32 v[{tmp+i}:{tmp+i+1}], v[{regs[i]}:{regs[i]+1}], s[18:19]")
        for i, r in enumerate(regs):
            out.append(f"v_exp_f32 v{tmp+i}, v{tmp+i} clamp")
            out.append(f"v_max_f32 v{r}, s{S_EPS}, v{r}")
        for i in range(0, len(regs), 2): out.append(f"v_pk_add_f32 v[{regs[i]}:{regs[i]+1}], v[{regs[i]}:{regs[i]+1}], v[{tmp+i}:{tmp+i+1}]")
        return out
    for i, r in enumerate(regs): out.append(f"v_mul_f32 v{tmp+i}, s{S_L2E}, v{r}")
    for i, r in enumerate(regs):
        out.append(f"v_exp_f32 v{tmp+i}, v{tmp+i} clamp")
        out.append(f"v_max_f32 v{r}, s{S_EPS}, v{r}")
    for i, r in enumerate(regs): out.append(f"v_add_f32 v{r}, v{r}, v{tmp+i}")
    return out

def npf_left(opt, c):
    return opt.pf_first + opt.pf_init + 1 + c < 8

def phase1_path(g, br, rw):
    A = g.A
    opt = g.opt
    halo = (br == 0)
    tag = f"{br}{rw}"
    g.vm = VM(); g.lds = []
    if opt.pf == 4:
        for it in chunk_dmas(g, 0, halo): g.emit(it)
        pf4_post(g)
        for _ in range(opt.pf_init): g.emit(pf4_item())
    else:
        for c in range(2):
            for it in chunk_dmas(g, c, halo): g.emit(it)
    g.stamp(1)
    if opt.pf == 3:
        pf3_setup(g)
        for _ in range(opt.pf_init): g.emit(pf3_item())
    if opt.warmcode:
        A("s_getpc_b64 s[68:69]")
        g.label(f"L_wc_{tag}")
        A(f"s_lshl_b32 s{S_T0}, s{S_CW}, 13")
        A(f"v_lshlrev_b32 v2, 7, v{V_L}")
        A(f"v_add_u32 v3, s{S_T0}, v2")
        A(f"v_min_u32 v3, L_end-L_wc_{tag}, v3")
        g.emit(("vm", "pf", [f"global_load_dword v{V_PF0}, v3, s[68:69]"]))
        A(f"v_add_u32 v3, L_phase2-L_wc_{tag}, v2")
        A(f"v_min_u32 v3, L_end-L_wc_{tag}, v3")
        g.emit(("vm", "pf", [f"global_load_dword v{V_PF1}, v3, s[68:69]"]))
    if opt.pf == 4:
        for it in chunk_dmas(g, 1, halo): g.emit(it)
    setup2(g, br, rw)
    if opt.pf in (1, 2): pf_setup(g)
    npf = opt.pf_first
    if opt.pre3:
        for it in chunk_dmas(g, 2, halo): g.emit(it)
        if opt.pre3 >= 2:
            for it in chunk_dmas(g, 3, halo): g.emit(it)
    g.vmwait(("c", 0))
    A("s_barrier")
    g.stamp(2)
    for it in kv_reads(0, halo): g.emit(it)
    dq = []
    if not opt.pre3: dq += chunk_dmas(g, 2, halo)
    if opt.pre3 < 2: dq += chunk_dmas(g, 3, halo)
    pfi = [("vm", "pf", [f"buffer_load_dword v{V_PF0}, v{V_PF0}, {sX}, s{S_PFX} offen{PFPOL}"]),
           ("vm", "pf", [f"buffer_load_dword v{V_PF1}, v{V_PF1}, {sW}, s{S_PFW} offen{PFPOL}"])]
    if opt.pf == 3 and opt.pf_first + opt.pf_init < 8: dq.insert(0, pf3_item())
    if opt.pf == 4 and opt.pf_first + opt.pf_init < 8: dq.insert(opt.pf_pos, pf4_item())
    if opt.pf == 1: dq = pfi + dq
    if opt.pf == 2: dq = dq[:9] + pfi + dq[9:]
    for ks in range(16):
        c = ks >> 1
        mf = kv_mfmas(ks, br, rw)
        ev = opt.dma_every if len(dq) <= 10 else opt.dma_fast
        if ks & 1:
            run_slots(g, mf[:opt.bar_after], [], dma=dq, dma_every=ev, dma_phase=1)
            while dq and (dq[0][1] == "pf" or dq[0][1][1] <= c + 1): g.emit(dq.pop(0))
            g.ldsall()
            g.vmwait(("c", c + 1))
            A("s_barrier")
            g.stamp(3 + c, kv=True)
            rd = kv_reads(ks + 1, halo) if ks < 15 else q_read(0, 2*QE, 0) + q_read(0, 2*QE + 1, 1) + q_read(0, 2*QE + 2, 2)
            nc = c + 4
            if c + 1 == opt.wo_at:
                dq.insert(0, ("vm", "pf", [f"v_lshrrev_b32 v2, 2, v{V_L}", "v_lshlrev_b32 v2, 10, v2", f"v_and_b32 v3, 3, v{V_L}",
                    "v_lshl_add_u32 v2, v3, 7, v2",
                    f"s_lshl_b32 s{S_T0}, s{S_IDX}, 14", f"s_lshl_b32 s{S_T1}, s{S_WV}, 12", f"s_add_u32 s{S_T0}, s{S_T0}, s{S_T1}",
                    f"s_and_b32 s{S_T1}, s{S_XCD}, 1", f"s_lshl_b32 s{S_T1}, s{S_T1}, 9", f"s_add_u32 s{S_T0}, s{S_T0}, s{S_T1}",
                    "s_mov_b64 exec, 0xffff", f"buffer_load_dword v{V_WO}, v2, {sWO}, s{S_T0} offen{PFPOL}", "s_mov_b64 exec, -1"]))
            if c + 1 == opt.wc_at:
                dq.insert(0, ("vm", "pf", ["s_getpc_b64 s[68:69]", f"L_wc_{tag}:", f"v_lshlrev_b32 v2, 7, v{V_L}",
                    f"s_lshl_b32 s{S_T0}, s{S_CW}, 13", f"v_add_u32 v2, s{S_T0}, v2",
                    f"v_add_u32 v3, L_q_{tag}-L_wc_{tag}, v2", f"v_add_u32 v2, {'L_phase2-L_wc_' + tag}-8192, v2",
                    f"s_cmp_eq_u32 s{S_CW}, 0", "s_cselect_b64 vcc, -1, 0", "v_cndmask_b32 v3, v2, v3, vcc",
                    f"v_min_u32 v3, L_end-L_wc_{tag}, v3",
                    f"global_load_dword v{V_PF0}, v3, s[68:69]"]))
            if opt.pf == 3 and npf_left(opt, c): dq.insert(0, pf3_item())
            if nc < 12: dq += chunk_dmas(g, nc, halo)
            if opt.pf == 4 and npf_left(opt, c): dq.insert(min(opt.pf_pos, len(dq)), pf4_item())
            run_slots(g, mf[opt.bar_after:], [rd], cap=opt.cap, dma=dq, dma_every=ev, dma_phase=ev - 1)
            for it in rd: g.emit(it)
        else:
            rd = kv_reads(ks + 1, halo)
            run_slots(g, mf, [rd], cap=opt.cap_even, dma=dq, dma_every=ev, dma_phase=ev - 1)
            for it in rd: g.emit(it)
    g.stamp(3)
    g.label(f"L_q_{tag}")
    S1 = []; P = S1.append
    if br == 0:
        order = [2, 3, 0, 1] if rw == 0 else [0, 1, 2, 3]
        if rw == 1:
            for hh in range(2):
                h = V_HACC + hh*4
                P(f"v_cvt_pk_bf16_f32 v{4+hh*2}, v{h}, v{h+1}"); P(f"v_cvt_pk_bf16_f32 v{5+hh*2}, v{h+2}, v{h+3}")
                P(("lds", "xw", f"ds_write_b64 v{V_XA}, v[{4+hh*2}:{5+hh*2}] offset:{4096 + hh*512}"))
        for Tl in order:
            for hh in range(2):
                k = acc(Tl, hh, 0); v = acc(Tl, hh, 1)
                kp = V_KP + (Tl*2 + hh)*2
                vp = V_VP + ((Tl & 1)*2 + hh)*6 + 2 + (Tl >> 1)*2
                P(f"v_cvt_pk_bf16_f32 v{kp}, v{k}, v{k+1}"); P(f"v_cvt_pk_bf16_f32 v{kp+1}, v{k+2}, v{k+3}")
                P(f"v_cvt_pk_bf16_f32 v{vp}, v{v}, v{v+1}"); P(f"v_cvt_pk_bf16_f32 v{vp+1}, v{v+2}, v{v+3}")
                if rw == 0 and Tl >= 2:
                    p = Tl & 1
                    P(("lds", "xw", f"ds_write_b64 v{V_XA}, v[{kp}:{kp+1}] offset:{(p*2+hh)*1024}"))
                    P(("lds", "xw", f"ds_write_b64 v{V_XA}, v[{vp}:{vp+1}] offset:{(p*2+hh)*1024+512}"))
        if rw == 0:
            for hh in range(2):
                h = V_HACC + hh*4
                P(f"v_cvt_pk_bf16_f32 v{V_KPREV+hh*2}, v{h}, v{h+1}"); P(f"v_cvt_pk_bf16_f32 v{V_KPREV+hh*2+1}, v{h+2}, v{h+3}")
        S1b = []
        for p in range(2):
            for hh in range(2):
                vp = V_VP + (p*2 + hh)*6
                if rw == 0:
                    S1b.append(("lds", "xr", f"ds_read_b64 v[{vp}:{vp+1}], v{V_XA} offset:{4096 + hh*512}"))
                else:
                    kp = V_KPREV + (p*2 + hh)*2
                    S1b.append(("lds", "xr", f"ds_read_b64 v[{kp}:{kp+1}], v{V_XA} offset:{(p*2+hh)*1024}"))
                    S1b.append(("lds", "xr", f"ds_read_b64 v[{vp}:{vp+1}], v{V_XA} offset:{(p*2+hh)*1024+512}"))
    else:
        PK, VV = V_VP, V_VP + 16
        TMP = V_QACC + 16 if QE == 0 else V_KP
        KVR = V_HACC; KVO = V_HF
        oth = 1 - rw
        for hh in (oth, rw):
            regs = [acc(Tl, hh, 0) + r for Tl in range(4) for r in range(4)]
            S1 += phi_list(regs, TMP, opt.pk)
            for Tl in range(4):
                k = acc(Tl, hh, 0); v = acc(Tl, hh, 1)
                P(f"v_cvt_pk_bf16_f32 v{PK+hh*8+Tl*2}, v{k}, v{k+1}"); P(f"v_cvt_pk_bf16_f32 v{PK+hh*8+Tl*2+1}, v{k+2}, v{k+3}")
                P(f"v_cvt_pk_bf16_f32 v{VV+hh*8+Tl*2}, v{v}, v{v+1}"); P(f"v_cvt_pk_bf16_f32 v{VV+hh*8+Tl*2+1}, v{v+2}, v{v+3}")
            R = KVR if hh == rw else KVO
            d = vr(R); z = vr(R + 4)
            P(f"v_mfma_f32_16x16x32_bf16 {d}, {vr(PK+hh*8)}, {vr(VV+hh*8)}, 0")
            P(f"v_mfma_f32_16x16x32_bf16 {z}, {vr(PK+hh*8)}, {vr(V_ONES)}, 0")
            P(f"v_mfma_f32_16x16x32_bf16 {d}, {vr(PK+hh*8+4)}, {vr(VV+hh*8+4)}, {d}")
            P(f"v_mfma_f32_16x16x32_bf16 {z}, {vr(PK+hh*8+4)}, {vr(V_ONES)}, {z}")
            if hh == oth: wr_pos = len(S1) + 12
        S1.insert(wr_pos, ("lds", "xw", f"ds_write_b128 v{V_XA}, {vr(KVO)} offset:{rw*2048}"))
        S1.insert(wr_pos + 1, ("lds", "xw", f"ds_write_b128 v{V_XA}, {vr(KVO+4)} offset:{rw*2048+1024}"))
        S1b = [("lds", "xr", f"ds_read_b128 {vr(V_ACC)}, v{V_XA} offset:{oth*2048}"),
               ("lds", "xr", f"ds_read_b128 {vr(V_ACC+4)}, v{V_XA} offset:{oth*2048+1024}"),
               f"s_add_u32 s{S_TAG}, s{S_EK}, 1", f"s_and_b32 s{S_TAG}, s{S_TAG}, 0x7f", f"s_or_b32 s{S_TAG}, s{S_TAG}, 0x80",
               f"v_mov_b32 v4, s{S_TAG}", "v_mov_b32 v5, 0xff",
               f"v_lshrrev_b32 v3, 4, v{V_L}", "v_lshlrev_b32 v3, 4, v3",
               ("need", "xr")]
        for r in range(0, 8, 2): S1b.append(f"v_pk_add_f32 v[{KVR+r}:{KVR+r+1}], v[{KVR+r}:{KVR+r+1}], v[{V_ACC+r}:{V_ACC+r+1}]")
        for r in range(0, 8, opt.tagstep): S1b.append(f"v_bfi_b32 v{KVR+r}, v5, v4, v{KVR+r}")
        S1b.append(("vm", "kvst", [f"buffer_store_dwordx4 {vr(KVR)}, v{V_L16}, {sWS}, s{S_KVS} offen sc1"]))
        S1b.append(("vm", "kvst", ["s_mov_b32 s68, 0x00010001", "s_mov_b32 s69, 0x00010001", "s_mov_b64 exec, s[68:69]",
                    f"buffer_store_dwordx4 {vr(KVR+4)}, v3, {sWS}, s{S_ZS} offen sc1", "s_mov_b64 exec, -1"]))
        S1b.append(("stamp", 4))
    OUTR = V_ACC + 48
    def attention(hh):
        o_ = []; P = o_.append
        U = lambda u: V_ACC + 12*u
        QP = V_HACC
        for u in range(4):
            q = V_QACC + (hh*4 + u)*4
            P(f"v_cvt_pk_bf16_f32 v{QP+2*u}, v{q}, v{q+1}"); P(f"v_cvt_pk_bf16_f32 v{QP+2*u+1}, v{q+2}, v{q+3}")
        P(("need", "xr"))
        for u in range(4):
            tl, p = u >> 1, u & 1
            ko = V_KP + (u*2 + hh)*2
            if tl == 1: kpv, mp = V_KP + ((u-2)*2 + hh)*2, V_MPREV
            elif rw == 1: kpv, mp = V_KPREV + (p*2 + hh)*2, V_MPREV
            else: kpv, mp = V_KPREV + hh*2, V_MHALO + 4*p
            P(f"v_mfma_f32_16x16x16_bf16 {vr(U(u))}, v[{ko}:{ko+1}], v[{QP+2*u}:{QP+2*u+1}], {vr(V_MOWN)}")
            P(f"v_mfma_f32_16x16x16_bf16 {vr(U(u)+4)}, v[{kpv}:{kpv+1}], v[{QP+2*u}:{QP+2*u+1}], {vr(mp)}")
        for u in range(4):
            for r in range(4): P(f"v_max_f32 v{U(u)+r}, v{U(u)+r}, v{U(u)+4+r}")
        for u in range(4): P(f"v_max3_f32 v{U(u)+4}, v{U(u)}, v{U(u)+1}, v{U(u)+2}")
        for u in range(4): P(f"v_max_f32 v{U(u)+4}, v{U(u)+4}, v{U(u)+3}")
        for sw in ("v_permlane32_swap_b32", "v_permlane16_swap_b32"):
            for u in range(4): P(f"v_mov_b32 v{U(u)+5}, v{U(u)+4}")
            for u in range(4): P(f"{sw} v{U(u)+4}, v{U(u)+5}")
            for u in range(4): P(f"v_max_f32 v{U(u)+4}, v{U(u)+4}, v{U(u)+5}")
        for u in range(4): P(f"v_mul_f32 v{U(u)+4}, s{S_NC}, v{U(u)+4}")
        pk = opt.pk and (hh == 1 or opt.pk > 1)
        for u in range(4):
            if pk:
                for r in (0, 2): P(f"v_pk_fma_f32 v[{U(u)+r}:{U(u)+r+1}], v[{U(u)+r}:{U(u)+r+1}], s[96:97], v[{U(u)+4}:{U(u)+5}] op_sel_hi:[1,1,0]")
            else:
                for r in range(4): P(f"v_fma_f32 v{U(u)+r}, v{U(u)+r}, s{S_C}, v{U(u)+4}")
        for u in range(4):
            for r in range(4): P(f"v_exp_f32 v{U(u)+r}, v{U(u)+r}")
        for u in range(4):
            P(f"v_cvt_pk_bf16_f32 v{U(u)+4}, v{U(u)}, v{U(u)+1}"); P(f"v_cvt_pk_bf16_f32 v{U(u)+5}, v{U(u)+2}, v{U(u)+3}")
        for u in range(4):
            P(f"v_and_b32 v{U(u)+10}, v{U(u)+4}, v{V_BM}"); P(f"v_and_b32 v{U(u)+11}, v{U(u)+5}, v{V_BM+1}")
            P(f"v_xor_b32 v{U(u)+8}, v{U(u)+4}, v{U(u)+10}"); P(f"v_xor_b32 v{U(u)+9}, v{U(u)+5}, v{U(u)+11}")
        for u in range(4):
            q = V_QACC + (hh*4 + u)*4
            P(f"v_mfma_f32_16x16x16_bf16 {vr(q)}, v[{V_ONES}:{V_ONES+1}], v[{U(u)+4}:{U(u)+5}], 0")
        for u in range(4):
            tl, p = u >> 1, u & 1
            vp = V_VP + (p*2 + hh)*6 + 2*tl
            P(f"v_mfma_f32_16x16x32_bf16 {vr(U(u))}, {vr(vp)}, {vr(U(u)+8)}, 0")
        for u in range(4):
            q = V_QACC + (hh*4 + u)*4
            P(f"v_rcp_f32 v{q}, v{q}")
        for u in range(4):
            q = V_QACC + (hh*4 + u)*4
            if pk:
                for r in (0, 2): P(f"v_pk_mul_f32 v[{U(u)+r}:{U(u)+r+1}], v[{U(u)+r}:{U(u)+r+1}], v[{q}:{q+1}] op_sel_hi:[1,0]")
            else:
                for r in range(4): P(f"v_mul_f32 v{U(u)+r}, v{U(u)+r}, v{q}")
        for u in range(4):
            o = OUTR + u*4 + hh*2
            P(f"v_cvt_pk_bf16_f32 v{o}, v{U(u)}, v{U(u)+1}"); P(f"v_cvt_pk_bf16_f32 v{o+1}, v{U(u)+2}, v{U(u)+3}")
        return o_
    PQ = V_KP
    def phi_q(hh, tmp):
        o_ = phi_list([V_QACC + hh*16 + i for i in range(16)], tmp, opt.pk and (hh == 1 or opt.pk > 1))
        for Tl in range(4):
            q = V_QACC + (hh*4 + Tl)*4
            o_.append(f"v_cvt_pk_bf16_f32 v{PQ+hh*8+Tl*2}, v{q}, v{q+1}"); o_.append(f"v_cvt_pk_bf16_f32 v{PQ+hh*8+Tl*2+1}, v{q+2}, v{q+3}")
        return o_
    PB = V_ACC
    def gather_items():
        it = []
        for j in range(16):
            pre = [f"s_add_u32 s{S_T2}, s{S_T0}, {j*1024}"] if j % 4 == 0 else []
            it.append(("vm", ("gat", j), pre + [f"buffer_load_dwordx4 {vr(PB+4*j)}, v{V_L16}, {sWS}, s{S_T2} offen offset:{(j%4)*1024} sc1"]))
        it.append(("vm", ("gat", 16), [f"buffer_load_dwordx4 {vr(V_HACC)}, v3, {sWS}, s{S_T1} offen sc1"]))
        return it
    gat_setup = [f"s_lshl_b32 s{S_T0}, s{S_HEAD}, 14", f"s_add_u32 s{S_T0}, s{S_T0}, {WS_KV}",
                 f"s_lshl_b32 s{S_T1}, s{S_HEAD}, 10", f"s_add_u32 s{S_T1}, s{S_T1}, {WS_Z}",
                 f"v_and_b32 v3, 15, v{V_L}", "v_lshlrev_b32 v3, 6, v3",
                 f"v_lshrrev_b32 v4, 4, v{V_L}", "v_lshl_add_u32 v3, v4, 4, v3"]
    S2 = attention(0) if br == 0 else phi_q(0, V_VP)

    K0 = 2*QE
    NH = 16 - K0
    seq = [(hh, ks) for hh in range(2) for ks in range(K0, 16)]
    PRE = 3
    B9 = 8 - PRE
    side = list(S1)
    sync_done = False
    capA = -(-sum(cost(x) for x in S1) // (4 * B9)) + 1
    gq = []
    for n, (hh, ks) in enumerate(seq):
        slot = n % 8
        if n == NH:
            for it in side: g.emit(it)
            side = list(S2)
        if n == B9:
            if br == 0:
                for it in side: g.emit(it)
                side = list(S1b)
            while dq and dq[0][1][1] <= 9: g.emit(dq.pop(0))
            g.ldsall()
            g.vmwait(("c", 9))
            A("s_barrier")
        if br == 1 and not sync_done and ((not side and (n > B9 or opt.early_sync)) or n == NH - 1):
            for it in side: g.emit(it)
            g.ldsall()
            A("s_barrier")
            side = list(S1b); sync_done = True
        if br == 1 and n == opt.gat_at:
            for it in side: g.emit(it)
            side = []
            for it in gat_setup: g.emit(it)
            gq = gather_items()
        rd = q_read(*seq[n + PRE], (n + PRE) % 8) if n + PRE < len(seq) else []
        mf = []
        for Tl in range(4):
            d = vr(V_QACC + (hh*4 + Tl)*4)
            c = "0" if ks == 0 else d
            mf.append((f"v_mfma_f32_16x16x32_bf16 {d}, {vr(V_WF + slot*4)}, {vr(xf(Tl, ks), 4, 'a')}, {c}", [("q", hh, ks)]))
        cap = (capA if br == 0 else opt.b_cap) if n < NH else opt.cap2
        if gq: run_slots(g, mf, [rd, side], cap=cap, dma=gq, dma_every=opt.gat_every, dma_phase=0)
        else: run_slots(g, mf, [rd, side], cap=cap, dma=dq, dma_every=4, dma_phase=3)
        for it in rd: g.emit(it)
    for it in side: g.emit(it)
    for it in dq: g.emit(it)
    for it in gq: g.emit(it)
    gq = []
    g.stamp(5)
    if opt.d2late:
        d2 = []
    else:
        g.ldsall()
        g.vmwait(("c", 11))
        A("s_barrier")
        d2 = chunk_dmas(g, 12, False) + chunk_dmas(g, 13, False)
    def with_dma(items, every):
        k = 0
        for it in items:
            g.emit(it); k += 1
            if k % every == 0 and d2: g.emit(d2.pop(0))
    def spin_guard(lbl_out):
        A(f"s_sub_u32 s{S_SPIN}, s{S_SPIN}, 1")
        A(f"s_cbranch_scc1 {lbl_out}")
    if br == 0:
        with_dma(attention(1), 9)
        for it in d2: g.emit(it)
    else:
        if opt.gat_at >= 2*NH:
            for it in gat_setup: g.emit(it)
            for it in gather_items(): g.emit(it)
        A(f"v_mov_b32 v6, s{S_TAG}")
        with_dma(phi_q(1, V_WF), 9)
        g.stamp(6)
        SUM = V_WF + 16
        def chk_sum(first):
            for j in range(16):
                if first: g.vmwait(("gat", j))
                b = PB + 4*j
                for k_, r in enumerate(range(0, 4, opt.tagstep)):
                    a_ = "0" if (j == 0 and k_ < 2) else f"v{4+(k_&1)}"
                    A(f"v_msad_u8 v{4+(k_&1)}, v{b+r}, v6, {a_}")
                for r in range(0, 4, 2):
                    if j == 0: A(f"v_pk_add_f32 v[{SUM+r}:{SUM+r+1}], v[{b+r}:{b+r+1}], v[{b+4+r}:{b+5+r}]") if False else None
                    if j == 1: A(f"v_pk_add_f32 v[{SUM+r}:{SUM+r+1}], v[{PB+r}:{PB+r+1}], v[{b+r}:{b+r+1}]")
                    elif j > 1: A(f"v_pk_add_f32 v[{SUM+r}:{SUM+r+1}], v[{SUM+r}:{SUM+r+1}], v[{b+r}:{b+r+1}]")
                if first and d2 and j % 2 == 1: g.emit(d2.pop(0))
            if first: g.vmwait(("gat", 16))
            for k_, r in enumerate(range(0, 4, opt.tagstep)): A(f"v_msad_u8 v{4+(k_&1)}, v{V_HACC+r}, v6, v{4+(k_&1)}")
            A("v_or_b32 v4, v4, v5")
            A("v_cmp_ne_u32 vcc, 0, v4")
        chk_sum(True)
        for it in d2: g.emit(it)
        A(f"s_cbranch_vccz L_kvok_{tag}")
        g.label(f"L_kvretry_{tag}")
        spin_guard(f"L_kvok_{tag}")
        A(f"s_sleep {opt.kv_sleep}")
        sv = g.vm; g.vm = VM()
        for it in gather_items(): g.emit(it)
        g.vm = sv
        A("s_waitcnt vmcnt(0)")
        chk_sum(False)
        A(f"s_cbranch_vccnz L_kvretry_{tag}")
        g.label(f"L_kvok_{tag}")
        g.stamp(7)
        for rot in (8, 4, 2, 1):
            for r in range(4):
                A(f"v_add_f32_dpp v{V_HACC+r}, v{V_HACC+r}, v{V_HACC+r} row_ror:{rot} row_mask:0xf bank_mask:0xf")
        KZ = V_WF
        A(f"v_cvt_pk_bf16_f32 v{KZ+rw*4}, v{SUM}, v{SUM+1}"); A(f"v_cvt_pk_bf16_f32 v{KZ+rw*4+1}, v{SUM+2}, v{SUM+3}")
        A(f"v_cvt_pk_bf16_f32 v{KZ+rw*4+2}, v{V_HACC}, v{V_HACC+1}"); A(f"v_cvt_pk_bf16_f32 v{KZ+rw*4+3}, v{V_HACC+2}, v{V_HACC+3}")
        A(f"ds_write_b128 v{V_XA}, {vr(KZ+rw*4)} offset:{4096 + rw*1024}")
        NUM = V_ACC; DEN = V_QACC
        def omf(hh):
            for Tl in range(4):
                u = hh*4 + Tl; pq = PQ + hh*8 + Tl*2
                A(f"v_mfma_f32_16x16x16_bf16 {vr(DEN+4*u)}, v[{KZ+hh*4+2}:{KZ+hh*4+3}], v[{pq}:{pq+1}], 0")
                A(f"v_mfma_f32_16x16x16_bf16 {vr(NUM+4*u)}, v[{KZ+hh*4}:{KZ+hh*4+1}], v[{pq}:{pq+1}], 0")
        def ofin(us):
            for u in us: A(f"v_add_f32 v{DEN+4*u}, s{S_EPS}, v{DEN+4*u}")
            for u in us: A(f"v_rcp_f32 v{DEN+4*u}, v{DEN+4*u}")
            for u in us:
                for r in (0, 2): A(f"v_pk_mul_f32 v[{NUM+4*u+r}:{NUM+4*u+r+1}], v[{NUM+4*u+r}:{NUM+4*u+r+1}], v[{DEN+4*u}:{DEN+4*u+1}] op_sel_hi:[1,0]")
            for u in us:
                hh, Tl = u >> 2, u & 3
                o = OUTR + Tl*4 + hh*2
                A(f"v_cvt_pk_bf16_f32 v{o}, v{NUM+4*u}, v{NUM+4*u+1}"); A(f"v_cvt_pk_bf16_f32 v{o+1}, v{NUM+4*u+2}, v{NUM+4*u+3}")
        omf(rw)
        A("s_waitcnt lgkmcnt(0)")
        A("s_barrier")
        A(f"ds_read_b128 {vr(KZ+(1-rw)*4)}, v{V_XA} offset:{4096 + (1-rw)*1024}")
        ofin([rw*4 + i for i in range(4)])
        A("s_waitcnt lgkmcnt(0)")
        omf(1 - rw)
        if rw == 0:
            A(f"s_or_b32 s{S_T2}, s{S_RB}, s{S_CW}")
            A(f"s_cmp_lg_u32 s{S_T2}, 0")
            A(f"s_cbranch_scc1 L_nobk_{tag}")
            A(f"s_add_u32 s{S_T2}, s{S_EK}, 1")
            A(f"v_mov_b32 v4, s{S_T2}"); A("v_mov_b32 v5, 0")
            A("s_mov_b64 exec, 1")
            A(f"buffer_store_dword v4, v5, {sWS}, s{S_EKA} offen sc1")
            A("s_mov_b64 exec, -1")
            g.label(f"L_nobk_{tag}")
        ofin([(1-rw)*4 + i for i in range(4)])
    for Tl in range(4):
        A(f"s_add_u32 s{S_T2}, s{S_OST}, {Tl*16384}")
        A(f"buffer_store_dwordx4 {vr(OUTR+4*Tl)}, v{V_L16}, {sWS}, s{S_T2} offen sc1")
    g.stamp(8)
    A("s_branch L_phase2")

def phase2(g):
    A = g.A
    opt = g.opt
    g.label("L_phase2")
    g.lds = []; g.vm = VM()
    OF = 64; ACC = 128; VR0 = 20
    l = f"v{V_L}"
    A(f"v_and_b32 v2, 15, {l}"); A(f"v_lshrrev_b32 v3, 4, {l}")
    A("v_lshrrev_b32 v4, 2, v2"); A("v_and_b32 v5, 3, v2")
    A("v_lshl_add_u32 v6, v3, 2, v4")
    A("v_and_b32 v7, 7, v6")
    A("v_lshlrev_b32 v6, 8, v6"); A("v_lshl_add_u32 v6, v5, 3, v6"); A("v_lshl_add_u32 v6, v7, 5, v6")
    for c in range(8):
        A(f"v_xor_b32 v{VR0+2*c}, {c*32}, v6")
        A(f"v_add_u32 v{VR0+2*c+1}, 65536, v{VR0+2*c}")
    NV = opt.p2_nv
    def freg(hp, c):
        if hp < 8: return ("a", (hp*8 + c)*4)
        if hp < 8 + NV: return ("v", 160 + ((hp - 8)*8 + c)*4)
        return ("a", ((hp - 8 - NV)*8 + c)*4)
    def rd(hp, c):
        out = []
        k_, a = freg(hp, c)
        for t in range(2):
            const = WOB[hp >> 2] + (hp & 3)*8192 + t*4096
            out.append(("lds", ("o", hp, c), f"ds_read_b64_tr_b16 {k_}[{a+2*t}:{a+2*t+1}], v{VR0 + 2*c + (const >> 16)} offset:{const & 0xffff}"))
        return out
    def preload(hps):
        for hp in hps:
            for c in range(8):
                for it in rd(hp, c): g.emit(it)
                if len(g.lds) >= 12: g.need(g.lds[3])
    A(f"s_add_u32 s{S_T0}, s{S_EO}, 1")
    A(f"v_mov_b32 v6, s{S_T0}"); A(f"v_mov_b32 v7, s{S_EO+1}")
    A("v_mov_b32 v5, 0")
    A("v_lshlrev_b32 v8, 3, v2")
    A("v_lshlrev_b32 v2, 12, v2")
    A("v_and_b32 v4, 1, v3"); A("v_lshl_add_u32 v2, v4, 5, v2")
    A("v_lshrrev_b32 v4, 1, v3"); A("v_lshl_add_u32 v2, v4, 4, v2")
    A(f"s_lshl_b32 s{S_XB}, s{S_RB}, 18")
    A(rh_(g, S_T1)); A(f"s_lshl_b32 s{S_T1}, s{S_T1}, 17"); A(f"s_add_u32 s{S_XB}, s{S_XB}, s{S_T1}")
    A(f"s_lshl_b32 s{S_T1}, s{S_RW}, 16"); A(f"s_add_u32 s{S_XB}, s{S_XB}, s{S_T1}")
    A(f"s_lshl_b32 s{S_T1}, s{S_CW}, 11"); A(f"s_add_u32 s{S_XB}, s{S_XB}, s{S_T1}")
    A(f"s_lshl_b32 s{S_T1}, s{S_BR}, 10"); A(f"s_add_u32 s{S_XB}, s{S_XB}, s{S_T1}")
    A(cs_(g, S_T1)); A(f"s_lshl_b32 s{S_T1}, s{S_T1}, 8"); A(f"s_add_u32 s{S_XB}, s{S_XB}, s{S_T1}")
    if opt.d2late:
        A("s_waitcnt vmcnt(4)")
        A("s_barrier")
        d2 = chunk_dmas(g, 12, False) + chunk_dmas(g, 13, False)
        preload(range(opt.p2_pre1))
        A("s_waitcnt vmcnt(0)")
        A("s_mov_b64 exec, 1")
        A(f"buffer_store_dwordx2 v[6:7], v5, {sWS}, s{S_FLO} offen sc1")
        A("s_mov_b64 exec, -1")
        g.stamp(9)
        for hp in range(opt.p2_pre1, 8):
            for c in range(8):
                for it in rd(hp, c): g.emit(it)
                if d2: g.emit(d2.pop(0))
                if len(g.lds) >= 12: g.need(g.lds[3])
        for it in d2: g.emit(it)
        A("s_waitcnt vmcnt(0)")
        A("s_barrier")
        preload(range(8, 8 + NV))
        g.ldsall()
    else:
        preload(range(opt.p2_pre1))
        A("s_waitcnt vmcnt(0)")
        A("s_mov_b64 exec, 1")
        A(f"buffer_store_dwordx2 v[6:7], v5, {sWS}, s{S_FLO} offen sc1")
        A("s_mov_b64 exec, -1")
        g.stamp(9)
        A("s_barrier")
        preload(range(opt.p2_pre1, 8 + NV))
        g.ldsall()
    A(f"s_cmp_lg_u32 s{S_WV}, 0")
    A("s_cbranch_scc1 L_ook")
    if opt.poll0: A(f"s_sleep {opt.poll0}")
    A("s_branch L_opoll1")
    g.label("L_opoll")
    A(f"s_sub_u32 s{S_SPIN}, s{S_SPIN}, 1")
    A("s_cbranch_scc1 L_ook")
    A(f"s_sleep {opt.poll1}")
    g.label("L_opoll1")
    A(f"buffer_load_dwordx2 v[10:11], v8, {sWS}, s{S_FLN} offen sc1")
    A("s_waitcnt vmcnt(0)")
    A("v_cmp_ne_u64 vcc, v[10:11], v[6:7]")
    A("s_cbranch_vccnz L_opoll")
    g.label("L_ook")
    A("s_waitcnt vmcnt(0)")
    g.vm = VM()
    A("s_barrier")
    g.stamp(10)
    lq = []
    for hp in range(16):
        pre = [f"s_add_u32 s{S_T2}, s{S_OLD}, {hp*1024}"] if hp % 4 == 0 else []
        lq.append(("vm", ("of", hp), pre + [f"buffer_load_dwordx4 {vr(OF + 4*hp)}, v{V_L16}, {sWS}, s{S_T2} offen offset:{(hp % 4)*1024} sc1"]))
    for it in lq[:opt.p2_first]: g.emit(it)
    lq = lq[opt.p2_first:]
    rq = []
    for hp in range(16):
        while lq and lq[0][1][1] <= hp: g.emit(lq.pop(0))
        while rq and rq[0][1][1] <= hp: g.emit(rq.pop(0))
        g.vmwait(("of", hp))
        if hp % 4 == 0: g.stamp(3 + hp//4, kv="p2")
        mf = []
        for c in range(8):
            d = vr(ACC + 4*c)
            k_, a = freg(hp, c)
            mf.append((f"v_mfma_f32_16x16x32_bf16 {d}, {vr(a, 4, k_)}, {vr(OF + 4*hp)}, {'0' if hp == 0 else d}", [("o", hp, c)]))
        if hp >= 1 and hp - 1 + 8 + NV < 16:
            for c in range(8): rq += rd(hp - 1 + 8 + NV, c)
        run_slots(g, mf, [rq], cap=opt.p2_cap, dma=lq, dma_every=opt.p2_every, dma_phase=0)
    g.stamp(7, kv="p2")
    A(f"s_or_b32 s{S_T2}, s{S_HG}, s{S_WV}")
    A(f"s_cmp_lg_u32 s{S_T2}, 0")
    A("s_cbranch_scc1 L_nobo")
    A("s_mov_b64 exec, 1")
    A(f"buffer_store_dword v6, v5, {sWS}, s{S_EOA} offen sc1")
    A("s_mov_b64 exec, -1")
    g.label("L_nobo")
    for cp in range(4):
        o = 64 + cp*4
        for h in range(2):
            a = ACC + (2*cp + h)*4
            A(f"v_cvt_pk_bf16_f32 v{o+2*h}, v{a}, v{a+1}"); A(f"v_cvt_pk_bf16_f32 v{o+2*h+1}, v{a+2}, v{a+3}")
    for cp in range(4):
        o = 64 + cp*4
        A(f"v_permlane16_swap_b32 v{o}, v{o+2}")
        A(f"v_permlane16_swap_b32 v{o+1}, v{o+3}")
        A(f"buffer_store_dwordx4 {vr(o)}, v2, {sOUT}, s{S_XB} offen offset:{cp*64}{opt.outpol}")
    if opt.stamps:
        A("s_waitcnt vmcnt(0)")
        g.stamp(11)
        A("s_waitcnt lgkmcnt(0)")
        A(f"s_cmp_lg_u32 s{S_WV}, {opt.stamp_wave}")
        A("s_cbranch_scc1 L_end")
        if opt.dbgstamps:
            A("s_load_dwordx2 s[16:17], s[0:1], 56")
            A("v_mov_b32 v100, 0")
            for j in range(12):
                if opt.dbgbr >= 0 or j not in (4, 6, 7):
                    A(f"v_writelane_b32 v100, s{72+2*j}, {j}")
            for j, src in ((12, 0), (13, 2), (14, 3), (15, 11)):
                A(f"s_not_b32 s{S_T0}, s{72+2*src}")
                A(f"v_writelane_b32 v100, s{S_T0}, {j}")
            A("s_waitcnt lgkmcnt(0)")
            A("s_mov_b32 s18, 256"); A("s_mov_b32 s19, 0x20000")
            if opt.dbgbr >= 0:
                A(f"s_cmp_lg_u32 s{S_BR}, {opt.dbgbr}")
                A("s_cbranch_scc1 L_end")
            A(f"v_lshlrev_b32 v3, 2, v{V_L}")
            A("s_mov_b64 exec, 0xffff")
            A("buffer_atomic_umax v100, v3, s[16:19], 0 offen sc1")
            A("s_branch L_end")
        for j in range(24): A(f"v_mov_b32 v{100+j}, s{72+j}")
        A(f"s_mul_i32 s{S_T0}, s2, 96")
        A(f"s_add_u32 s{S_T0}, s{S_T0}, {WS_STAMP}")
        A("v_mov_b32 v3, 0")
        A("s_mov_b64 exec, 1")
        for j in range(6):
            A(f"buffer_store_dwordx4 v[{100+4*j}:{103+4*j}], v3, {sWS}, s{S_T0} offen offset:{16*j}")

def main():
    ap = argparse.ArgumentParser()
    ap.add_argument("-o", default="out.s")
    ap.add_argument("--stamps", type=int, default=0)
    ap.add_argument("--kvstamps", type=int, default=0)
    ap.add_argument("--p2stamps", type=int, default=0)
    ap.add_argument("--dbgstamps", type=int, default=0)
    ap.add_argument("--dbgbr", type=int, default=-1)
    ap.add_argument("--bfirst", type=int, default=0)
    ap.add_argument("--stamp-wave", type=int, default=0)
    ap.add_argument("--bar-after", type=int, default=4)
    ap.add_argument("--nt", type=int, default=0)
    ap.add_argument("--pfnt", type=int, default=0)
    ap.add_argument("--pf", type=int, default=0)
    ap.add_argument("--pre3", type=int, default=0)
    ap.add_argument("--pf-first", type=int, default=2)
    ap.add_argument("--pf-pos", type=int, default=0)
    ap.add_argument("--pf-init", type=int, default=2)
    ap.add_argument("--warmcode", type=int, default=0)
    ap.add_argument("--warmoff", type=int, default=0)
    ap.add_argument("--dma-every", type=int, default=4)
    ap.add_argument("--dma-fast", type=int, default=2)
    ap.add_argument("--cap", type=int, default=2)
    ap.add_argument("--cap-even", type=int, default=1)
    ap.add_argument("--b-cap", type=int, default=5)
    ap.add_argument("--cap2", type=int, default=3)
    ap.add_argument("--gat-at", type=int, default=27)
    ap.add_argument("--gat-every", type=int, default=1)
    ap.add_argument("--kv-sleep", type=int, default=4)
    ap.add_argument("--poll0", type=int, default=8)
    ap.add_argument("--poll1", type=int, default=6)
    ap.add_argument("--outpol", default="")
    ap.add_argument("--p2-first", type=int, default=6)
    ap.add_argument("--p2-every", type=int, default=4)
    ap.add_argument("--early-sync", type=int, default=1)
    ap.add_argument("--rot", type=int, default=7)
    ap.add_argument("--d2late", type=int, default=0)
    ap.add_argument("--qearly", type=int, default=0)
    ap.add_argument("--cmap", type=int, default=1)
    ap.add_argument("--pk", type=int, default=1)
    ap.add_argument("--tagstep", type=int, default=2)
    ap.add_argument("--p2-nv", type=int, default=3)
    ap.add_argument("--p2-pre1", type=int, default=6)
    ap.add_argument("--p2-cap", type=int, default=1)
    ap.add_argument("--wo-at", type=int, default=4)
    ap.add_argument("--wc-at", type=int, default=0)
    opt = ap.parse_args()
    if opt.outpol: opt.outpol = " " + opt.outpol.replace(",", " ")
    g = G(opt)
    global QE
    QE = opt.qearly
    global PFPOL
    PFPOL = " nt" if opt.pfnt else ""
    K = NAME + "_kernel"
    head = ["; generated by gen/gen8.py  " + " ".join(sys.argv[1:]),
            "; @launch grid=(256,1,1) block=(256,1,1) lds=163840",
            '.amdgcn_target "amdgcn-amd-amdhsa--gfx950"', ".text",
            f".globl {K}", ".p2align 8", f".type {K},@function", f"{K}:"]
    A = g.A
    g.stamp(0)
    decode(g)
    A(f"s_lshl_b32 s{S_T0}, s{S_BR}, 1")
    A(f"s_add_u32 s{S_T0}, s{S_T0}, s{S_RW}")
    for v in (1, 2, 3):
        A(f"s_cmp_eq_u32 s{S_T0}, {v}")
        A(f"s_cbranch_scc1 L_path{v}")
    for v in range(4):
        g.label(f"L_path{v}")
        phase1_path(g, v >> 1, v & 1)
    phase2(g)
    g.label("L_end")
    A("s_endpgm")
    body, n = fix_hazards(g.L)
    tail = ['.section .rodata,"a"', ".p2align 6", f".amdhsa_kernel {K}", "  .amdhsa_next_free_vgpr 512", "  .amdhsa_next_free_sgpr 102",
            "  .amdhsa_accum_offset 256", "  .amdhsa_group_segment_fixed_size 0", "  .amdhsa_kernarg_size 72",
            "  .amdhsa_user_sgpr_count 2", "  .amdhsa_user_sgpr_kernarg_segment_ptr 1",
            "  .amdhsa_system_sgpr_workgroup_id_x 1", ".end_amdhsa_kernel"]
    open(opt.o, "w").write("\n".join(head + body + tail) + "\n")
    print(f"wrote {opt.o}: {len(body)} lines, {n} nops inserted")

main()
```

```python
import sys, argparse
from asmlib import fix_hazards, VM

NAME = "concat_heads__sliding_local_dilated__linear_attn_block__prompt"
STAGE = 34816
WOFF = 18432
XCH = 4 * STAGE
WS_KV = 0x400000
WS_Z = 0x480000
WS_EO = 0x500000
WS_EK = 0x501000
WS_FL = 0x502000
WS_STAMP = 0x8000000
NEG = 0xF149F2CA
LOG2E = 0x3FB8AA3B
CSC = 0x3EB8AA3B
NCSC = 0xBEB8AA3B
EPS = 0x358637BD
SPIN = 300000

sX, sW, sWS, sWO, sOUT = "s[24:27]", "s[28:31]", "s[32:35]", "s[40:43]", "s[44:47]"
S_BR, S_RB, S_HG, S_WV, S_RW, S_CW = 48, 49, 50, 51, 52, 53
S_XB, S_HB, S_WB, S_LW, S_T0, S_T1, S_T2, S_C, S_NC, S_L2E, S_EPS, S_WOB, S_LWH = 54, 55, 56, 57, 58, 59, 60, 61, 62, 63, 64, 65, 67
S_HEAD, S_SPIN = 70, 71
S_WB1 = 66
S_OST, S_KVS, S_ZS, S_LWO, S_OLD, S_IDX, S_XCD = 4, 5, 6, 7, 8, 23, 22
S_PFX, S_PFW, S_FLN, S_FLO, S_EOA, S_EKA, S_TAG = 9, 10, 11, 12, 13, 14, 15
S_EO, S_EK = 36, 38
S_ROT, S_RC = 16, 17
V_L = 1
V_XD = 10
V_WD = 14
V_XH, V_WO = 18, 19
V_XR = 20
V_HR = 26
V_WR = 32
V_OR = 38
V_L16 = 46
V_L8 = 47
V_MOWN, V_MPREV, V_MHALO, V_BM, V_ONES = 48, 52, 56, 64, 66
V_PF0, V_PF1 = 70, 71
V_ACC = 72
V_HACC = 136
V_WF = 144
V_HF = 176
V_QACC = 184
V_VP = 216
V_KP = 240
V_KPREV = 176
V_XA = 9
V_QF = 216
QE = 0
def wq_base(cq):
    if cq < QE: return None
    r = cq - QE
    st = ((8 + (r >> 2)) % 4) * STAGE
    return st + ((r & 3) >> 1)*16384 + (r & 1)*1024
PFPOL = ""
V_WO4 = [12, 13, 16, 17]
WOB = [67584, 100352, 0, 32768]

def vr(b, n=4, k="v"): return f"{k}[{b}:{b+n-1}]"
def ldsaddr(base_reg, const):
    return f"v{base_reg + (const >> 16)}", const & 0xFFFF

class G:
    def __init__(self, opt):
        self.L = []; self.opt = opt; self.lds = []; self.vm = VM()
    def A(self, s):
        if s.endswith(":"): self.L.append(s)
        else: self.L.append("    " + s)
    def label(self, s): self.L.append(s + ":")
    def stamp(self, i, kv=False):
        o = self.opt
        if not o.stamps: return
        if o.kvstamps and i >= 3 and not kv and i != 11: return
        if kv is True and not o.kvstamps: return
        if o.p2stamps and 3 <= i <= 7 and kv != "p2": return
        if kv == "p2" and not o.p2stamps: return
        self.A(f"s_memrealtime s[{72+2*i}:{73+2*i}]")
    def emit(self, it):
        if isinstance(it, str): self.A(it)
        elif isinstance(it, list):
            for s in it: self.emit(s)
        elif it[0] == "lds":
            self.lds.append(it[1]); self.A(it[2])
        elif it[0] == "vm":
            self.vm.add(it[1])
            for s in it[2]: self.A(s)
        elif it[0] == "need": self.need(it[1])
        elif it[0] == "ldsall": self.ldsall()
        elif it[0] == "stamp": self.stamp(it[1])
        else: raise ValueError(it)
    def need(self, tag):
        idx = max((i for i, t in enumerate(self.lds) if t == tag), default=None)
        if idx is None: return
        n = len(self.lds) - 1 - idx
        self.lds = self.lds[idx + 1:]
        self.A(f"s_waitcnt lgkmcnt({min(n, 15)})")
    def ldsall(self):
        self.lds = []
        self.A("s_waitcnt lgkmcnt(0)")
    def vmwait(self, tag):
        n = self.vm.wait_n(tag)
        if n is not None: self.A(f"s_waitcnt vmcnt({n})")

def cost(it):
    if isinstance(it, str): return 1
    if isinstance(it, list): return sum(cost(x) for x in it)
    if it[0] == "vm": return len(it[2])
    return 1

def run_slots(g, mf, queues, cap=2, dma=None, dma_every=4, dma_phase=0):
    for i, (m, needs) in enumerate(mf):
        for t in needs: g.need(t)
        g.A(m)
        room = cap
        if dma and (i % dma_every) == dma_phase:
            it = dma.pop(0); g.emit(it); room -= min(cost(it), 2)
        for q in queues:
            while q and room > 0:
                it = q.pop(0); g.emit(it); room -= cost(it)

def cs_(g, r): return f"s_and_b32 s{r}, s{S_HG}, 3" if g.opt.cmap else f"s_lshr_b32 s{r}, s{S_HG}, 1"
def rh_(g, r): return f"s_lshr_b32 s{r}, s{S_HG}, 2" if g.opt.cmap else f"s_and_b32 s{r}, s{S_HG}, 1"

def decode(g):
    A = g.A
    A("s_cmp_ge_u32 s2, 256")
    A("s_cbranch_scc1 L_end")
    A("s_load_dwordx16 s[4:19], s[0:1], 0")
    A("s_load_dwordx2 s[20:21], s[0:1], 64")
    A("v_lshrrev_b32 v2, 6, v0")
    A(f"v_and_b32 v{V_L}, 63, v0")
    A(f"v_readfirstlane_b32 s{S_WV}, v2")
    A("s_and_b32 s22, s2, 7")
    A("s_lshr_b32 s23, s2, 3")
    A(f"s_lshr_b32 s{S_BR}, s22, 2")
    if g.opt.bfirst: A(f"s_xor_b32 s{S_BR}, s{S_BR}, 1")
    A(f"s_bfe_u32 s{S_RB}, s22, 0x10001")
    A(f"s_lshl_b32 s{S_RB}, s{S_RB}, 3")
    A(f"s_and_b32 s{S_T0}, s23, 7")
    A(f"s_add_u32 s{S_RB}, s{S_RB}, s{S_T0}")
    A(f"s_and_b32 s{S_HG}, s22, 1")
    A(f"s_lshl_b32 s{S_HG}, s{S_HG}, 2")
    A(f"s_lshr_b32 s{S_T0}, s23, 3")
    A(f"s_add_u32 s{S_T0}, s{S_T0}, s23")
    A(f"s_and_b32 s{S_T0}, s{S_T0}, 3")
    A(f"s_add_u32 s{S_HG}, s{S_HG}, s{S_T0}")
    A(f"s_lshr_b32 s{S_RW}, s{S_WV}, 1")
    A(f"s_and_b32 s{S_CW}, s{S_WV}, 1")
    l = f"v{V_L}"
    A(f"v_lshrrev_b32 v2, 3, {l}")
    A(f"v_and_b32 v3, 7, {l}")
    A(f"v_lshrrev_b32 v4, 4, {l}")
    A("v_xor_b32 v5, v3, v4")
    A("v_lshlrev_b32 v6, 11, v2")
    A(f"v_lshl_add_u32 v{V_XD}, v5, 4, v6")
    A(f"v_xor_b32 v7, 64, v{V_XD}")
    A(f"v_add_u32 v{V_XD+1}, {14*1024}, v7")
    A("v_and_b32 v5, 1, v4")
    A("v_lshlrev_b32 v5, 1, v5")
    A("v_xor_b32 v5, v3, v5")
    A("v_mul_u32_u24 v7, 3072, v2")
    A(f"v_lshl_add_u32 v{V_WD}, v5, 4, v7")
    A(f"v_xor_b32 v7, 64, v{V_WD}")
    A(f"v_add_u32 v{V_WD+1}, 22528, v7")
    A(f"s_lshl_b32 s{S_T0}, s{S_WV}, 1")
    A(f"v_add_u32 v5, s{S_T0}, v4")
    A("v_xor_b32 v5, v3, v5")
    A(f"v_lshl_add_u32 v{V_XH}, v5, 4, v6")
    A(f"s_lshl_b32 s{S_XB}, s{S_RB}, 17")
    A(f"s_lshl_b32 s{S_T0}, s{S_WV}, 15")
    A(f"s_add_u32 s{S_XB}, s{S_XB}, s{S_T0}")
    A(f"s_lshl_b32 s{S_HB}, s{S_RB}, 7")
    A(f"s_sub_i32 s{S_HB}, s{S_HB}, 16")
    A(f"s_max_i32 s{S_HB}, s{S_HB}, 0")
    A(f"s_lshl_b32 s{S_T0}, s{S_CW}, 3")
    A(f"s_add_u32 s{S_HB}, s{S_HB}, s{S_T0}")
    A(f"s_add_u32 s{S_HB}, s{S_HB}, s{S_RW}")
    A(f"s_lshl_b32 s{S_HB}, s{S_HB}, 10")
    A(f"s_mul_i32 s{S_WB}, s{S_WV}, 49152")
    A(f"s_lshl_b32 s{S_T0}, s{S_HG}, 7")
    A(f"s_add_u32 s{S_WB}, s{S_WB}, s{S_T0}")
    A(f"s_add_u32 s{S_WB1}, s{S_WB}, 1024")
    A(f"s_lshl_b32 s{S_LW}, s{S_WV}, 12")
    A(f"s_lshl_b32 s{S_LWH}, s{S_WV}, 9")
    A(f"s_lshl_b32 s{S_WOB}, s{S_WV}, 15")
    A(cs_(g, S_T0))
    A(f"s_lshl_b32 s{S_T0}, s{S_T0}, 8")
    A(f"s_add_u32 s{S_WOB}, s{S_WOB}, s{S_T0}")
    if g.opt.pf == 4: pf4_pre(g)
    A("s_waitcnt lgkmcnt(0)")
    A(f"s_cmp_eq_u32 s{S_BR}, 0")
    A("s_cselect_b32 s24, s4, s10"); A("s_cselect_b32 s25, s5, s11"); A("s_mov_b32 s26, 0x200000"); A("s_mov_b32 s27, 0x20000")
    A("s_cselect_b32 s28, s6, s12"); A("s_cselect_b32 s29, s7, s13"); A("s_mov_b32 s30, 0x180000"); A("s_mov_b32 s31, 0x20000")
    A("s_cselect_b32 s40, s8, s14"); A("s_cselect_b32 s41, s9, s15"); A("s_mov_b32 s42, 0x80000"); A("s_mov_b32 s43, 0x20000")
    A("s_mov_b32 s32, s20"); A("s_mov_b32 s33, s21"); A("s_mov_b32 s34, 0x10000000"); A("s_mov_b32 s35, 0x20000")
    A("s_mov_b32 s44, s16"); A("s_mov_b32 s45, s17"); A("s_mov_b32 s46, 0x400000"); A("s_mov_b32 s47, 0x20000")
    if g.opt.rot == 3: A(f"s_lshl_b32 s{S_ROT}, s{S_HG}, 1")
    elif g.opt.rot == 4: A(f"s_mov_b32 s{S_ROT}, s{S_RB}")
    elif g.opt.rot == 5: A(f"s_mov_b32 s{S_ROT}, s{S_HG}")
    elif g.opt.rot == 6: A(f"s_lshl_b32 s{S_ROT}, s{S_HG}, 2")
    elif g.opt.rot == 7: A(f"s_lshl_b32 s{S_ROT}, s{S_RB}, 2")
    elif g.opt.rot == 8:
        A(f"s_xor_b32 s{S_ROT}, s{S_RB}, s{S_HG}"); A(f"s_lshl_b32 s{S_ROT}, s{S_ROT}, 2")
    elif g.opt.rot == 10: A(f"s_lshl_b32 s{S_ROT}, s{S_RB}, 1")
    elif g.opt.rot == 11:
        A(f"s_lshl_b32 s{S_ROT}, s{S_HG}, 2"); A(f"s_add_u32 s{S_ROT}, s{S_ROT}, s{S_RB}")
    elif g.opt.rot == 9: A(f"s_mov_b32 s{S_ROT}, 4")
    elif g.opt.rot:
        A(f"s_lshl_b32 s{S_ROT}, s{S_HG}, 1")
        A(f"s_add_u32 s{S_ROT}, s{S_ROT}, s{S_RB}")
        if g.opt.rot == 2:
            A(f"s_lshr_b32 s{S_T0}, s{S_HG}, 2"); A(f"s_add_u32 s{S_ROT}, s{S_ROT}, s{S_T0}")
            A(f"s_lshr_b32 s{S_T0}, s{S_RB}, 3"); A(f"s_lshl_b32 s{S_T0}, s{S_T0}, 2"); A(f"s_add_u32 s{S_ROT}, s{S_ROT}, s{S_T0}")
    else:
        A(f"s_mov_b32 s{S_ROT}, 0")

def chunk_dmas(g, c, halo):
    st = (c % 4) * STAGE
    nt = " nt" if g.opt.nt else ""
    tag = ("c", c)
    out = []
    if c < 8:
        rc = [f"s_add_u32 s{S_RC}, s{S_ROT}, {c}", f"s_and_b32 s{S_RC}, s{S_RC}, 7"]
        for i in range(4):
            pre = rc + [f"s_add_u32 m0, s{S_LW}, {st}", f"s_lshl_b32 s{S_T2}, s{S_RC}, 7", f"s_add_u32 s{S_T2}, s{S_T2}, s{S_XB}"] if i == 0 else []
            out.append(("vm", tag, pre + [f"buffer_load_dwordx4 v{V_XD+(i>>1)}, {sX}, s{S_T2} offen offset:{i*1024}{nt} lds"]))
        for j in range(4):
            pre = [f"s_add_u32 m0, s{S_LW}, {st + WOFF}", f"s_mul_i32 s{S_T2}, s{S_RC}, 196608", f"s_add_u32 s{S_T2}, s{S_T2}, s{S_WB1}"] if j == 0 else []
            out.append(("vm", tag, pre + [f"buffer_load_dwordx4 v{V_WD+(j>>1)}, {sW}, s{S_T2} offen offset:{j*1024}{nt} lds"]))
        if c < QE:
            for bb in range(2):
                pre = [f"s_lshl_b32 s{S_T2}, s{S_WV}, 11", f"s_add_u32 m0, s{S_T2}, {XCH + c*8192 - 1024}",
                       f"s_mul_i32 s{S_T2}, s{S_RC}, 196608", f"s_add_u32 s{S_T2}, s{S_T2}, s{S_WB}"] if bb == 0 else []
                pre = [f"s_lshl_b32 s{S_T1}, s{S_WV}, 11", f"s_add_u32 m0, s{S_T1}, {XCH + c*8192 + bb*1024 - bb*2048}"] + \
                      ([f"s_mul_i32 s{S_T2}, s{S_RC}, 196608", f"s_add_u32 s{S_T2}, s{S_T2}, s{S_WB}"] if bb == 0 else [])
                out.append(("vm", tag, pre + [f"buffer_load_dwordx4 v{V_WD+bb}, {sW}, s{S_T2} offen offset:{bb*2048}{nt} lds"]))
        if halo:
            out.append(("vm", tag, [f"s_add_u32 m0, s{S_LWH}, {st + 16384}", f"s_lshl_b32 s{S_T2}, s{S_RC}, 7", f"s_add_u32 s{S_T2}, s{S_T2}, s{S_HB}",
                        "s_mov_b32 exec_hi, 0", f"buffer_load_dwordx4 v{V_XH}, {sX}, s{S_T2} offen{nt} lds", "s_mov_b32 exec_hi, -1"]))
    elif c < 10:
        h = c - 8
        for cq in range(QE + 4*h, min(QE + 4*h + 4, 8)):
            for bb in range(2):
                pre = []
                if bb == 0:
                    pre = [f"s_add_u32 s{S_RC}, s{S_ROT}, {cq}", f"s_and_b32 s{S_RC}, s{S_RC}, 7",
                           f"s_add_u32 m0, s{S_LW}, {wq_base(cq)}",
                           f"s_mul_i32 s{S_T2}, s{S_RC}, 196608", f"s_add_u32 s{S_T2}, s{S_T2}, s{S_WB}"]
                out.append(("vm", tag, pre + [f"buffer_load_dwordx4 v{V_WD+bb}, {sW}, s{S_T2} offen offset:{bb*2048}{nt} lds"]))
    else:
        h = c - 10
        for b in range(8):
            pre = [f"s_add_u32 m0, s{S_LWO}, {WOB[h] + (b >> 2)*4096}",
                   f"s_add_u32 s{S_T2}, s{S_WOB}, {(128*h + 16*(b >> 2))*1024}"] if (b & 3) == 0 else []
            out.append(("vm", tag, pre + [f"buffer_load_dwordx4 v{V_WO4[b & 3]}, {sWO}, s{S_T2} offen offset:{(b & 3)*1024}{nt} lds"]))
    return out

def setup2(g, br, rw):
    A = g.A
    halo = br == 0
    l = f"v{V_L}"
    A(f"s_lshl_b32 s{S_T0}, s{S_BR}, 4"); A(f"s_add_u32 s{S_T0}, s{S_T0}, s{S_RB}")
    A(f"s_lshl_b32 s{S_EOA}, s{S_T0}, 7"); A(f"s_add_u32 s{S_EOA}, s{S_EOA}, {WS_EO}")
    A(f"s_lshl_b32 s{S_FLN}, s{S_T0}, 8"); A(f"s_add_u32 s{S_FLN}, s{S_FLN}, {WS_FL}")
    A(f"s_lshl_b32 s{S_EKA}, s{S_HG}, 7"); A(f"s_add_u32 s{S_EKA}, s{S_EKA}, {WS_EK}")
    A(f"s_load_dwordx2 s[{S_EO}:{S_EO+1}], s[20:21], s{S_EOA}")
    if br == 1: A(f"s_load_dwordx2 s[{S_EK}:{S_EK+1}], s[20:21], s{S_EKA}")
    A(f"s_lshl_b32 s{S_T1}, s{S_HG}, 1"); A(f"s_add_u32 s{S_T1}, s{S_T1}, s{S_CW}")
    A(f"s_lshl_b32 s{S_FLO}, s{S_T1}, 3"); A(f"s_add_u32 s{S_FLO}, s{S_FLO}, s{S_FLN}"); A(f"s_add_u32 s{S_FLO}, s{S_FLO}, {rw*128}")
    A(rh_(g, S_T2)); A(f"s_lshl_b32 s{S_T2}, s{S_T2}, 7"); A(f"s_add_u32 s{S_FLN}, s{S_FLN}, s{S_T2}")
    A(f"v_lshrrev_b32 v2, 4, {l}"); A(f"v_and_b32 v3, 15, {l}")
    A("v_lshlrev_b32 v5, 1, v2"); A("v_xor_b32 v5, v3, v5"); A("v_lshlrev_b32 v6, 10, v2")
    A(f"v_lshl_add_u32 v{V_WO4[0]}, v5, 4, v6")
    A(f"v_xor_b32 v6, 128, v{V_WO4[0]}")
    A(f"v_add_u32 v{V_WO4[1]}, 3072, v6")
    A(f"v_add_u32 v{V_WO4[2]}, 6144, v{V_WO4[0]}")
    A(f"v_add_u32 v{V_WO4[3]}, 9216, v6")
    A(f"v_and_b32 v2, 15, {l}")
    A(f"v_lshrrev_b32 v3, 4, {l}")
    A("v_lshrrev_b32 v4, 1, v2")
    A("v_xor_b32 v5, v3, v4")
    A("v_lshlrev_b32 v6, 7, v2")
    A("v_lshl_add_u32 v6, v5, 4, v6")
    A("v_lshrrev_b32 v7, 3, v2")
    A("v_lshl_add_u32 v7, v7, 10, v6")
    A(f"v_add_u32 v{V_XR}, {rw*8192}, v7")
    A(f"v_xor_b32 v{V_XR+3}, 64, v{V_XR}")
    for kk in range(2):
        for b in (1, 2): A(f"v_add_u32 v{V_XR+3*kk+b}, {b<<16}, v{V_XR+3*kk}")
    if halo:
        A(f"v_add_u32 v{V_HR}, 16384, v6")
        A(f"v_xor_b32 v{V_HR+3}, 64, v{V_HR}")
        for kk in range(2):
            for b in (1, 2): A(f"v_add_u32 v{V_HR+3*kk+b}, {b<<16}, v{V_HR+3*kk}")
    A("v_lshrrev_b32 v4, 2, v2")
    A("v_and_b32 v5, 3, v2")
    A("v_lshrrev_b32 v8, 3, v2")
    A("v_and_b32 v7, 1, v3")
    A("v_lshl_or_b32 v8, v7, 1, v8")
    A("v_lshrrev_b32 v6, 1, v3")
    A("v_lshlrev_b32 v6, 12, v6")
    A("v_lshl_add_u32 v6, v7, 11, v6")
    A("v_lshl_add_u32 v6, v4, 7, v6")
    A("v_lshl_add_u32 v6, v5, 3, v6")
    A(f"s_lshl_b32 s{S_T0}, s{S_CW}, 1")
    A(f"v_xor_b32 v7, s{S_T0}, v8")
    A(f"v_lshl_add_u32 v{V_WR}, v7, 5, v6")
    A(f"v_xor_b32 v{V_WR+3}, 32, v{V_WR}")
    for hh in range(2):
        for b in (1, 2): A(f"v_add_u32 v{V_WR+3*hh+b}, {b<<16}, v{V_WR+3*hh}")
    if QE:
        A("v_lshlrev_b32 v6, 10, v3")
        A(f"v_sub_u32 v38, v{V_WR+2}, v6"); A(f"v_sub_u32 v39, v{V_WR+5}, v6")
    A(f"v_lshlrev_b32 v{V_L16}, 4, {l}")
    A(f"v_lshlrev_b32 v{V_L8}, 3, {l}")
    A(f"s_mov_b32 s{S_C}, {CSC:#x}"); A(f"s_mov_b32 s{S_NC}, {NCSC:#x}")
    A(f"s_mov_b32 s{S_L2E}, {LOG2E:#x}"); A(f"s_mov_b32 s{S_EPS}, {EPS:#x}")
    A(f"s_mov_b32 s{S_SPIN}, {SPIN}")
    A(f"s_mov_b32 s18, {LOG2E:#x}"); A(f"s_mov_b32 s19, {LOG2E:#x}"); A(f"s_mov_b32 s96, {CSC:#x}"); A(f"s_mov_b32 s97, {CSC:#x}")
    for i in range(4): A(f"v_mov_b32 v{V_ONES+i}, 0x3f803f80")
    A(f"s_lshl_b32 s{S_T0}, s{S_RB}, 3")
    A(f"s_add_u32 s{S_OLD}, s{S_T0}, {br*128}")
    A(f"s_add_u32 s{S_OST}, s{S_OLD}, {4*rw}")
    A(f"s_lshl_b32 s{S_OST}, s{S_OST}, 4")
    A(f"s_add_u32 s{S_OST}, s{S_OST}, s{S_T1}")
    A(f"s_lshl_b32 s{S_OST}, s{S_OST}, 10")
    A(rh_(g, S_T1)); A(f"s_lshl_b32 s{S_T1}, s{S_T1}, 2")
    A(f"s_add_u32 s{S_OLD}, s{S_OLD}, s{S_T1}")
    A(f"s_add_u32 s{S_OLD}, s{S_OLD}, s{S_WV}")
    A(f"s_lshl_b32 s{S_OLD}, s{S_OLD}, 14")
    A(f"s_lshl_b32 s{S_LWO}, s{S_WV}, 13")
    A(f"s_lshl_b32 s{S_T0}, s{S_CW}, 13")
    A(f"v_add_u32 v{V_XA}, s{S_T0}, v{V_L16 if br else V_L8}")
    A(f"v_add_u32 v{V_XA}, {XCH}, v{V_XA}")
    if br == 1:
        A(f"s_lshl_b32 s{S_T0}, s{S_HG}, 2")
        A(f"s_lshl_b32 s{S_T1}, s{S_CW}, 1")
        A(f"s_add_u32 s{S_T0}, s{S_T0}, s{S_T1}")
        A(f"s_add_u32 s{S_HEAD}, s{S_T0}, {rw}")
        A(f"s_lshl_b32 s{S_T0}, s{S_HEAD}, 4")
        A(f"s_add_u32 s{S_T0}, s{S_T0}, s{S_RB}")
        A(f"s_lshl_b32 s{S_KVS}, s{S_T0}, 10")
        A(f"s_add_u32 s{S_KVS}, s{S_KVS}, {WS_KV}")
        A(f"s_lshl_b32 s{S_ZS}, s{S_T0}, 6")
        A(f"s_add_u32 s{S_ZS}, s{S_ZS}, {WS_Z}")
    else:
        A(f"v_and_b32 v2, 15, {l}")
        A(f"v_lshrrev_b32 v3, 4, {l}")
        A("v_lshlrev_b32 v3, 2, v3")
        A(f"v_mov_b32 v8, {NEG:#x}")
        for r in range(4):
            A(f"v_add_u32 v4, {r}, v3")
            A("v_sub_u32 v5, v2, v4")
            A("v_cmp_gt_u32 vcc, 8, v5")
            A(f"v_mov_b32 v7, {0xffff if r % 2 == 0 else 0xffff0000:#x}")
            A(f"v_cndmask_b32 v{V_MOWN+r}, v8, 0, vcc")
            A("v_cndmask_b32 v6, 0, v7, vcc")
            if r % 2 == 0: A(f"v_mov_b32 v{V_BM + r//2}, v6")
            else: A(f"v_or_b32 v{V_BM + r//2}, v{V_BM + r//2}, v6")
            A("v_add_u32 v5, 9, v2")
            A("v_cmp_ge_u32 vcc, v4, v5")
            A(f"v_cndmask_b32 v{V_MPREV+r}, v8, 0, vcc")
            if rw == 0:
                for p in range(2):
                    A(f"v_subrev_u32 v5, {8*p}, v4")
                    A("v_cmp_gt_u32 vcc, 8, v5")
                    A("v_cmp_gt_u32 s[68:69], v5, v2")
                    A("s_and_b64 vcc, vcc, s[68:69]")
                    A(f"s_cmp_eq_u32 s{S_RB}, 0")
                    A("s_cselect_b64 vcc, 0, vcc")
                    A(f"v_cndmask_b32 v{V_MHALO+4*p+r}, v8, 0, vcc")

def pf_setup(g):
    A = g.A
    l = f"v{V_L}"
    A(f"v_and_b32 v2, 31, {l}")
    A("v_lshlrev_b32 v2, 10, v2")
    A(f"v_lshrrev_b32 v3, 5, {l}")
    A(f"v_lshl_add_u32 v{V_PF0}, v3, 7, v2")
    A(f"s_lshr_b32 s{S_PFX}, s{S_RB}, 3")
    A(f"s_lshl_b32 s{S_PFX}, s{S_PFX}, 20")
    A(f"s_lshl_b32 s{S_T0}, s{S_IDX}, 15")
    A(f"s_add_u32 s{S_PFX}, s{S_PFX}, s{S_T0}")
    A(f"s_lshl_b32 s{S_T0}, s{S_WV}, 8")
    A(f"s_add_u32 s{S_PFX}, s{S_PFX}, s{S_T0}")
    A(f"v_and_b32 v4, 15, {l}")
    A("v_lshrrev_b32 v5, 2, v4")
    A("v_and_b32 v6, 3, v4")
    A(f"v_bfe_u32 v7, {l}, 4, 1")
    A("v_mul_u32_u24 v7, 3072, v7")
    A("v_mul_u32_u24 v8, 196608, v3")
    A("v_add_u32 v7, v7, v8")
    A("v_lshl_add_u32 v7, v5, 10, v7")
    A("v_lshl_add_u32 v7, v6, 7, v7")
    A("v_cmp_gt_u32 vcc, 3, v5")
    A("v_mov_b32 v8, 0x7fffffff")
    A(f"v_cndmask_b32 v{V_PF1}, v8, v7, vcc")
    A(f"s_mul_i32 s{S_PFW}, s{S_IDX}, 6144")
    A(f"s_and_b32 s{S_T0}, s{S_XCD}, 1")
    A(f"s_lshl_b32 s{S_T0}, s{S_T0}, 9")
    A(f"s_add_u32 s{S_PFW}, s{S_PFW}, s{S_T0}")
    A(f"s_mul_i32 s{S_T0}, s{S_WV}, 393216")
    A(f"s_add_u32 s{S_PFW}, s{S_PFW}, s{S_T0}")

V_PA = 252
def pf3_setup(g):
    A = g.A
    l = f"v{V_L}"
    A(f"s_lshr_b32 s{S_T0}, s{S_RB}, 3")
    A(f"s_lshl_b32 s{S_T0}, s{S_T0}, 20")
    A(f"s_lshl_b32 s{S_T1}, s{S_IDX}, 15")
    A(f"s_add_u32 s{S_T0}, s{S_T0}, s{S_T1}")
    A(f"s_lshl_b32 s{S_T1}, s{S_WV}, 13")
    A(f"s_add_u32 s{S_T0}, s{S_T0}, s{S_T1}")
    A(f"s_add_u32 s{S_PFX}, s24, s{S_T0}"); A(f"s_addc_u32 s{S_PFX+1}, s25, 0")
    A(f"v_lshlrev_b32 v2, 10, {l}")
    A(f"v_mov_b32 v3, s{S_PFX+1}")
    A(f"v_add_co_u32 v{V_PA}, vcc, s{S_PFX}, v2")
    A(f"v_addc_co_u32 v{V_PA+1}, vcc, 0, v3, vcc")
    A(f"s_mul_i32 s{S_T0}, s{S_CW}, 6")
    A(f"v_subrev_u32 v4, 8, {l}")
    A(f"v_add_u32 v4, s{S_T0}, v4")
    A("v_lshrrev_b32 v5, 2, v4"); A("v_and_b32 v4, 3, v4")
    A("v_lshlrev_b32 v5, 10, v5"); A("v_lshl_add_u32 v4, v4, 7, v5")
    A(f"s_lshl_b32 s{S_T0}, s{S_IDX}, 1"); A(f"s_add_u32 s{S_T0}, s{S_T0}, s{S_RW}")
    A(f"s_mul_i32 s{S_T0}, s{S_T0}, 3072")
    A(f"s_and_b32 s{S_T1}, s{S_XCD}, 1"); A(f"s_lshl_b32 s{S_T1}, s{S_T1}, 9")
    A(f"s_add_u32 s{S_T0}, s{S_T0}, s{S_T1}")
    A(f"s_add_u32 s{S_PFX}, s28, s{S_T0}"); A(f"s_addc_u32 s{S_PFX+1}, s29, 0")
    A(f"v_mov_b32 v3, s{S_PFX+1}")
    A(f"v_add_co_u32 v4, vcc, s{S_PFX}, v4")
    A("v_addc_co_u32 v5, vcc, 0, v3, vcc")
    A(f"v_cmp_gt_u32 vcc, 8, {l}")
    A(f"v_cndmask_b32 v{V_PA}, v4, v{V_PA}, vcc")
    A(f"v_cndmask_b32 v{V_PA+1}, v5, v{V_PA+1}, vcc")
    A("v_mov_b32 v4, 196608"); A("v_mov_b32 v5, 128")
    A(f"v_cndmask_b32 v{V_PA+2}, v4, v5, vcc")
    for _ in range(g.opt.pf_first):
        A(f"v_add_co_u32 v{V_PA}, vcc, v{V_PA}, v{V_PA+2}")
        A(f"v_addc_co_u32 v{V_PA+1}, vcc, 0, v{V_PA+1}, vcc")
def pf3_item():
    return ("vm", "pf", ["s_mov_b64 exec, 0x3fff", f"global_load_dword v{V_PA+3}, v[{V_PA}:{V_PA+1}], off{PFPOL}", "s_mov_b64 exec, -1",
                         f"v_add_co_u32 v{V_PA}, vcc, v{V_PA}, v{V_PA+2}", f"v_addc_co_u32 v{V_PA+1}, vcc, 0, v{V_PA+1}, vcc"])

def pf4_pre(g):
    A = g.A
    l = f"v{V_L}"
    A(f"s_lshr_b32 s{S_T0}, s{S_RB}, 3")
    A(f"s_lshl_b32 s{S_T0}, s{S_T0}, 20")
    A(f"s_lshl_b32 s{S_T1}, s{S_IDX}, 15")
    A(f"s_add_u32 s{S_T0}, s{S_T0}, s{S_T1}")
    A(f"s_lshl_b32 s{S_T1}, s{S_WV}, 13")
    A(f"s_add_u32 s{S_T0}, s{S_T0}, s{S_T1}")
    A(f"v_lshlrev_b32 v2, 10, {l}")
    A(f"v_add_u32 v2, s{S_T0}, v2")
    A(f"s_lshl_b32 s{S_T0}, s{S_IDX}, 1"); A(f"s_add_u32 s{S_T0}, s{S_T0}, s{S_RW}")
    A(f"s_mul_i32 s{S_T0}, s{S_T0}, 3072")
    A(f"s_and_b32 s{S_T1}, s{S_XCD}, 1"); A(f"s_lshl_b32 s{S_T1}, s{S_T1}, 9")
    A(f"s_add_u32 s{S_T0}, s{S_T0}, s{S_T1}")
    A(f"s_lshl_b32 s{S_T1}, s{S_CW}, 10"); A(f"s_add_u32 s{S_T0}, s{S_T0}, s{S_T1}")
    A(f"s_add_u32 s{S_T0}, s{S_T0}, {1024 - 8*128}")
    A(f"v_lshlrev_b32 v3, 7, {l}")
    A(f"v_add_u32 v3, s{S_T0}, v3")
    A(f"v_cmp_gt_u32 s[68:69], 8, {l}")
    A("v_mov_b32 v4, 196608"); A("v_mov_b32 v5, 128")
    A(f"v_cndmask_b32 v{V_PA+2}, v4, v5, s[68:69]")
    A(f"v_cndmask_b32 v{V_PA}, v3, v2, s[68:69]")
    for _ in range(g.opt.pf_first): A(f"v_add_u32 v{V_PA}, v{V_PA}, v{V_PA+2}")
def pf4_post(g):
    A = g.A
    A("v_mov_b32 v2, s28"); A("v_mov_b32 v3, s29"); A("v_mov_b32 v4, s24"); A("v_mov_b32 v5, s25")
    A("v_cndmask_b32 v2, v2, v4, s[68:69]"); A("v_cndmask_b32 v3, v3, v5, s[68:69]")
    A(f"v_add_co_u32 v{V_PA}, vcc, v{V_PA}, v2")
    A(f"v_addc_co_u32 v{V_PA+1}, vcc, 0, v3, vcc")
def pf4_item():
    return ("vm", "pf", ["s_mov_b64 exec, 0xfff", f"global_load_dword v{V_PA+3}, v[{V_PA}:{V_PA+1}], off{PFPOL}", "s_mov_b64 exec, -1",
                         f"v_add_co_u32 v{V_PA}, vcc, v{V_PA}, v{V_PA+2}", f"v_addc_co_u32 v{V_PA+1}, vcc, 0, v{V_PA+1}, vcc"])

def acc(Tl, hh, kv): return V_ACC + ((Tl * 2 + hh) * 2 + kv) * 4
def xf(Tl, ks): return (Tl * 16 + ks) * 4

def kv_reads(ks, halo):
    c = ks >> 1; kk = ks & 1; st = (c % 4) * STAGE; buf = ks & 1
    w = []
    for hh in range(2):
        for seg in range(2):
            for t in range(2):
                reg, off = ldsaddr(V_WR + 3*hh, st + WOFF + kk*8192 + seg*1024 + t*512)
                d = V_WF + buf*16 + (hh*2 + seg)*4 + t*2
                w.append(("lds", ("w", ks, hh, seg), f"ds_read_b64_tr_b16 v[{d}:{d+1}], {reg} offset:{off}"))
    xr = []
    for Tl in range(4):
        reg, off = ldsaddr(V_XR + 3*kk, st + (Tl >> 1)*4096 + (Tl & 1)*1024)
        xr.append(("lds", ("x", ks, Tl), f"ds_read_b128 {vr(xf(Tl, ks), 4, 'a')}, {reg} offset:{off}"))
    if halo:
        reg, off = ldsaddr(V_HR + 3*kk, st)
        xr.append(("lds", ("x", ks, 4), f"ds_read_b128 {vr(V_HF + buf*4)}, {reg} offset:{off}"))
    qr = []
    if c < QE:
        for hh in range(2):
            for t in range(2):
                d = V_QF + buf*8 + hh*4 + t*2
                qr.append(("lds", ("q", hh, ks), f"ds_read_b64_tr_b16 v[{d}:{d+1}], v{38+hh} offset:{XCH - 131072 + c*8192 + kk*4096 + t*512}"))
    return [xr[0]] + w + xr[1:] + qr

def kv_mfmas(ks, br, rw):
    buf = ks & 1
    out = []
    for Tl in range(4):
        for hh in range(2):
            for seg in range(2):
                w = vr(V_WF + buf*16 + (hh*2 + seg)*4)
                x = vr(xf(Tl, ks), 4, "a")
                d = vr(acc(Tl, hh, seg))
                c = "0" if ks == 0 else d
                a, b = (w, x) if (br == 0 and seg == 0) else (x, w)
                out.append((f"v_mfma_f32_16x16x32_bf16 {d}, {a}, {b}, {c}", [("x", ks, Tl), ("w", ks, hh, seg)]))
    if br == 0:
        for hh in range(2):
            seg = rw
            w = vr(V_WF + buf*16 + (hh*2 + seg)*4)
            x = vr(V_HF + buf*4)
            d = vr(V_HACC + hh*4)
            c = "0" if ks == 0 else d
            a, b = (w, x) if seg == 0 else (x, w)
            out.append((f"v_mfma_f32_16x16x32_bf16 {d}, {a}, {b}, {c}", [("x", ks, 4)]))
    if (ks >> 1) < QE:
        for hh in range(2):
            for Tl in range(4):
                d = vr(V_QACC + (hh*4 + Tl)*4)
                out.append((f"v_mfma_f32_16x16x32_bf16 {d}, {vr(V_QF + buf*8 + hh*4)}, {vr(xf(Tl, ks), 4, 'a')}, {'0' if ks == 0 else d}", [("q", hh, ks)]))
    return out

def q_read(hh, ks, slot):
    out = []
    for t in range(2):
        reg, off = ldsaddr(V_WR + 3*hh, wq_base(ks >> 1) + (ks & 1)*8192 + t*512)
        d = V_WF + slot*4 + t*2
        out.append(("lds", ("q", hh, ks), f"ds_read_b64_tr_b16 v[{d}:{d+1}], {reg} offset:{off}"))
    return out

def phi_list(regs, tmp, pk=False):
    out = []
    if pk:
        for i in range(0, len(regs), 2): out.append(f"v_pk_mul_f32 v[{tmp+i}:{tmp+i+1}], v[{regs[i]}:{regs[i]+1}], s[18:19]")
        for i, r in enumerate(regs):
            out.append(f"v_exp_f32 v{tmp+i}, v{tmp+i} clamp")
            out.append(f"v_max_f32 v{r}, s{S_EPS}, v{r}")
        for i in range(0, len(regs), 2): out.append(f"v_pk_add_f32 v[{regs[i]}:{regs[i]+1}], v[{regs[i]}:{regs[i]+1}], v[{tmp+i}:{tmp+i+1}]")
        return out
    for i, r in enumerate(regs): out.append(f"v_mul_f32 v{tmp+i}, s{S_L2E}, v{r}")
    for i, r in enumerate(regs):
        out.append(f"v_exp_f32 v{tmp+i}, v{tmp+i} clamp")
        out.append(f"v_max_f32 v{r}, s{S_EPS}, v{r}")
    for i, r in enumerate(regs): out.append(f"v_add_f32 v{r}, v{r}, v{tmp+i}")
    return out

def npf_left(opt, c):
    return opt.pf_first + opt.pf_init + 1 + c < 8

def phase1_path(g, br, rw):
    A = g.A
    opt = g.opt
    halo = (br == 0)
    tag = f"{br}{rw}"
    g.vm = VM(); g.lds = []
    if opt.common:
        for c in range(opt.common):
            for it in chunk_dmas(g, c, halo): g.vm.add(it[1])
        if opt.warmcode: g.vm.add("pf"); g.vm.add("pf")
    else:
        for c in range(2):
            for it in chunk_dmas(g, c, halo): g.emit(it)
    g.stamp(1)
    if opt.pf == 3:
        pf3_setup(g)
        for _ in range(opt.pf_init): g.emit(pf3_item())
    if opt.warmcode and not opt.common:
        A("s_getpc_b64 s[68:69]")
        g.label(f"L_wc_{tag}")
        A(f"s_lshl_b32 s{S_T0}, s{S_CW}, 13")
        A(f"v_lshlrev_b32 v2, 7, v{V_L}")
        A(f"v_add_u32 v3, s{S_T0}, v2")
        A(f"v_min_u32 v3, L_end-L_wc_{tag}, v3")
        g.emit(("vm", "pf", [f"global_load_dword v{V_PF0}, v3, s[68:69]"]))
        A(f"v_add_u32 v3, L_phase2-L_wc_{tag}, v2")
        A(f"v_min_u32 v3, L_end-L_wc_{tag}, v3")
        g.emit(("vm", "pf", [f"global_load_dword v{V_PF1}, v3, s[68:69]"]))
    if opt.pf == 4:
        for it in chunk_dmas(g, 1, halo): g.emit(it)
    setup2(g, br, rw)
    if opt.pf in (1, 2): pf_setup(g)
    npf = opt.pf_first
    if opt.pre3 and opt.common < 3:
        for it in chunk_dmas(g, 2, halo): g.emit(it)
        if opt.pre3 >= 2:
            for it in chunk_dmas(g, 3, halo): g.emit(it)
    g.vmwait(("c", 0))
    A("s_barrier")
    g.stamp(2)
    for it in kv_reads(0, halo): g.emit(it)
    dq = []
    if not opt.pre3: dq += chunk_dmas(g, 2, halo)
    if opt.pre3 < 2: dq += chunk_dmas(g, 3, halo)
    pfi = [("vm", "pf", [f"buffer_load_dword v{V_PF0}, v{V_PF0}, {sX}, s{S_PFX} offen{PFPOL}"]),
           ("vm", "pf", [f"buffer_load_dword v{V_PF1}, v{V_PF1}, {sW}, s{S_PFW} offen{PFPOL}"])]
    if opt.pf == 3 and opt.pf_first + opt.pf_init < 8: dq.insert(0, pf3_item())
    if opt.pf == 4 and opt.pf_first + opt.pf_init < 8: dq.insert(opt.pf_pos, pf4_item())
    if opt.pf == 1: dq = pfi + dq
    if opt.pf == 2: dq = dq[:9] + pfi + dq[9:]
    for ks in range(16):
        c = ks >> 1
        mf = kv_mfmas(ks, br, rw)
        ev = opt.dma_every if len(dq) <= 10 else opt.dma_fast
        if ks & 1:
            run_slots(g, mf[:opt.bar_after], [], dma=dq, dma_every=ev, dma_phase=1)
            while dq and (dq[0][1] == "pf" or dq[0][1][1] <= c + 1): g.emit(dq.pop(0))
            g.ldsall()
            g.vmwait(("c", c + 1))
            A("s_barrier")
            g.stamp(3 + c, kv=True)
            rd = kv_reads(ks + 1, halo) if ks < 15 else q_read(0, 2*QE, 0) + q_read(0, 2*QE + 1, 1) + q_read(0, 2*QE + 2, 2)
            nc = c + 4
            if c + 1 == opt.wo_at:
                dq.insert(0, ("vm", "pf", [f"v_lshrrev_b32 v2, 2, v{V_L}", "v_lshlrev_b32 v2, 10, v2", f"v_and_b32 v3, 3, v{V_L}",
                    "v_lshl_add_u32 v2, v3, 7, v2",
                    f"s_lshl_b32 s{S_T0}, s{S_IDX}, 14", f"s_lshl_b32 s{S_T1}, s{S_WV}, 12", f"s_add_u32 s{S_T0}, s{S_T0}, s{S_T1}",
                    f"s_and_b32 s{S_T1}, s{S_XCD}, 1", f"s_lshl_b32 s{S_T1}, s{S_T1}, 9", f"s_add_u32 s{S_T0}, s{S_T0}, s{S_T1}",
                    "s_mov_b64 exec, 0xffff", f"buffer_load_dword v{V_WO}, v2, {sWO}, s{S_T0} offen{PFPOL}", "s_mov_b64 exec, -1"]))
            if c + 1 == opt.wc_at:
                dq.insert(0, ("vm", "pf", ["s_getpc_b64 s[68:69]", f"L_wc_{tag}:", f"v_lshlrev_b32 v2, 7, v{V_L}",
                    f"s_lshl_b32 s{S_T0}, s{S_CW}, 13", f"v_add_u32 v2, s{S_T0}, v2",
                    f"v_add_u32 v3, L_q_{tag}-L_wc_{tag}, v2", f"v_add_u32 v2, {'L_phase2-L_wc_' + tag}-8192, v2",
                    f"s_cmp_eq_u32 s{S_CW}, 0", "s_cselect_b64 vcc, -1, 0", "v_cndmask_b32 v3, v2, v3, vcc",
                    f"v_min_u32 v3, L_end-L_wc_{tag}, v3",
                    f"global_load_dword v{V_PF0}, v3, s[68:69]"]))
            if opt.pf == 3 and npf_left(opt, c): dq.insert(0, pf3_item())
            if nc < 12: dq += chunk_dmas(g, nc, halo)
            if opt.pf == 4 and npf_left(opt, c): dq.insert(min(opt.pf_pos, len(dq)), pf4_item())
            run_slots(g, mf[opt.bar_after:], [rd], cap=opt.cap, dma=dq, dma_every=ev, dma_phase=ev - 1)
            for it in rd: g.emit(it)
        else:
            rd = kv_reads(ks + 1, halo)
            run_slots(g, mf, [rd], cap=opt.cap_even, dma=dq, dma_every=ev, dma_phase=ev - 1)
            for it in rd: g.emit(it)
    g.stamp(3)
    g.label(f"L_q_{tag}")
    S1 = []; P = S1.append
    if br == 0:
        order = [2, 3, 0, 1] if rw == 0 else [0, 1, 2, 3]
        if rw == 1:
            for hh in range(2):
                h = V_HACC + hh*4
                P(f"v_cvt_pk_bf16_f32 v{4+hh*2}, v{h}, v{h+1}"); P(f"v_cvt_pk_bf16_f32 v{5+hh*2}, v{h+2}, v{h+3}")
                P(("lds", "xw", f"ds_write_b64 v{V_XA}, v[{4+hh*2}:{5+hh*2}] offset:{4096 + hh*512}"))
        for Tl in order:
            for hh in range(2):
                k = acc(Tl, hh, 0); v = acc(Tl, hh, 1)
                kp = V_KP + (Tl*2 + hh)*2
                vp = V_VP + ((Tl & 1)*2 + hh)*6 + 2 + (Tl >> 1)*2
                P(f"v_cvt_pk_bf16_f32 v{kp}, v{k}, v{k+1}"); P(f"v_cvt_pk_bf16_f32 v{kp+1}, v{k+2}, v{k+3}")
                P(f"v_cvt_pk_bf16_f32 v{vp}, v{v}, v{v+1}"); P(f"v_cvt_pk_bf16_f32 v{vp+1}, v{v+2}, v{v+3}")
                if rw == 0 and Tl >= 2:
                    p = Tl & 1
                    P(("lds", "xw", f"ds_write_b64 v{V_XA}, v[{kp}:{kp+1}] offset:{(p*2+hh)*1024}"))
                    P(("lds", "xw", f"ds_write_b64 v{V_XA}, v[{vp}:{vp+1}] offset:{(p*2+hh)*1024+512}"))
        if rw == 0:
            for hh in range(2):
                h = V_HACC + hh*4
                P(f"v_cvt_pk_bf16_f32 v{V_KPREV+hh*2}, v{h}, v{h+1}"); P(f"v_cvt_pk_bf16_f32 v{V_KPREV+hh*2+1}, v{h+2}, v{h+3}")
        S1b = []
        for p in range(2):
            for hh in range(2):
                vp = V_VP + (p*2 + hh)*6
                if rw == 0:
                    S1b.append(("lds", "xr", f"ds_read_b64 v[{vp}:{vp+1}], v{V_XA} offset:{4096 + hh*512}"))
                else:
                    kp = V_KPREV + (p*2 + hh)*2
                    S1b.append(("lds", "xr", f"ds_read_b64 v[{kp}:{kp+1}], v{V_XA} offset:{(p*2+hh)*1024}"))
                    S1b.append(("lds", "xr", f"ds_read_b64 v[{vp}:{vp+1}], v{V_XA} offset:{(p*2+hh)*1024+512}"))
    else:
        PK, VV = V_VP, V_VP + 16
        TMP = V_QACC + 16 if QE == 0 else V_KP
        KVR = V_HACC; KVO = V_HF
        oth = 1 - rw
        for hh in (oth, rw):
            regs = [acc(Tl, hh, 0) + r for Tl in range(4) for r in range(4)]
            S1 += phi_list(regs, TMP, opt.pk)
            for Tl in range(4):
                k = acc(Tl, hh, 0); v = acc(Tl, hh, 1)
                P(f"v_cvt_pk_bf16_f32 v{PK+hh*8+Tl*2}, v{k}, v{k+1}"); P(f"v_cvt_pk_bf16_f32 v{PK+hh*8+Tl*2+1}, v{k+2}, v{k+3}")
                P(f"v_cvt_pk_bf16_f32 v{VV+hh*8+Tl*2}, v{v}, v{v+1}"); P(f"v_cvt_pk_bf16_f32 v{VV+hh*8+Tl*2+1}, v{v+2}, v{v+3}")
            R = KVR if hh == rw else KVO
            d = vr(R); z = vr(R + 4)
            P(f"v_mfma_f32_16x16x32_bf16 {d}, {vr(PK+hh*8)}, {vr(VV+hh*8)}, 0")
            P(f"v_mfma_f32_16x16x32_bf16 {z}, {vr(PK+hh*8)}, {vr(V_ONES)}, 0")
            P(f"v_mfma_f32_16x16x32_bf16 {d}, {vr(PK+hh*8+4)}, {vr(VV+hh*8+4)}, {d}")
            P(f"v_mfma_f32_16x16x32_bf16 {z}, {vr(PK+hh*8+4)}, {vr(V_ONES)}, {z}")
            if hh == oth: wr_pos = len(S1) + 12
        S1.insert(wr_pos, ("lds", "xw", f"ds_write_b128 v{V_XA}, {vr(KVO)} offset:{rw*2048}"))
        S1.insert(wr_pos + 1, ("lds", "xw", f"ds_write_b128 v{V_XA}, {vr(KVO+4)} offset:{rw*2048+1024}"))
        S1b = [("lds", "xr", f"ds_read_b128 {vr(V_ACC)}, v{V_XA} offset:{oth*2048}"),
               ("lds", "xr", f"ds_read_b128 {vr(V_ACC+4)}, v{V_XA} offset:{oth*2048+1024}"),
               f"s_add_u32 s{S_TAG}, s{S_EK}, 1", f"s_and_b32 s{S_TAG}, s{S_TAG}, 0x7f", f"s_or_b32 s{S_TAG}, s{S_TAG}, 0x80",
               f"v_mov_b32 v4, s{S_TAG}", "v_mov_b32 v5, 0xff",
               f"v_lshrrev_b32 v3, 4, v{V_L}", "v_lshlrev_b32 v3, 4, v3",
               ("need", "xr")]
        for r in range(0, 8, 2): S1b.append(f"v_pk_add_f32 v[{KVR+r}:{KVR+r+1}], v[{KVR+r}:{KVR+r+1}], v[{V_ACC+r}:{V_ACC+r+1}]")
        for r in range(0, 8, opt.tagstep): S1b.append(f"v_bfi_b32 v{KVR+r}, v5, v4, v{KVR+r}")
        S1b.append(("vm", "kvst", [f"buffer_store_dwordx4 {vr(KVR)}, v{V_L16}, {sWS}, s{S_KVS} offen sc1"]))
        S1b.append(("vm", "kvst", ["s_mov_b32 s68, 0x00010001", "s_mov_b32 s69, 0x00010001", "s_mov_b64 exec, s[68:69]",
                    f"buffer_store_dwordx4 {vr(KVR+4)}, v3, {sWS}, s{S_ZS} offen sc1", "s_mov_b64 exec, -1"]))
        S1b.append(("stamp", 4))
    OUTR = V_ACC + 48
    def attention(hh):
        o_ = []; P = o_.append
        U = lambda u: V_ACC + 12*u
        QP = V_HACC
        for u in range(4):
            q = V_QACC + (hh*4 + u)*4
            P(f"v_cvt_pk_bf16_f32 v{QP+2*u}, v{q}, v{q+1}"); P(f"v_cvt_pk_bf16_f32 v{QP+2*u+1}, v{q+2}, v{q+3}")
        P(("need", "xr"))
        for u in range(4):
            tl, p = u >> 1, u & 1
            ko = V_KP + (u*2 + hh)*2
            if tl == 1: kpv, mp = V_KP + ((u-2)*2 + hh)*2, V_MPREV
            elif rw == 1: kpv, mp = V_KPREV + (p*2 + hh)*2, V_MPREV
            else: kpv, mp = V_KPREV + hh*2, V_MHALO + 4*p
            P(f"v_mfma_f32_16x16x16_bf16 {vr(U(u))}, v[{ko}:{ko+1}], v[{QP+2*u}:{QP+2*u+1}], {vr(V_MOWN)}")
            P(f"v_mfma_f32_16x16x16_bf16 {vr(U(u)+4)}, v[{kpv}:{kpv+1}], v[{QP+2*u}:{QP+2*u+1}], {vr(mp)}")
        for u in range(4):
            for r in range(4): P(f"v_max_f32 v{U(u)+r}, v{U(u)+r}, v{U(u)+4+r}")
        for u in range(4): P(f"v_max3_f32 v{U(u)+4}, v{U(u)}, v{U(u)+1}, v{U(u)+2}")
        for u in range(4): P(f"v_max_f32 v{U(u)+4}, v{U(u)+4}, v{U(u)+3}")
        for sw in ("v_permlane32_swap_b32", "v_permlane16_swap_b32"):
            for u in range(4): P(f"v_mov_b32 v{U(u)+5}, v{U(u)+4}")
            for u in range(4): P(f"{sw} v{U(u)+4}, v{U(u)+5}")
            for u in range(4): P(f"v_max_f32 v{U(u)+4}, v{U(u)+4}, v{U(u)+5}")
        for u in range(4): P(f"v_mul_f32 v{U(u)+4}, s{S_NC}, v{U(u)+4}")
        pk = opt.pk and (hh == 1 or opt.pk > 1)
        for u in range(4):
            if pk:
                for r in (0, 2): P(f"v_pk_fma_f32 v[{U(u)+r}:{U(u)+r+1}], v[{U(u)+r}:{U(u)+r+1}], s[96:97], v[{U(u)+4}:{U(u)+5}] op_sel_hi:[1,1,0]")
            else:
                for r in range(4): P(f"v_fma_f32 v{U(u)+r}, v{U(u)+r}, s{S_C}, v{U(u)+4}")
        for u in range(4):
            for r in range(4): P(f"v_exp_f32 v{U(u)+r}, v{U(u)+r}")
        for u in range(4):
            P(f"v_cvt_pk_bf16_f32 v{U(u)+4}, v{U(u)}, v{U(u)+1}"); P(f"v_cvt_pk_bf16_f32 v{U(u)+5}, v{U(u)+2}, v{U(u)+3}")
        for u in range(4):
            P(f"v_and_b32 v{U(u)+10}, v{U(u)+4}, v{V_BM}"); P(f"v_and_b32 v{U(u)+11}, v{U(u)+5}, v{V_BM+1}")
            P(f"v_xor_b32 v{U(u)+8}, v{U(u)+4}, v{U(u)+10}"); P(f"v_xor_b32 v{U(u)+9}, v{U(u)+5}, v{U(u)+11}")
        for u in range(4):
            q = V_QACC + (hh*4 + u)*4
            P(f"v_mfma_f32_16x16x16_bf16 {vr(q)}, v[{V_ONES}:{V_ONES+1}], v[{U(u)+4}:{U(u)+5}], 0")
        for u in range(4):
            tl, p = u >> 1, u & 1
            vp = V_VP + (p*2 + hh)*6 + 2*tl
            P(f"v_mfma_f32_16x16x32_bf16 {vr(U(u))}, {vr(vp)}, {vr(U(u)+8)}, 0")
        for u in range(4):
            q = V_QACC + (hh*4 + u)*4
            P(f"v_rcp_f32 v{q}, v{q}")
        for u in range(4):
            q = V_QACC + (hh*4 + u)*4
            if pk:
                for r in (0, 2): P(f"v_pk_mul_f32 v[{U(u)+r}:{U(u)+r+1}], v[{U(u)+r}:{U(u)+r+1}], v[{q}:{q+1}] op_sel_hi:[1,0]")
            else:
                for r in range(4): P(f"v_mul_f32 v{U(u)+r}, v{U(u)+r}, v{q}")
        for u in range(4):
            o = OUTR + u*4 + hh*2
            P(f"v_cvt_pk_bf16_f32 v{o}, v{U(u)}, v{U(u)+1}"); P(f"v_cvt_pk_bf16_f32 v{o+1}, v{U(u)+2}, v{U(u)+3}")
        return o_
    PQ = V_KP
    def phi_q(hh, tmp):
        o_ = phi_list([V_QACC + hh*16 + i for i in range(16)], tmp, opt.pk and (hh == 1 or opt.pk > 1))
        for Tl in range(4):
            q = V_QACC + (hh*4 + Tl)*4
            o_.append(f"v_cvt_pk_bf16_f32 v{PQ+hh*8+Tl*2}, v{q}, v{q+1}"); o_.append(f"v_cvt_pk_bf16_f32 v{PQ+hh*8+Tl*2+1}, v{q+2}, v{q+3}")
        return o_
    PB = V_ACC
    def gather_items():
        it = []
        for j in range(16):
            pre = [f"s_add_u32 s{S_T2}, s{S_T0}, {j*1024}"] if j % 4 == 0 else []
            it.append(("vm", ("gat", j), pre + [f"buffer_load_dwordx4 {vr(PB+4*j)}, v{V_L16}, {sWS}, s{S_T2} offen offset:{(j%4)*1024} sc1"]))
        it.append(("vm", ("gat", 16), [f"buffer_load_dwordx4 {vr(V_HACC)}, v3, {sWS}, s{S_T1} offen sc1"]))
        return it
    gat_setup = [f"s_lshl_b32 s{S_T0}, s{S_HEAD}, 14", f"s_add_u32 s{S_T0}, s{S_T0}, {WS_KV}",
                 f"s_lshl_b32 s{S_T1}, s{S_HEAD}, 10", f"s_add_u32 s{S_T1}, s{S_T1}, {WS_Z}",
                 f"v_and_b32 v3, 15, v{V_L}", "v_lshlrev_b32 v3, 6, v3",
                 f"v_lshrrev_b32 v4, 4, v{V_L}", "v_lshl_add_u32 v3, v4, 4, v3"]
    S2 = attention(0) if br == 0 else phi_q(0, V_VP)

    K0 = 2*QE
    NH = 16 - K0
    seq = [(hh, ks) for hh in range(2) for ks in range(K0, 16)]
    PRE = 3
    B9 = 8 - PRE
    side = list(S1)
    sync_done = False
    capA = -(-sum(cost(x) for x in S1) // (4 * B9)) + 1
    gq = []
    for n, (hh, ks) in enumerate(seq):
        slot = n % 8
        if n == NH:
            for it in side: g.emit(it)
            side = list(S2)
        if n == B9:
            if br == 0:
                for it in side: g.emit(it)
                side = list(S1b)
            while dq and dq[0][1][1] <= 9: g.emit(dq.pop(0))
            g.ldsall()
            g.vmwait(("c", 9))
            A("s_barrier")
        if br == 1 and not sync_done and ((not side and (n > B9 or opt.early_sync)) or n == NH - 1):
            for it in side: g.emit(it)
            g.ldsall()
            A("s_barrier")
            side = list(S1b); sync_done = True
        if br == 1 and n == opt.gat_at:
            for it in side: g.emit(it)
            side = []
            for it in gat_setup: g.emit(it)
            gq = gather_items()
        rd = q_read(*seq[n + PRE], (n + PRE) % 8) if n + PRE < len(seq) else []
        mf = []
        for Tl in range(4):
            d = vr(V_QACC + (hh*4 + Tl)*4)
            c = "0" if ks == 0 else d
            mf.append((f"v_mfma_f32_16x16x32_bf16 {d}, {vr(V_WF + slot*4)}, {vr(xf(Tl, ks), 4, 'a')}, {c}", [("q", hh, ks)]))
        cap = (capA if br == 0 else opt.b_cap) if n < NH else opt.cap2
        if gq: run_slots(g, mf, [rd, side], cap=cap, dma=gq, dma_every=opt.gat_every, dma_phase=0)
        else: run_slots(g, mf, [rd, side], cap=cap, dma=dq, dma_every=4, dma_phase=3)
        for it in rd: g.emit(it)
    for it in side: g.emit(it)
    for it in dq: g.emit(it)
    for it in gq: g.emit(it)
    gq = []
    g.stamp(5)
    if opt.d2late:
        d2 = []
    else:
        g.ldsall()
        g.vmwait(("c", 11))
        A("s_barrier")
        d2 = chunk_dmas(g, 12, False) + chunk_dmas(g, 13, False)
    def with_dma(items, every):
        k = 0
        for it in items:
            g.emit(it); k += 1
            if k % every == 0 and d2: g.emit(d2.pop(0))
    def spin_guard(lbl_out):
        A(f"s_sub_u32 s{S_SPIN}, s{S_SPIN}, 1")
        A(f"s_cbranch_scc1 {lbl_out}")
    if br == 0:
        with_dma(attention(1), 9)
        for it in d2: g.emit(it)
    else:
        if opt.gat_at >= 2*NH:
            for it in gat_setup: g.emit(it)
            for it in gather_items(): g.emit(it)
        A(f"v_mov_b32 v6, s{S_TAG}")
        with_dma(phi_q(1, V_WF), 9)
        g.stamp(6)
        SUM = V_WF + 16
        def chk_sum(first):
            for j in range(16):
                if first: g.vmwait(("gat", j))
                b = PB + 4*j
                for k_, r in enumerate(range(0, 4, opt.tagstep)):
                    a_ = "0" if (j == 0 and k_ < 2) else f"v{4+(k_&1)}"
                    A(f"v_msad_u8 v{4+(k_&1)}, v{b+r}, v6, {a_}")
                for r in range(0, 4, 2):
                    if j == 0: A(f"v_pk_add_f32 v[{SUM+r}:{SUM+r+1}], v[{b+r}:{b+r+1}], v[{b+4+r}:{b+5+r}]") if False else None
                    if j == 1: A(f"v_pk_add_f32 v[{SUM+r}:{SUM+r+1}], v[{PB+r}:{PB+r+1}], v[{b+r}:{b+r+1}]")
                    elif j > 1: A(f"v_pk_add_f32 v[{SUM+r}:{SUM+r+1}], v[{SUM+r}:{SUM+r+1}], v[{b+r}:{b+r+1}]")
                if first and d2 and j % 2 == 1: g.emit(d2.pop(0))
            if first: g.vmwait(("gat", 16))
            for k_, r in enumerate(range(0, 4, opt.tagstep)): A(f"v_msad_u8 v{4+(k_&1)}, v{V_HACC+r}, v6, v{4+(k_&1)}")
            A("v_or_b32 v4, v4, v5")
            A("v_cmp_ne_u32 vcc, 0, v4")
        chk_sum(True)
        for it in d2: g.emit(it)
        A(f"s_cbranch_vccz L_kvok_{tag}")
        g.label(f"L_kvretry_{tag}")
        spin_guard(f"L_kvok_{tag}")
        A(f"s_sleep {opt.kv_sleep}")
        sv = g.vm; g.vm = VM()
        for it in gather_items(): g.emit(it)
        g.vm = sv
        A("s_waitcnt vmcnt(0)")
        chk_sum(False)
        A(f"s_cbranch_vccnz L_kvretry_{tag}")
        g.label(f"L_kvok_{tag}")
        g.stamp(7)
        for rot in (8, 4, 2, 1):
            for r in range(4):
                A(f"v_add_f32_dpp v{V_HACC+r}, v{V_HACC+r}, v{V_HACC+r} row_ror:{rot} row_mask:0xf bank_mask:0xf")
        KZ = V_WF
        A(f"v_cvt_pk_bf16_f32 v{KZ+rw*4}, v{SUM}, v{SUM+1}"); A(f"v_cvt_pk_bf16_f32 v{KZ+rw*4+1}, v{SUM+2}, v{SUM+3}")
        A(f"v_cvt_pk_bf16_f32 v{KZ+rw*4+2}, v{V_HACC}, v{V_HACC+1}"); A(f"v_cvt_pk_bf16_f32 v{KZ+rw*4+3}, v{V_HACC+2}, v{V_HACC+3}")
        A(f"ds_write_b128 v{V_XA}, {vr(KZ+rw*4)} offset:{4096 + rw*1024}")
        NUM = V_ACC; DEN = V_QACC
        def omf(hh):
            for Tl in range(4):
                u = hh*4 + Tl; pq = PQ + hh*8 + Tl*2
                A(f"v_mfma_f32_16x16x16_bf16 {vr(DEN+4*u)}, v[{KZ+hh*4+2}:{KZ+hh*4+3}], v[{pq}:{pq+1}], 0")
                A(f"v_mfma_f32_16x16x16_bf16 {vr(NUM+4*u)}, v[{KZ+hh*4}:{KZ+hh*4+1}], v[{pq}:{pq+1}], 0")
        def ofin(us):
            for u in us: A(f"v_add_f32 v{DEN+4*u}, s{S_EPS}, v{DEN+4*u}")
            for u in us: A(f"v_rcp_f32 v{DEN+4*u}, v{DEN+4*u}")
            for u in us:
                for r in (0, 2): A(f"v_pk_mul_f32 v[{NUM+4*u+r}:{NUM+4*u+r+1}], v[{NUM+4*u+r}:{NUM+4*u+r+1}], v[{DEN+4*u}:{DEN+4*u+1}] op_sel_hi:[1,0]")
            for u in us:
                hh, Tl = u >> 2, u & 3
                o = OUTR + Tl*4 + hh*2
                A(f"v_cvt_pk_bf16_f32 v{o}, v{NUM+4*u}, v{NUM+4*u+1}"); A(f"v_cvt_pk_bf16_f32 v{o+1}, v{NUM+4*u+2}, v{NUM+4*u+3}")
        omf(rw)
        A("s_waitcnt lgkmcnt(0)")
        A("s_barrier")
        A(f"ds_read_b128 {vr(KZ+(1-rw)*4)}, v{V_XA} offset:{4096 + (1-rw)*1024}")
        ofin([rw*4 + i for i in range(4)])
        A("s_waitcnt lgkmcnt(0)")
        omf(1 - rw)
        if rw == 0:
            A(f"s_or_b32 s{S_T2}, s{S_RB}, s{S_CW}")
            A(f"s_cmp_lg_u32 s{S_T2}, 0")
            A(f"s_cbranch_scc1 L_nobk_{tag}")
            A(f"s_add_u32 s{S_T2}, s{S_EK}, 1")
            A(f"v_mov_b32 v4, s{S_T2}"); A("v_mov_b32 v5, 0")
            A("s_mov_b64 exec, 1")
            A(f"buffer_store_dword v4, v5, {sWS}, s{S_EKA} offen sc1")
            A("s_mov_b64 exec, -1")
            g.label(f"L_nobk_{tag}")
        ofin([(1-rw)*4 + i for i in range(4)])
    for Tl in range(4):
        A(f"s_add_u32 s{S_T2}, s{S_OST}, {Tl*16384}")
        A(f"buffer_store_dwordx4 {vr(OUTR+4*Tl)}, v{V_L16}, {sWS}, s{S_T2} offen sc1")
    g.stamp(8)
    A("s_branch L_phase2")

def phase2(g):
    A = g.A
    opt = g.opt
    g.label("L_phase2")
    g.lds = []; g.vm = VM()
    OF = 64; ACC = 128; VR0 = 20
    l = f"v{V_L}"
    A(f"v_and_b32 v2, 15, {l}"); A(f"v_lshrrev_b32 v3, 4, {l}")
    A("v_lshrrev_b32 v4, 2, v2"); A("v_and_b32 v5, 3, v2")
    A("v_lshl_add_u32 v6, v3, 2, v4")
    A("v_and_b32 v7, 7, v6")
    A("v_lshlrev_b32 v6, 8, v6"); A("v_lshl_add_u32 v6, v5, 3, v6"); A("v_lshl_add_u32 v6, v7, 5, v6")
    for c in range(8):
        A(f"v_xor_b32 v{VR0+2*c}, {c*32}, v6")
        A(f"v_add_u32 v{VR0+2*c+1}, 65536, v{VR0+2*c}")
    NV = opt.p2_nv
    def freg(hp, c):
        if hp < 8: return ("a", (hp*8 + c)*4)
        if hp < 8 + NV: return ("v", 160 + ((hp - 8)*8 + c)*4)
        return ("a", ((hp - 8 - NV)*8 + c)*4)
    def rd(hp, c):
        out = []
        k_, a = freg(hp, c)
        for t in range(2):
            const = WOB[hp >> 2] + (hp & 3)*8192 + t*4096
            out.append(("lds", ("o", hp, c), f"ds_read_b64_tr_b16 {k_}[{a+2*t}:{a+2*t+1}], v{VR0 + 2*c + (const >> 16)} offset:{const & 0xffff}"))
        return out
    def preload(hps):
        for hp in hps:
            for c in range(8):
                for it in rd(hp, c): g.emit(it)
                if len(g.lds) >= 12: g.need(g.lds[3])
    A(f"s_add_u32 s{S_T0}, s{S_EO}, 1")
    A(f"v_mov_b32 v6, s{S_T0}"); A(f"v_mov_b32 v7, s{S_EO+1}")
    A("v_mov_b32 v5, 0")
    A("v_lshlrev_b32 v8, 3, v2")
    A("v_lshlrev_b32 v2, 12, v2")
    A("v_and_b32 v4, 1, v3"); A("v_lshl_add_u32 v2, v4, 5, v2")
    A("v_lshrrev_b32 v4, 1, v3"); A("v_lshl_add_u32 v2, v4, 4, v2")
    A(f"s_lshl_b32 s{S_XB}, s{S_RB}, 18")
    A(rh_(g, S_T1)); A(f"s_lshl_b32 s{S_T1}, s{S_T1}, 17"); A(f"s_add_u32 s{S_XB}, s{S_XB}, s{S_T1}")
    A(f"s_lshl_b32 s{S_T1}, s{S_RW}, 16"); A(f"s_add_u32 s{S_XB}, s{S_XB}, s{S_T1}")
    A(f"s_lshl_b32 s{S_T1}, s{S_CW}, 11"); A(f"s_add_u32 s{S_XB}, s{S_XB}, s{S_T1}")
    A(f"s_lshl_b32 s{S_T1}, s{S_BR}, 10"); A(f"s_add_u32 s{S_XB}, s{S_XB}, s{S_T1}")
    A(cs_(g, S_T1)); A(f"s_lshl_b32 s{S_T1}, s{S_T1}, 8"); A(f"s_add_u32 s{S_XB}, s{S_XB}, s{S_T1}")
    if opt.d2late:
        A("s_waitcnt vmcnt(4)")
        A("s_barrier")
        d2 = chunk_dmas(g, 12, False) + chunk_dmas(g, 13, False)
        preload(range(opt.p2_pre1))
        A("s_waitcnt vmcnt(0)")
        A("s_mov_b64 exec, 1")
        A(f"buffer_store_dwordx2 v[6:7], v5, {sWS}, s{S_FLO} offen sc1")
        A("s_mov_b64 exec, -1")
        g.stamp(9)
        for hp in range(opt.p2_pre1, 8):
            for c in range(8):
                for it in rd(hp, c): g.emit(it)
                if d2: g.emit(d2.pop(0))
                if len(g.lds) >= 12: g.need(g.lds[3])
        for it in d2: g.emit(it)
        A("s_waitcnt vmcnt(0)")
        A("s_barrier")
        preload(range(8, 8 + NV))
        g.ldsall()
    else:
        preload(range(opt.p2_pre1))
        A("s_waitcnt vmcnt(0)")
        A("s_mov_b64 exec, 1")
        A(f"buffer_store_dwordx2 v[6:7], v5, {sWS}, s{S_FLO} offen sc1")
        A("s_mov_b64 exec, -1")
        g.stamp(9)
        A("s_barrier")
        preload(range(opt.p2_pre1, 8 + NV))
        g.ldsall()
    A(f"s_cmp_lg_u32 s{S_WV}, 0")
    A("s_cbranch_scc1 L_ook")
    if opt.poll0: A(f"s_sleep {opt.poll0}")
    A("s_branch L_opoll1")
    g.label("L_opoll")
    A(f"s_sub_u32 s{S_SPIN}, s{S_SPIN}, 1")
    A("s_cbranch_scc1 L_ook")
    A(f"s_sleep {opt.poll1}")
    g.label("L_opoll1")
    A(f"buffer_load_dwordx2 v[10:11], v8, {sWS}, s{S_FLN} offen sc1")
    A("s_waitcnt vmcnt(0)")
    A("v_cmp_ne_u64 vcc, v[10:11], v[6:7]")
    A("s_cbranch_vccnz L_opoll")
    g.label("L_ook")
    A("s_waitcnt vmcnt(0)")
    g.vm = VM()
    A("s_barrier")
    g.stamp(10)
    lq = []
    for hp in range(16):
        pre = [f"s_add_u32 s{S_T2}, s{S_OLD}, {hp*1024}"] if hp % 4 == 0 else []
        lq.append(("vm", ("of", hp), pre + [f"buffer_load_dwordx4 {vr(OF + 4*hp)}, v{V_L16}, {sWS}, s{S_T2} offen offset:{(hp % 4)*1024} sc1"]))
    for it in lq[:opt.p2_first]: g.emit(it)
    lq = lq[opt.p2_first:]
    rq = []
    for hp in range(16):
        while lq and lq[0][1][1] <= hp: g.emit(lq.pop(0))
        while rq and rq[0][1][1] <= hp: g.emit(rq.pop(0))
        g.vmwait(("of", hp))
        if hp % 4 == 0: g.stamp(3 + hp//4, kv="p2")
        mf = []
        for c in range(8):
            d = vr(ACC + 4*c)
            k_, a = freg(hp, c)
            mf.append((f"v_mfma_f32_16x16x32_bf16 {d}, {vr(a, 4, k_)}, {vr(OF + 4*hp)}, {'0' if hp == 0 else d}", [("o", hp, c)]))
        if hp >= 1 and hp - 1 + 8 + NV < 16:
            for c in range(8): rq += rd(hp - 1 + 8 + NV, c)
        run_slots(g, mf, [rq], cap=opt.p2_cap, dma=lq, dma_every=opt.p2_every, dma_phase=0)
    g.stamp(7, kv="p2")
    A(f"s_or_b32 s{S_T2}, s{S_HG}, s{S_WV}")
    A(f"s_cmp_lg_u32 s{S_T2}, 0")
    A("s_cbranch_scc1 L_nobo")
    A("s_mov_b64 exec, 1")
    A(f"buffer_store_dword v6, v5, {sWS}, s{S_EOA} offen sc1")
    A("s_mov_b64 exec, -1")
    g.label("L_nobo")
    for cp in range(4):
        o = 64 + cp*4
        for h in range(2):
            a = ACC + (2*cp + h)*4
            A(f"v_cvt_pk_bf16_f32 v{o+2*h}, v{a}, v{a+1}"); A(f"v_cvt_pk_bf16_f32 v{o+2*h+1}, v{a+2}, v{a+3}")
    for cp in range(4):
        o = 64 + cp*4
        A(f"v_permlane16_swap_b32 v{o}, v{o+2}")
        A(f"v_permlane16_swap_b32 v{o+1}, v{o+3}")
        A(f"buffer_store_dwordx4 {vr(o)}, v2, {sOUT}, s{S_XB} offen offset:{cp*64}{opt.outpol}")
    if opt.stamps:
        A("s_waitcnt vmcnt(0)")
        g.stamp(11)
        A("s_waitcnt lgkmcnt(0)")
        A(f"s_cmp_lg_u32 s{S_WV}, {opt.stamp_wave}")
        A("s_cbranch_scc1 L_end")
        if opt.dbgstamps:
            A("s_load_dwordx2 s[16:17], s[0:1], 56")
            A("v_mov_b32 v100, 0")
            for j in range(12):
                if opt.dbgbr >= 0 or j not in (4, 6, 7):
                    A(f"v_writelane_b32 v100, s{72+2*j}, {j}")
            for j, src in ((12, 0), (13, 2), (14, 3), (15, 11)):
                A(f"s_not_b32 s{S_T0}, s{72+2*src}")
                A(f"v_writelane_b32 v100, s{S_T0}, {j}")
            A("s_waitcnt lgkmcnt(0)")
            A("s_mov_b32 s18, 256"); A("s_mov_b32 s19, 0x20000")
            if opt.dbgbr >= 0:
                A(f"s_cmp_lg_u32 s{S_BR}, {opt.dbgbr}")
                A("s_cbranch_scc1 L_end")
            A(f"v_lshlrev_b32 v3, 2, v{V_L}")
            A("s_mov_b64 exec, 0xffff")
            A("buffer_atomic_umax v100, v3, s[16:19], 0 offen sc1")
            A("s_branch L_end")
        for j in range(24): A(f"v_mov_b32 v{100+j}, s{72+j}")
        A(f"s_mul_i32 s{S_T0}, s2, 96")
        A(f"s_add_u32 s{S_T0}, s{S_T0}, {WS_STAMP}")
        A("v_mov_b32 v3, 0")
        A("s_mov_b64 exec, 1")
        for j in range(6):
            A(f"buffer_store_dwordx4 v[{100+4*j}:{103+4*j}], v3, {sWS}, s{S_T0} offen offset:{16*j}")

def main():
    ap = argparse.ArgumentParser()
    ap.add_argument("-o", default="out.s")
    ap.add_argument("--stamps", type=int, default=0)
    ap.add_argument("--kvstamps", type=int, default=0)
    ap.add_argument("--p2stamps", type=int, default=0)
    ap.add_argument("--dbgstamps", type=int, default=0)
    ap.add_argument("--dbgbr", type=int, default=-1)
    ap.add_argument("--bfirst", type=int, default=0)
    ap.add_argument("--stamp-wave", type=int, default=0)
    ap.add_argument("--bar-after", type=int, default=4)
    ap.add_argument("--nt", type=int, default=0)
    ap.add_argument("--pfnt", type=int, default=0)
    ap.add_argument("--pf", type=int, default=0)
    ap.add_argument("--pre3", type=int, default=0)
    ap.add_argument("--pf-first", type=int, default=2)
    ap.add_argument("--pf-pos", type=int, default=0)
    ap.add_argument("--pf-init", type=int, default=2)
    ap.add_argument("--warmcode", type=int, default=0)
    ap.add_argument("--warmoff", type=int, default=0)
    ap.add_argument("--dma-every", type=int, default=4)
    ap.add_argument("--dma-fast", type=int, default=2)
    ap.add_argument("--cap", type=int, default=2)
    ap.add_argument("--cap-even", type=int, default=1)
    ap.add_argument("--b-cap", type=int, default=5)
    ap.add_argument("--cap2", type=int, default=3)
    ap.add_argument("--gat-at", type=int, default=27)
    ap.add_argument("--gat-every", type=int, default=1)
    ap.add_argument("--kv-sleep", type=int, default=4)
    ap.add_argument("--poll0", type=int, default=8)
    ap.add_argument("--poll1", type=int, default=6)
    ap.add_argument("--outpol", default="")
    ap.add_argument("--p2-first", type=int, default=6)
    ap.add_argument("--p2-every", type=int, default=4)
    ap.add_argument("--early-sync", type=int, default=1)
    ap.add_argument("--rot", type=int, default=7)
    ap.add_argument("--d2late", type=int, default=0)
    ap.add_argument("--qearly", type=int, default=0)
    ap.add_argument("--cmap", type=int, default=1)
    ap.add_argument("--common", type=int, default=2)
    ap.add_argument("--pk", type=int, default=1)
    ap.add_argument("--tagstep", type=int, default=2)
    ap.add_argument("--p2-nv", type=int, default=3)
    ap.add_argument("--p2-pre1", type=int, default=6)
    ap.add_argument("--p2-cap", type=int, default=1)
    ap.add_argument("--wo-at", type=int, default=4)
    ap.add_argument("--wc-at", type=int, default=0)
    opt = ap.parse_args()
    if opt.outpol: opt.outpol = " " + opt.outpol.replace(",", " ")
    g = G(opt)
    global QE
    QE = opt.qearly
    global PFPOL
    PFPOL = " nt" if opt.pfnt else ""
    K = NAME + "_kernel"
    head = ["; generated by gen/gen8.py  " + " ".join(sys.argv[1:]),
            "; @launch grid=(256,1,1) block=(256,1,1) lds=163840",
            '.amdgcn_target "amdgcn-amd-amdhsa--gfx950"', ".text",
            f".globl {K}", ".p2align 8", f".type {K},@function", f"{K}:"]
    A = g.A
    g.stamp(0)
    decode(g)
    if opt.common:
        for c in range(opt.common):
            items = chunk_dmas(g, c, True)
            for it in items[:-1]:
                for x_ in it[2]: A(x_)
            A(f"s_cmp_lg_u32 s{S_BR}, 0"); A(f"s_cbranch_scc1 L_nohalo{c}")
            for x_ in items[-1][2]: A(x_)
            g.label(f"L_nohalo{c}")
        if opt.warmcode:
            A("s_getpc_b64 s[68:69]"); g.label("L_wc")
            A(f"s_lshl_b32 s{S_T0}, s{S_BR}, 1"); A(f"s_add_u32 s{S_T0}, s{S_T0}, s{S_RW}")
            A(f"s_mov_b32 s{S_T1}, L_path0-L_wc")
            for v in (1, 2, 3):
                A(f"s_cmp_eq_u32 s{S_T0}, {v}"); A(f"s_cselect_b32 s{S_T1}, L_path{v}-L_wc, s{S_T1}")
            A(f"s_lshl_b32 s{S_T0}, s{S_CW}, 13"); A(f"s_add_u32 s{S_T1}, s{S_T1}, s{S_T0}")
            A(f"v_lshlrev_b32 v2, 7, v{V_L}"); A(f"v_add_u32 v3, s{S_T1}, v2"); A("v_min_u32 v3, L_end-L_wc, v3")
            A(f"global_load_dword v{V_PF0}, v3, s[68:69]")
            A("v_add_u32 v3, L_phase2-L_wc, v2"); A("v_min_u32 v3, L_end-L_wc, v3")
            A(f"global_load_dword v{V_PF1}, v3, s[68:69]")
    A(f"s_lshl_b32 s{S_T0}, s{S_BR}, 1")
    A(f"s_add_u32 s{S_T0}, s{S_T0}, s{S_RW}")
    for v in (1, 2, 3):
        A(f"s_cmp_eq_u32 s{S_T0}, {v}")
        A(f"s_cbranch_scc1 L_path{v}")
    for v in range(4):
        g.label(f"L_path{v}")
        phase1_path(g, v >> 1, v & 1)
    phase2(g)
    g.label("L_end")
    A("s_endpgm")
    body, n = fix_hazards(g.L)
    tail = ['.section .rodata,"a"', ".p2align 6", f".amdhsa_kernel {K}", "  .amdhsa_next_free_vgpr 512", "  .amdhsa_next_free_sgpr 102",
            "  .amdhsa_accum_offset 256", "  .amdhsa_group_segment_fixed_size 0", "  .amdhsa_kernarg_size 72",
            "  .amdhsa_user_sgpr_count 2", "  .amdhsa_user_sgpr_kernarg_segment_ptr 1",
            "  .amdhsa_system_sgpr_workgroup_id_x 1", ".end_amdhsa_kernel"]
    open(opt.o, "w").write("\n".join(head + body + tail) + "\n")
    print(f"wrote {opt.o}: {len(body)} lines, {n} nops inserted")

main()
```

```python
import sys, argparse
from asmlib import fix_hazards, VM

NAME = "concat_heads__sliding_local_dilated__linear_attn_block__prompt"
STAGE = 34816
WOFF = 18432
XCH = 4 * STAGE
WS_KV = 0x400000
WS_Z = 0x480000
WS_EO = 0x500000
WS_EK = 0x501000
WS_FL = 0x502000
WS_STAMP = 0x8000000
NEG = 0xF149F2CA
LOG2E = 0x3FB8AA3B
CSC = 0x3EB8AA3B
NCSC = 0xBEB8AA3B
EPS = 0x358637BD
SPIN = 300000

sX, sW, sWS, sWO, sOUT = "s[24:27]", "s[28:31]", "s[32:35]", "s[40:43]", "s[44:47]"
S_BR, S_RB, S_HG, S_WV, S_RW, S_CW = 48, 49, 50, 51, 52, 53
S_XB, S_HB, S_WB, S_LW, S_T0, S_T1, S_T2, S_C, S_NC, S_L2E, S_EPS, S_WOB, S_LWH = 54, 55, 56, 57, 58, 59, 60, 61, 62, 63, 64, 65, 67
S_HEAD, S_SPIN = 70, 71
S_WB1 = 66
S_OST, S_KVS, S_ZS, S_LWO, S_OLD, S_IDX, S_XCD = 4, 5, 6, 7, 8, 23, 22
S_PFX, S_PFW, S_FLN, S_FLO, S_EOA, S_EKA, S_TAG = 9, 10, 11, 12, 13, 14, 15
S_EO, S_EK = 36, 38
S_ROT, S_RC = 16, 17
V_L = 1
V_XD = 10
V_WD = 14
V_XH, V_WO = 18, 19
V_XR = 20
V_HR = 26
V_WR = 32
V_OR = 38
V_L16 = 46
V_L8 = 47
V_MOWN, V_MPREV, V_MHALO, V_BM, V_ONES = 48, 52, 56, 64, 66
V_PF0, V_PF1 = 70, 71
V_ACC = 72
V_HACC = 136
V_WF = 144
V_HF = 176
V_QACC = 184
V_VP = 216
V_KP = 240
V_KPREV = 176
V_XA = 9
V_QF = 216
QE = 0
def wq_base(cq):
    if cq < QE: return None
    r = cq - QE
    st = ((8 + (r >> 2)) % 4) * STAGE
    return st + ((r & 3) >> 1)*16384 + (r & 1)*1024
PFPOL = ""
V_WO4 = [12, 13, 16, 17]
WOB = [67584, 100352, 0, 32768]

def vr(b, n=4, k="v"): return f"{k}[{b}:{b+n-1}]"
def ldsaddr(base_reg, const):
    return f"v{base_reg + (const >> 16)}", const & 0xFFFF

class G:
    def __init__(self, opt):
        self.L = []; self.opt = opt; self.lds = []; self.vm = VM()
    def A(self, s):
        if s.endswith(":"): self.L.append(s)
        else: self.L.append("    " + s)
    def label(self, s): self.L.append(s + ":")
    def stamp(self, i, kv=False):
        o = self.opt
        if not o.stamps: return
        if o.kvstamps and i >= 3 and not kv and i != 11: return
        if kv is True and not o.kvstamps: return
        if o.p2stamps and 3 <= i <= 7 and kv != "p2": return
        if kv == "p2" and not o.p2stamps: return
        self.A(f"s_memrealtime s[{72+2*i}:{73+2*i}]")
    def emit(self, it):
        if isinstance(it, str): self.A(it)
        elif isinstance(it, list):
            for s in it: self.emit(s)
        elif it[0] == "lds":
            self.lds.append(it[1]); self.A(it[2])
        elif it[0] == "vm":
            self.vm.add(it[1])
            for s in it[2]: self.A(s)
        elif it[0] == "need": self.need(it[1])
        elif it[0] == "ldsall": self.ldsall()
        elif it[0] == "stamp": self.stamp(it[1])
        else: raise ValueError(it)
    def need(self, tag):
        idx = max((i for i, t in enumerate(self.lds) if t == tag), default=None)
        if idx is None: return
        n = len(self.lds) - 1 - idx
        self.lds = self.lds[idx + 1:]
        self.A(f"s_waitcnt lgkmcnt({min(n, 15)})")
    def ldsall(self):
        self.lds = []
        self.A("s_waitcnt lgkmcnt(0)")
    def vmwait(self, tag):
        n = self.vm.wait_n(tag)
        if n is not None: self.A(f"s_waitcnt vmcnt({n})")

def cost(it):
    if isinstance(it, str): return 1
    if isinstance(it, list): return sum(cost(x) for x in it)
    if it[0] == "vm": return len(it[2])
    return 1

def run_slots(g, mf, queues, cap=2, dma=None, dma_every=4, dma_phase=0):
    for i, (m, needs) in enumerate(mf):
        for t in needs: g.need(t)
        g.A(m)
        room = cap
        if dma and (i % dma_every) == dma_phase:
            it = dma.pop(0); g.emit(it); room -= min(cost(it), 2)
        for q in queues:
            while q and room > 0:
                it = q.pop(0); g.emit(it); room -= cost(it)

def cs_(g, r): return f"s_and_b32 s{r}, s{S_HG}, 3" if g.opt.cmap else f"s_lshr_b32 s{r}, s{S_HG}, 1"
def rh_(g, r): return f"s_lshr_b32 s{r}, s{S_HG}, 2" if g.opt.cmap else f"s_and_b32 s{r}, s{S_HG}, 1"

def decode(g):
    A = g.A
    A("s_cmp_ge_u32 s2, 256")
    A("s_cbranch_scc1 L_end")
    A("s_load_dwordx16 s[4:19], s[0:1], 0")
    A("s_load_dwordx2 s[20:21], s[0:1], 64")
    A("v_lshrrev_b32 v2, 6, v0")
    A(f"v_and_b32 v{V_L}, 63, v0")
    A(f"v_readfirstlane_b32 s{S_WV}, v2")
    A("s_and_b32 s22, s2, 7")
    A("s_lshr_b32 s23, s2, 3")
    A(f"s_lshr_b32 s{S_BR}, s22, 2")
    if g.opt.bfirst: A(f"s_xor_b32 s{S_BR}, s{S_BR}, 1")
    A(f"s_bfe_u32 s{S_RB}, s22, 0x10001")
    A(f"s_lshl_b32 s{S_RB}, s{S_RB}, 3")
    A(f"s_and_b32 s{S_T0}, s23, 7")
    A(f"s_add_u32 s{S_RB}, s{S_RB}, s{S_T0}")
    A(f"s_and_b32 s{S_HG}, s22, 1")
    A(f"s_lshl_b32 s{S_HG}, s{S_HG}, 2")
    A(f"s_lshr_b32 s{S_T0}, s23, 3")
    A(f"s_add_u32 s{S_T0}, s{S_T0}, s23")
    A(f"s_and_b32 s{S_T0}, s{S_T0}, 3")
    A(f"s_add_u32 s{S_HG}, s{S_HG}, s{S_T0}")
    A(f"s_lshr_b32 s{S_RW}, s{S_WV}, 1")
    A(f"s_and_b32 s{S_CW}, s{S_WV}, 1")
    l = f"v{V_L}"
    A(f"v_lshrrev_b32 v2, 3, {l}")
    A(f"v_and_b32 v3, 7, {l}")
    A(f"v_lshrrev_b32 v4, 4, {l}")
    A("v_xor_b32 v5, v3, v4")
    A("v_lshlrev_b32 v6, 11, v2")
    A(f"v_lshl_add_u32 v{V_XD}, v5, 4, v6")
    A(f"v_xor_b32 v7, 64, v{V_XD}")
    A(f"v_add_u32 v{V_XD+1}, {14*1024}, v7")
    A("v_and_b32 v5, 1, v4")
    A("v_lshlrev_b32 v5, 1, v5")
    A("v_xor_b32 v5, v3, v5")
    A("v_mul_u32_u24 v7, 3072, v2")
    A(f"v_lshl_add_u32 v{V_WD}, v5, 4, v7")
    A(f"v_xor_b32 v7, 64, v{V_WD}")
    A(f"v_add_u32 v{V_WD+1}, 22528, v7")
    A(f"s_lshl_b32 s{S_T0}, s{S_WV}, 1")
    A(f"v_add_u32 v5, s{S_T0}, v4")
    A("v_xor_b32 v5, v3, v5")
    A(f"v_lshl_add_u32 v{V_XH}, v5, 4, v6")
    A(f"s_lshl_b32 s{S_XB}, s{S_RB}, 17")
    A(f"s_lshl_b32 s{S_T0}, s{S_WV}, 15")
    A(f"s_add_u32 s{S_XB}, s{S_XB}, s{S_T0}")
    A(f"s_lshl_b32 s{S_HB}, s{S_RB}, 7")
    A(f"s_sub_i32 s{S_HB}, s{S_HB}, 16")
    A(f"s_max_i32 s{S_HB}, s{S_HB}, 0")
    A(f"s_lshl_b32 s{S_T0}, s{S_CW}, 3")
    A(f"s_add_u32 s{S_HB}, s{S_HB}, s{S_T0}")
    A(f"s_add_u32 s{S_HB}, s{S_HB}, s{S_RW}")
    A(f"s_lshl_b32 s{S_HB}, s{S_HB}, 10")
    A(f"s_mul_i32 s{S_WB}, s{S_WV}, 49152")
    A(f"s_lshl_b32 s{S_T0}, s{S_HG}, 7")
    A(f"s_add_u32 s{S_WB}, s{S_WB}, s{S_T0}")
    A(f"s_add_u32 s{S_WB1}, s{S_WB}, 1024")
    A(f"s_lshl_b32 s{S_LW}, s{S_WV}, 12")
    A(f"s_lshl_b32 s{S_LWH}, s{S_WV}, 9")
    A(f"s_lshl_b32 s{S_WOB}, s{S_WV}, 15")
    A(cs_(g, S_T0))
    A(f"s_lshl_b32 s{S_T0}, s{S_T0}, 8")
    A(f"s_add_u32 s{S_WOB}, s{S_WOB}, s{S_T0}")
    if g.opt.pf == 4: pf4_pre(g)
    A("s_waitcnt lgkmcnt(0)")
    A(f"s_cmp_eq_u32 s{S_BR}, 0")
    A("s_cselect_b32 s24, s4, s10"); A("s_cselect_b32 s25, s5, s11"); A("s_mov_b32 s26, 0x200000"); A("s_mov_b32 s27, 0x20000")
    A("s_cselect_b32 s28, s6, s12"); A("s_cselect_b32 s29, s7, s13"); A("s_mov_b32 s30, 0x180000"); A("s_mov_b32 s31, 0x20000")
    A("s_cselect_b32 s40, s8, s14"); A("s_cselect_b32 s41, s9, s15"); A("s_mov_b32 s42, 0x80000"); A("s_mov_b32 s43, 0x20000")
    A("s_mov_b32 s32, s20"); A("s_mov_b32 s33, s21"); A("s_mov_b32 s34, 0x10000000"); A("s_mov_b32 s35, 0x20000")
    A("s_mov_b32 s44, s16"); A("s_mov_b32 s45, s17"); A("s_mov_b32 s46, 0x400000"); A("s_mov_b32 s47, 0x20000")
    if g.opt.rot == 3: A(f"s_lshl_b32 s{S_ROT}, s{S_HG}, 1")
    elif g.opt.rot == 4: A(f"s_mov_b32 s{S_ROT}, s{S_RB}")
    elif g.opt.rot == 5: A(f"s_mov_b32 s{S_ROT}, s{S_HG}")
    elif g.opt.rot == 6: A(f"s_lshl_b32 s{S_ROT}, s{S_HG}, 2")
    elif g.opt.rot == 7: A(f"s_lshl_b32 s{S_ROT}, s{S_RB}, 2")
    elif g.opt.rot == 8:
        A(f"s_xor_b32 s{S_ROT}, s{S_RB}, s{S_HG}"); A(f"s_lshl_b32 s{S_ROT}, s{S_ROT}, 2")
    elif g.opt.rot == 10: A(f"s_lshl_b32 s{S_ROT}, s{S_RB}, 1")
    elif g.opt.rot == 11:
        A(f"s_lshl_b32 s{S_ROT}, s{S_HG}, 2"); A(f"s_add_u32 s{S_ROT}, s{S_ROT}, s{S_RB}")
    elif g.opt.rot == 9: A(f"s_mov_b32 s{S_ROT}, 4")
    elif g.opt.rot:
        A(f"s_lshl_b32 s{S_ROT}, s{S_HG}, 1")
        A(f"s_add_u32 s{S_ROT}, s{S_ROT}, s{S_RB}")
        if g.opt.rot == 2:
            A(f"s_lshr_b32 s{S_T0}, s{S_HG}, 2"); A(f"s_add_u32 s{S_ROT}, s{S_ROT}, s{S_T0}")
            A(f"s_lshr_b32 s{S_T0}, s{S_RB}, 3"); A(f"s_lshl_b32 s{S_T0}, s{S_T0}, 2"); A(f"s_add_u32 s{S_ROT}, s{S_ROT}, s{S_T0}")
    else:
        A(f"s_mov_b32 s{S_ROT}, 0")

def chunk_dmas(g, c, halo):
    st = (c % 4) * STAGE
    nt = " nt" if g.opt.nt else ""
    tag = ("c", c)
    out = []
    if c < 8:
        rc = [f"s_add_u32 s{S_RC}, s{S_ROT}, {c}", f"s_and_b32 s{S_RC}, s{S_RC}, 7"]
        for i in range(4):
            pre = rc + [f"s_add_u32 m0, s{S_LW}, {st}", f"s_lshl_b32 s{S_T2}, s{S_RC}, 7", f"s_add_u32 s{S_T2}, s{S_T2}, s{S_XB}"] if i == 0 else []
            out.append(("vm", tag, pre + [f"buffer_load_dwordx4 v{V_XD+(i>>1)}, {sX}, s{S_T2} offen offset:{i*1024}{nt} lds"]))
        for j in range(4):
            pre = [f"s_add_u32 m0, s{S_LW}, {st + WOFF}", f"s_mul_i32 s{S_T2}, s{S_RC}, 196608", f"s_add_u32 s{S_T2}, s{S_T2}, s{S_WB1}"] if j == 0 else []
            out.append(("vm", tag, pre + [f"buffer_load_dwordx4 v{V_WD+(j>>1)}, {sW}, s{S_T2} offen offset:{j*1024}{nt} lds"]))
        if c < QE:
            for bb in range(2):
                pre = [f"s_lshl_b32 s{S_T2}, s{S_WV}, 11", f"s_add_u32 m0, s{S_T2}, {XCH + c*8192 - 1024}",
                       f"s_mul_i32 s{S_T2}, s{S_RC}, 196608", f"s_add_u32 s{S_T2}, s{S_T2}, s{S_WB}"] if bb == 0 else []
                pre = [f"s_lshl_b32 s{S_T1}, s{S_WV}, 11", f"s_add_u32 m0, s{S_T1}, {XCH + c*8192 + bb*1024 - bb*2048}"] + \
                      ([f"s_mul_i32 s{S_T2}, s{S_RC}, 196608", f"s_add_u32 s{S_T2}, s{S_T2}, s{S_WB}"] if bb == 0 else [])
                out.append(("vm", tag, pre + [f"buffer_load_dwordx4 v{V_WD+bb}, {sW}, s{S_T2} offen offset:{bb*2048}{nt} lds"]))
        if halo:
            out.append(("vm", tag, [f"s_add_u32 m0, s{S_LWH}, {st + 16384}", f"s_lshl_b32 s{S_T2}, s{S_RC}, 7", f"s_add_u32 s{S_T2}, s{S_T2}, s{S_HB}",
                        "s_mov_b32 exec_hi, 0", f"buffer_load_dwordx4 v{V_XH}, {sX}, s{S_T2} offen{nt} lds", "s_mov_b32 exec_hi, -1"]))
    elif c < 10:
        h = c - 8
        for cq in range(QE + 4*h, min(QE + 4*h + 4, 8)):
            for bb in range(2):
                pre = []
                if bb == 0:
                    pre = [f"s_add_u32 s{S_RC}, s{S_ROT}, {cq}", f"s_and_b32 s{S_RC}, s{S_RC}, 7",
                           f"s_add_u32 m0, s{S_LW}, {wq_base(cq)}",
                           f"s_mul_i32 s{S_T2}, s{S_RC}, 196608", f"s_add_u32 s{S_T2}, s{S_T2}, s{S_WB}"]
                out.append(("vm", tag, pre + [f"buffer_load_dwordx4 v{V_WD+bb}, {sW}, s{S_T2} offen offset:{bb*2048}{nt} lds"]))
    else:
        h = c - 10
        for b in range(8):
            pre = [f"s_add_u32 m0, s{S_LWO}, {WOB[h] + (b >> 2)*4096}",
                   f"s_add_u32 s{S_T2}, s{S_WOB}, {(128*h + 16*(b >> 2))*1024}"] if (b & 3) == 0 else []
            out.append(("vm", tag, pre + [f"buffer_load_dwordx4 v{V_WO4[b & 3]}, {sWO}, s{S_T2} offen offset:{(b & 3)*1024}{nt} lds"]))
    return out

def setup2(g, br, rw):
    A = g.A
    halo = br == 0
    l = f"v{V_L}"
    A(f"s_lshl_b32 s{S_T0}, s{S_BR}, 4"); A(f"s_add_u32 s{S_T0}, s{S_T0}, s{S_RB}")
    A(f"s_lshl_b32 s{S_EOA}, s{S_T0}, 7"); A(f"s_add_u32 s{S_EOA}, s{S_EOA}, {WS_EO}")
    A(f"s_lshl_b32 s{S_FLN}, s{S_T0}, 8"); A(f"s_add_u32 s{S_FLN}, s{S_FLN}, {WS_FL}")
    A(f"s_lshl_b32 s{S_EKA}, s{S_HG}, 7"); A(f"s_add_u32 s{S_EKA}, s{S_EKA}, {WS_EK}")
    A(f"s_load_dwordx2 s[{S_EO}:{S_EO+1}], s[20:21], s{S_EOA}")
    if br == 1: A(f"s_load_dwordx2 s[{S_EK}:{S_EK+1}], s[20:21], s{S_EKA}")
    A(f"s_lshl_b32 s{S_T1}, s{S_HG}, 1"); A(f"s_add_u32 s{S_T1}, s{S_T1}, s{S_CW}")
    A(f"s_lshl_b32 s{S_FLO}, s{S_T1}, 3"); A(f"s_add_u32 s{S_FLO}, s{S_FLO}, s{S_FLN}"); A(f"s_add_u32 s{S_FLO}, s{S_FLO}, {rw*128}")
    A(rh_(g, S_T2)); A(f"s_lshl_b32 s{S_T2}, s{S_T2}, 7"); A(f"s_add_u32 s{S_FLN}, s{S_FLN}, s{S_T2}")
    A(f"v_lshrrev_b32 v2, 4, {l}"); A(f"v_and_b32 v3, 15, {l}")
    A("v_lshlrev_b32 v5, 1, v2"); A("v_xor_b32 v5, v3, v5"); A("v_lshlrev_b32 v6, 10, v2")
    A(f"v_lshl_add_u32 v{V_WO4[0]}, v5, 4, v6")
    A(f"v_xor_b32 v6, 128, v{V_WO4[0]}")
    A(f"v_add_u32 v{V_WO4[1]}, 3072, v6")
    A(f"v_add_u32 v{V_WO4[2]}, 6144, v{V_WO4[0]}")
    A(f"v_add_u32 v{V_WO4[3]}, 9216, v6")
    A(f"v_and_b32 v2, 15, {l}")
    A(f"v_lshrrev_b32 v3, 4, {l}")
    A("v_lshrrev_b32 v4, 1, v2")
    A("v_xor_b32 v5, v3, v4")
    A("v_lshlrev_b32 v6, 7, v2")
    A("v_lshl_add_u32 v6, v5, 4, v6")
    A("v_lshrrev_b32 v7, 3, v2")
    A("v_lshl_add_u32 v7, v7, 10, v6")
    A(f"v_add_u32 v{V_XR}, {rw*8192}, v7")
    A(f"v_xor_b32 v{V_XR+3}, 64, v{V_XR}")
    for kk in range(2):
        for b in (1, 2): A(f"v_add_u32 v{V_XR+3*kk+b}, {b<<16}, v{V_XR+3*kk}")
    if halo:
        A(f"v_add_u32 v{V_HR}, 16384, v6")
        A(f"v_xor_b32 v{V_HR+3}, 64, v{V_HR}")
        for kk in range(2):
            for b in (1, 2): A(f"v_add_u32 v{V_HR+3*kk+b}, {b<<16}, v{V_HR+3*kk}")
    A("v_lshrrev_b32 v4, 2, v2")
    A("v_and_b32 v5, 3, v2")
    A("v_lshrrev_b32 v8, 3, v2")
    A("v_and_b32 v7, 1, v3")
    A("v_lshl_or_b32 v8, v7, 1, v8")
    A("v_lshrrev_b32 v6, 1, v3")
    A("v_lshlrev_b32 v6, 12, v6")
    A("v_lshl_add_u32 v6, v7, 11, v6")
    A("v_lshl_add_u32 v6, v4, 7, v6")
    A("v_lshl_add_u32 v6, v5, 3, v6")
    A(f"s_lshl_b32 s{S_T0}, s{S_CW}, 1")
    A(f"v_xor_b32 v7, s{S_T0}, v8")
    A(f"v_lshl_add_u32 v{V_WR}, v7, 5, v6")
    A(f"v_xor_b32 v{V_WR+3}, 32, v{V_WR}")
    for hh in range(2):
        for b in (1, 2): A(f"v_add_u32 v{V_WR+3*hh+b}, {b<<16}, v{V_WR+3*hh}")
    if QE:
        A("v_lshlrev_b32 v6, 10, v3")
        A(f"v_sub_u32 v38, v{V_WR+2}, v6"); A(f"v_sub_u32 v39, v{V_WR+5}, v6")
    A(f"v_lshlrev_b32 v{V_L16}, 4, {l}")
    A(f"v_lshlrev_b32 v{V_L8}, 3, {l}")
    A(f"s_mov_b32 s{S_C}, {CSC:#x}"); A(f"s_mov_b32 s{S_NC}, {NCSC:#x}")
    A(f"s_mov_b32 s{S_L2E}, {LOG2E:#x}"); A(f"s_mov_b32 s{S_EPS}, {EPS:#x}")
    A(f"s_mov_b32 s{S_SPIN}, {SPIN}")
    A(f"s_mov_b32 s18, {LOG2E:#x}"); A(f"s_mov_b32 s19, {LOG2E:#x}"); A(f"s_mov_b32 s96, {CSC:#x}"); A(f"s_mov_b32 s97, {CSC:#x}")
    for i in range(4): A(f"v_mov_b32 v{V_ONES+i}, 0x3f803f80")
    A(f"s_lshl_b32 s{S_T0}, s{S_RB}, 3")
    A(f"s_add_u32 s{S_OLD}, s{S_T0}, {br*128}")
    A(f"s_add_u32 s{S_OST}, s{S_OLD}, {4*rw}")
    A(f"s_lshl_b32 s{S_OST}, s{S_OST}, 4")
    A(f"s_add_u32 s{S_OST}, s{S_OST}, s{S_T1}")
    A(f"s_lshl_b32 s{S_OST}, s{S_OST}, 10")
    A(rh_(g, S_T1)); A(f"s_lshl_b32 s{S_T1}, s{S_T1}, 2")
    A(f"s_add_u32 s{S_OLD}, s{S_OLD}, s{S_T1}")
    A(f"s_add_u32 s{S_OLD}, s{S_OLD}, s{S_WV}")
    A(f"s_lshl_b32 s{S_OLD}, s{S_OLD}, 14")
    A(f"s_lshl_b32 s{S_LWO}, s{S_WV}, 13")
    A(f"s_lshl_b32 s{S_T0}, s{S_CW}, 13")
    A(f"v_add_u32 v{V_XA}, s{S_T0}, v{V_L16 if br else V_L8}")
    A(f"v_add_u32 v{V_XA}, {XCH}, v{V_XA}")
    if br == 1:
        A(f"s_lshl_b32 s{S_T0}, s{S_HG}, 2")
        A(f"s_lshl_b32 s{S_T1}, s{S_CW}, 1")
        A(f"s_add_u32 s{S_T0}, s{S_T0}, s{S_T1}")
        A(f"s_add_u32 s{S_HEAD}, s{S_T0}, {rw}")
        A(f"s_lshl_b32 s{S_T0}, s{S_HEAD}, 4")
        A(f"s_add_u32 s{S_T0}, s{S_T0}, s{S_RB}")
        A(f"s_lshl_b32 s{S_KVS}, s{S_T0}, 10")
        A(f"s_add_u32 s{S_KVS}, s{S_KVS}, {WS_KV}")
        A(f"s_lshl_b32 s{S_ZS}, s{S_T0}, 6")
        A(f"s_add_u32 s{S_ZS}, s{S_ZS}, {WS_Z}")
    else:
        A(f"v_and_b32 v2, 15, {l}")
        A(f"v_lshrrev_b32 v3, 4, {l}")
        A("v_lshlrev_b32 v3, 2, v3")
        A(f"v_mov_b32 v8, {NEG:#x}")
        for r in range(4):
            A(f"v_add_u32 v4, {r}, v3")
            A("v_sub_u32 v5, v2, v4")
            A("v_cmp_gt_u32 vcc, 8, v5")
            A(f"v_mov_b32 v7, {0xffff if r % 2 == 0 else 0xffff0000:#x}")
            A(f"v_cndmask_b32 v{V_MOWN+r}, v8, 0, vcc")
            A("v_cndmask_b32 v6, 0, v7, vcc")
            if r % 2 == 0: A(f"v_mov_b32 v{V_BM + r//2}, v6")
            else: A(f"v_or_b32 v{V_BM + r//2}, v{V_BM + r//2}, v6")
            A("v_add_u32 v5, 9, v2")
            A("v_cmp_ge_u32 vcc, v4, v5")
            A(f"v_cndmask_b32 v{V_MPREV+r}, v8, 0, vcc")
            if rw == 0:
                for p in range(2):
                    A(f"v_subrev_u32 v5, {8*p}, v4")
                    A("v_cmp_gt_u32 vcc, 8, v5")
                    A("v_cmp_gt_u32 s[68:69], v5, v2")
                    A("s_and_b64 vcc, vcc, s[68:69]")
                    A(f"s_cmp_eq_u32 s{S_RB}, 0")
                    A("s_cselect_b64 vcc, 0, vcc")
                    A(f"v_cndmask_b32 v{V_MHALO+4*p+r}, v8, 0, vcc")

def pf_setup(g):
    A = g.A
    l = f"v{V_L}"
    A(f"v_and_b32 v2, 31, {l}")
    A("v_lshlrev_b32 v2, 10, v2")
    A(f"v_lshrrev_b32 v3, 5, {l}")
    A(f"v_lshl_add_u32 v{V_PF0}, v3, 7, v2")
    A(f"s_lshr_b32 s{S_PFX}, s{S_RB}, 3")
    A(f"s_lshl_b32 s{S_PFX}, s{S_PFX}, 20")
    A(f"s_lshl_b32 s{S_T0}, s{S_IDX}, 15")
    A(f"s_add_u32 s{S_PFX}, s{S_PFX}, s{S_T0}")
    A(f"s_lshl_b32 s{S_T0}, s{S_WV}, 8")
    A(f"s_add_u32 s{S_PFX}, s{S_PFX}, s{S_T0}")
    A(f"v_and_b32 v4, 15, {l}")
    A("v_lshrrev_b32 v5, 2, v4")
    A("v_and_b32 v6, 3, v4")
    A(f"v_bfe_u32 v7, {l}, 4, 1")
    A("v_mul_u32_u24 v7, 3072, v7")
    A("v_mul_u32_u24 v8, 196608, v3")
    A("v_add_u32 v7, v7, v8")
    A("v_lshl_add_u32 v7, v5, 10, v7")
    A("v_lshl_add_u32 v7, v6, 7, v7")
    A("v_cmp_gt_u32 vcc, 3, v5")
    A("v_mov_b32 v8, 0x7fffffff")
    A(f"v_cndmask_b32 v{V_PF1}, v8, v7, vcc")
    A(f"s_mul_i32 s{S_PFW}, s{S_IDX}, 6144")
    A(f"s_and_b32 s{S_T0}, s{S_XCD}, 1")
    A(f"s_lshl_b32 s{S_T0}, s{S_T0}, 9")
    A(f"s_add_u32 s{S_PFW}, s{S_PFW}, s{S_T0}")
    A(f"s_mul_i32 s{S_T0}, s{S_WV}, 393216")
    A(f"s_add_u32 s{S_PFW}, s{S_PFW}, s{S_T0}")

V_PA = 252
def pf3_setup(g):
    A = g.A
    l = f"v{V_L}"
    A(f"s_lshr_b32 s{S_T0}, s{S_RB}, 3")
    A(f"s_lshl_b32 s{S_T0}, s{S_T0}, 20")
    A(f"s_lshl_b32 s{S_T1}, s{S_IDX}, 15")
    A(f"s_add_u32 s{S_T0}, s{S_T0}, s{S_T1}")
    A(f"s_lshl_b32 s{S_T1}, s{S_WV}, 13")
    A(f"s_add_u32 s{S_T0}, s{S_T0}, s{S_T1}")
    A(f"s_add_u32 s{S_PFX}, s24, s{S_T0}"); A(f"s_addc_u32 s{S_PFX+1}, s25, 0")
    A(f"v_lshlrev_b32 v2, 10, {l}")
    A(f"v_mov_b32 v3, s{S_PFX+1}")
    A(f"v_add_co_u32 v{V_PA}, vcc, s{S_PFX}, v2")
    A(f"v_addc_co_u32 v{V_PA+1}, vcc, 0, v3, vcc")
    A(f"s_mul_i32 s{S_T0}, s{S_CW}, 6")
    A(f"v_subrev_u32 v4, 8, {l}")
    A(f"v_add_u32 v4, s{S_T0}, v4")
    A("v_lshrrev_b32 v5, 2, v4"); A("v_and_b32 v4, 3, v4")
    A("v_lshlrev_b32 v5, 10, v5"); A("v_lshl_add_u32 v4, v4, 7, v5")
    A(f"s_lshl_b32 s{S_T0}, s{S_IDX}, 1"); A(f"s_add_u32 s{S_T0}, s{S_T0}, s{S_RW}")
    A(f"s_mul_i32 s{S_T0}, s{S_T0}, 3072")
    A(f"s_and_b32 s{S_T1}, s{S_XCD}, 1"); A(f"s_lshl_b32 s{S_T1}, s{S_T1}, 9")
    A(f"s_add_u32 s{S_T0}, s{S_T0}, s{S_T1}")
    A(f"s_add_u32 s{S_PFX}, s28, s{S_T0}"); A(f"s_addc_u32 s{S_PFX+1}, s29, 0")
    A(f"v_mov_b32 v3, s{S_PFX+1}")
    A(f"v_add_co_u32 v4, vcc, s{S_PFX}, v4")
    A("v_addc_co_u32 v5, vcc, 0, v3, vcc")
    A(f"v_cmp_gt_u32 vcc, 8, {l}")
    A(f"v_cndmask_b32 v{V_PA}, v4, v{V_PA}, vcc")
    A(f"v_cndmask_b32 v{V_PA+1}, v5, v{V_PA+1}, vcc")
    A("v_mov_b32 v4, 196608"); A("v_mov_b32 v5, 128")
    A(f"v_cndmask_b32 v{V_PA+2}, v4, v5, vcc")
    for _ in range(g.opt.pf_first):
        A(f"v_add_co_u32 v{V_PA}, vcc, v{V_PA}, v{V_PA+2}")
        A(f"v_addc_co_u32 v{V_PA+1}, vcc, 0, v{V_PA+1}, vcc")
def pf3_item():
    return ("vm", "pf", ["s_mov_b64 exec, 0x3fff", f"global_load_dword v{V_PA+3}, v[{V_PA}:{V_PA+1}], off{PFPOL}", "s_mov_b64 exec, -1",
                         f"v_add_co_u32 v{V_PA}, vcc, v{V_PA}, v{V_PA+2}", f"v_addc_co_u32 v{V_PA+1}, vcc, 0, v{V_PA+1}, vcc"])

def pf4_pre(g):
    A = g.A
    l = f"v{V_L}"
    A(f"s_lshr_b32 s{S_T0}, s{S_RB}, 3")
    A(f"s_lshl_b32 s{S_T0}, s{S_T0}, 20")
    A(f"s_lshl_b32 s{S_T1}, s{S_IDX}, 15")
    A(f"s_add_u32 s{S_T0}, s{S_T0}, s{S_T1}")
    A(f"s_lshl_b32 s{S_T1}, s{S_WV}, 13")
    A(f"s_add_u32 s{S_T0}, s{S_T0}, s{S_T1}")
    A(f"v_lshlrev_b32 v2, 10, {l}")
    A(f"v_add_u32 v2, s{S_T0}, v2")
    A(f"s_lshl_b32 s{S_T0}, s{S_IDX}, 1"); A(f"s_add_u32 s{S_T0}, s{S_T0}, s{S_RW}")
    A(f"s_mul_i32 s{S_T0}, s{S_T0}, 3072")
    A(f"s_and_b32 s{S_T1}, s{S_XCD}, 1"); A(f"s_lshl_b32 s{S_T1}, s{S_T1}, 9")
    A(f"s_add_u32 s{S_T0}, s{S_T0}, s{S_T1}")
    A(f"s_lshl_b32 s{S_T1}, s{S_CW}, 10"); A(f"s_add_u32 s{S_T0}, s{S_T0}, s{S_T1}")
    A(f"s_add_u32 s{S_T0}, s{S_T0}, {1024 - 8*128}")
    A(f"v_lshlrev_b32 v3, 7, {l}")
    A(f"v_add_u32 v3, s{S_T0}, v3")
    A(f"v_cmp_gt_u32 s[68:69], 8, {l}")
    A("v_mov_b32 v4, 196608"); A("v_mov_b32 v5, 128")
    A(f"v_cndmask_b32 v{V_PA+2}, v4, v5, s[68:69]")
    A(f"v_cndmask_b32 v{V_PA}, v3, v2, s[68:69]")
    for _ in range(g.opt.pf_first): A(f"v_add_u32 v{V_PA}, v{V_PA}, v{V_PA+2}")
def pf4_post(g):
    A = g.A
    A("v_mov_b32 v2, s28"); A("v_mov_b32 v3, s29"); A("v_mov_b32 v4, s24"); A("v_mov_b32 v5, s25")
    A("v_cndmask_b32 v2, v2, v4, s[68:69]"); A("v_cndmask_b32 v3, v3, v5, s[68:69]")
    A(f"v_add_co_u32 v{V_PA}, vcc, v{V_PA}, v2")
    A(f"v_addc_co_u32 v{V_PA+1}, vcc, 0, v3, vcc")
def pf4_item():
    return ("vm", "pf", ["s_mov_b64 exec, 0xfff", f"global_load_dword v{V_PA+3}, v[{V_PA}:{V_PA+1}], off{PFPOL}", "s_mov_b64 exec, -1",
                         f"v_add_co_u32 v{V_PA}, vcc, v{V_PA}, v{V_PA+2}", f"v_addc_co_u32 v{V_PA+1}, vcc, 0, v{V_PA+1}, vcc"])

def acc(Tl, hh, kv): return V_ACC + ((Tl * 2 + hh) * 2 + kv) * 4
def xf(Tl, ks): return (Tl * 16 + ks) * 4

def kv_reads(ks, halo):
    c = ks >> 1; kk = ks & 1; st = (c % 4) * STAGE; buf = ks & 1
    w = []
    for hh in range(2):
        for seg in range(2):
            for t in range(2):
                reg, off = ldsaddr(V_WR + 3*hh, st + WOFF + kk*8192 + seg*1024 + t*512)
                d = V_WF + buf*16 + (hh*2 + seg)*4 + t*2
                w.append(("lds", ("w", ks, hh, seg), f"ds_read_b64_tr_b16 v[{d}:{d+1}], {reg} offset:{off}"))
    xr = []
    for Tl in range(4):
        reg, off = ldsaddr(V_XR + 3*kk, st + (Tl >> 1)*4096 + (Tl & 1)*1024)
        xr.append(("lds", ("x", ks, Tl), f"ds_read_b128 {vr(xf(Tl, ks), 4, 'a')}, {reg} offset:{off}"))
    if halo:
        reg, off = ldsaddr(V_HR + 3*kk, st)
        xr.append(("lds", ("x", ks, 4), f"ds_read_b128 {vr(V_HF + buf*4)}, {reg} offset:{off}"))
    qr = []
    if c < QE:
        for hh in range(2):
            for t in range(2):
                d = V_QF + buf*8 + hh*4 + t*2
                qr.append(("lds", ("q", hh, ks), f"ds_read_b64_tr_b16 v[{d}:{d+1}], v{38+hh} offset:{XCH - 131072 + c*8192 + kk*4096 + t*512}"))
    return [xr[0]] + w + xr[1:] + qr

def kv_mfmas(ks, br, rw):
    buf = ks & 1
    out = []
    for Tl in range(4):
        for hh in range(2):
            for seg in range(2):
                w = vr(V_WF + buf*16 + (hh*2 + seg)*4)
                x = vr(xf(Tl, ks), 4, "a")
                d = vr(acc(Tl, hh, seg))
                c = "0" if ks == 0 else d
                a, b = (w, x) if (br == 0 and seg == 0) else (x, w)
                out.append((f"v_mfma_f32_16x16x32_bf16 {d}, {a}, {b}, {c}", [("x", ks, Tl), ("w", ks, hh, seg)]))
    if br == 0:
        for hh in range(2):
            seg = rw
            w = vr(V_WF + buf*16 + (hh*2 + seg)*4)
            x = vr(V_HF + buf*4)
            d = vr(V_HACC + hh*4)
            c = "0" if ks == 0 else d
            a, b = (w, x) if seg == 0 else (x, w)
            out.append((f"v_mfma_f32_16x16x32_bf16 {d}, {a}, {b}, {c}", [("x", ks, 4)]))
    if (ks >> 1) < QE:
        for hh in range(2):
            for Tl in range(4):
                d = vr(V_QACC + (hh*4 + Tl)*4)
                out.append((f"v_mfma_f32_16x16x32_bf16 {d}, {vr(V_QF + buf*8 + hh*4)}, {vr(xf(Tl, ks), 4, 'a')}, {'0' if ks == 0 else d}", [("q", hh, ks)]))
    return out

def q_read(hh, ks, slot):
    out = []
    for t in range(2):
        reg, off = ldsaddr(V_WR + 3*hh, wq_base(ks >> 1) + (ks & 1)*8192 + t*512)
        d = V_WF + slot*4 + t*2
        out.append(("lds", ("q", hh, ks), f"ds_read_b64_tr_b16 v[{d}:{d+1}], {reg} offset:{off}"))
    return out

def phi_list(regs, tmp, pk=False):
    out = []
    if pk:
        for i in range(0, len(regs), 2): out.append(f"v_pk_mul_f32 v[{tmp+i}:{tmp+i+1}], v[{regs[i]}:{regs[i]+1}], s[18:19]")
        for i, r in enumerate(regs):
            out.append(f"v_exp_f32 v{tmp+i}, v{tmp+i} clamp")
            out.append(f"v_max_f32 v{r}, s{S_EPS}, v{r}")
        for i in range(0, len(regs), 2): out.append(f"v_pk_add_f32 v[{regs[i]}:{regs[i]+1}], v[{regs[i]}:{regs[i]+1}], v[{tmp+i}:{tmp+i+1}]")
        return out
    for i, r in enumerate(regs): out.append(f"v_mul_f32 v{tmp+i}, s{S_L2E}, v{r}")
    for i, r in enumerate(regs):
        out.append(f"v_exp_f32 v{tmp+i}, v{tmp+i} clamp")
        out.append(f"v_max_f32 v{r}, s{S_EPS}, v{r}")
    for i, r in enumerate(regs): out.append(f"v_add_f32 v{r}, v{r}, v{tmp+i}")
    return out

def npf_left(opt, c):
    return opt.pf_first + opt.pf_init + 1 + c < 8

def phase1_path(g, br, rw):
    A = g.A
    opt = g.opt
    halo = (br == 0)
    tag = f"{br}{rw}"
    g.vm = VM(); g.lds = []
    if opt.common:
        for c in range(opt.common):
            for it in chunk_dmas(g, c, halo): g.vm.add(it[1])
        if opt.warmcode: g.vm.add("pf"); g.vm.add("pf")
    else:
        for c in range(2):
            for it in chunk_dmas(g, c, halo): g.emit(it)
    g.stamp(1)
    if opt.pf == 3:
        pf3_setup(g)
        for _ in range(opt.pf_init): g.emit(pf3_item())
    if opt.warmcode and not opt.common:
        A("s_getpc_b64 s[68:69]")
        g.label(f"L_wc_{tag}")
        A(f"s_lshl_b32 s{S_T0}, s{S_CW}, 13")
        A(f"v_lshlrev_b32 v2, 7, v{V_L}")
        A(f"v_add_u32 v3, s{S_T0}, v2")
        A(f"v_min_u32 v3, L_end-L_wc_{tag}, v3")
        g.emit(("vm", "pf", [f"global_load_dword v{V_PF0}, v3, s[68:69]"]))
        A(f"v_add_u32 v3, L_phase2-L_wc_{tag}, v2")
        A(f"v_min_u32 v3, L_end-L_wc_{tag}, v3")
        g.emit(("vm", "pf", [f"global_load_dword v{V_PF1}, v3, s[68:69]"]))
    if opt.pf == 4:
        for it in chunk_dmas(g, 1, halo): g.emit(it)
    setup2(g, br, rw)
    if opt.pf in (1, 2): pf_setup(g)
    npf = opt.pf_first
    if opt.pre3 and opt.common < 3:
        for it in chunk_dmas(g, 2, halo): g.emit(it)
        if opt.pre3 >= 2:
            for it in chunk_dmas(g, 3, halo): g.emit(it)
    g.vmwait(("c", 0))
    A("s_barrier")
    g.stamp(2)
    for it in kv_reads(0, halo): g.emit(it)
    dq = []
    if not opt.pre3: dq += chunk_dmas(g, 2, halo)
    if opt.pre3 < 2: dq += chunk_dmas(g, 3, halo)
    pfi = [("vm", "pf", [f"buffer_load_dword v{V_PF0}, v{V_PF0}, {sX}, s{S_PFX} offen{PFPOL}"]),
           ("vm", "pf", [f"buffer_load_dword v{V_PF1}, v{V_PF1}, {sW}, s{S_PFW} offen{PFPOL}"])]
    if opt.pf == 3 and opt.pf_first + opt.pf_init < 8: dq.insert(0, pf3_item())
    if opt.pf == 4 and opt.pf_first + opt.pf_init < 8: dq.insert(opt.pf_pos, pf4_item())
    if opt.pf == 1: dq = pfi + dq
    if opt.pf == 2: dq = dq[:9] + pfi + dq[9:]
    for ks in range(16):
        c = ks >> 1
        mf = kv_mfmas(ks, br, rw)
        ev = opt.dma_every if len(dq) <= 10 else opt.dma_fast
        if ks & 1:
            run_slots(g, mf[:opt.bar_after], [], dma=dq, dma_every=ev, dma_phase=1)
            while dq and (dq[0][1] == "pf" or dq[0][1][1] <= c + 1): g.emit(dq.pop(0))
            g.ldsall()
            g.vmwait(("c", c + 1))
            A("s_barrier")
            g.stamp(3 + c, kv=True)
            rd = kv_reads(ks + 1, halo) if ks < 15 else q_read(0, 2*QE, 0) + q_read(0, 2*QE + 1, 1) + q_read(0, 2*QE + 2, 2)
            nc = c + 4
            if c + 1 == opt.wo_at:
                dq.insert(0, ("vm", "pf", [f"v_lshrrev_b32 v2, 2, v{V_L}", "v_lshlrev_b32 v2, 10, v2", f"v_and_b32 v3, 3, v{V_L}",
                    "v_lshl_add_u32 v2, v3, 7, v2",
                    f"s_lshl_b32 s{S_T0}, s{S_IDX}, 14", f"s_lshl_b32 s{S_T1}, s{S_WV}, 12", f"s_add_u32 s{S_T0}, s{S_T0}, s{S_T1}",
                    f"s_and_b32 s{S_T1}, s{S_XCD}, 1", f"s_lshl_b32 s{S_T1}, s{S_T1}, 9", f"s_add_u32 s{S_T0}, s{S_T0}, s{S_T1}",
                    "s_mov_b64 exec, 0xffff", f"buffer_load_dword v{V_WO}, v2, {sWO}, s{S_T0} offen{PFPOL}", "s_mov_b64 exec, -1"]))
            if c + 1 == opt.wc_at:
                dq.insert(0, ("vm", "pf", ["s_getpc_b64 s[68:69]", f"L_wc_{tag}:", f"v_lshlrev_b32 v2, 7, v{V_L}",
                    f"s_lshl_b32 s{S_T0}, s{S_CW}, 13", f"v_add_u32 v2, s{S_T0}, v2",
                    f"v_add_u32 v3, L_q_{tag}-L_wc_{tag}, v2", f"v_add_u32 v2, {'L_phase2-L_wc_' + tag}-8192, v2",
                    f"s_cmp_eq_u32 s{S_CW}, 0", "s_cselect_b64 vcc, -1, 0", "v_cndmask_b32 v3, v2, v3, vcc",
                    f"v_min_u32 v3, L_end-L_wc_{tag}, v3",
                    f"global_load_dword v{V_PF0}, v3, s[68:69]"]))
            if opt.pf == 3 and npf_left(opt, c): dq.insert(0, pf3_item())
            if nc < 12: dq += chunk_dmas(g, nc, halo)
            if opt.pf == 4 and npf_left(opt, c): dq.insert(min(opt.pf_pos, len(dq)), pf4_item())
            run_slots(g, mf[opt.bar_after:], [rd], cap=opt.cap, dma=dq, dma_every=ev, dma_phase=ev - 1)
            for it in rd: g.emit(it)
        else:
            rd = kv_reads(ks + 1, halo)
            run_slots(g, mf, [rd], cap=opt.cap_even, dma=dq, dma_every=ev, dma_phase=ev - 1)
            for it in rd: g.emit(it)
    g.stamp(3)
    g.label(f"L_q_{tag}")
    S1 = []; P = S1.append
    if br == 0:
        order = [2, 3, 0, 1] if rw == 0 else [0, 1, 2, 3]
        if rw == 1:
            for hh in range(2):
                h = V_HACC + hh*4
                P(f"v_cvt_pk_bf16_f32 v{4+hh*2}, v{h}, v{h+1}"); P(f"v_cvt_pk_bf16_f32 v{5+hh*2}, v{h+2}, v{h+3}")
                P(("lds", "xw", f"ds_write_b64 v{V_XA}, v[{4+hh*2}:{5+hh*2}] offset:{4096 + hh*512}"))
        for Tl in order:
            for hh in range(2):
                k = acc(Tl, hh, 0); v = acc(Tl, hh, 1)
                kp = V_KP + (Tl*2 + hh)*2
                vp = V_VP + ((Tl & 1)*2 + hh)*6 + 2 + (Tl >> 1)*2
                P(f"v_cvt_pk_bf16_f32 v{kp}, v{k}, v{k+1}"); P(f"v_cvt_pk_bf16_f32 v{kp+1}, v{k+2}, v{k+3}")
                P(f"v_cvt_pk_bf16_f32 v{vp}, v{v}, v{v+1}"); P(f"v_cvt_pk_bf16_f32 v{vp+1}, v{v+2}, v{v+3}")
                if rw == 0 and Tl >= 2:
                    p = Tl & 1
                    P(("lds", "xw", f"ds_write_b64 v{V_XA}, v[{kp}:{kp+1}] offset:{(p*2+hh)*1024}"))
                    P(("lds", "xw", f"ds_write_b64 v{V_XA}, v[{vp}:{vp+1}] offset:{(p*2+hh)*1024+512}"))
        if rw == 0:
            for hh in range(2):
                h = V_HACC + hh*4
                P(f"v_cvt_pk_bf16_f32 v{V_KPREV+hh*2}, v{h}, v{h+1}"); P(f"v_cvt_pk_bf16_f32 v{V_KPREV+hh*2+1}, v{h+2}, v{h+3}")
        S1b = []
        for p in range(2):
            for hh in range(2):
                vp = V_VP + (p*2 + hh)*6
                if rw == 0:
                    S1b.append(("lds", "xr", f"ds_read_b64 v[{vp}:{vp+1}], v{V_XA} offset:{4096 + hh*512}"))
                else:
                    kp = V_KPREV + (p*2 + hh)*2
                    S1b.append(("lds", "xr", f"ds_read_b64 v[{kp}:{kp+1}], v{V_XA} offset:{(p*2+hh)*1024}"))
                    S1b.append(("lds", "xr", f"ds_read_b64 v[{vp}:{vp+1}], v{V_XA} offset:{(p*2+hh)*1024+512}"))
    else:
        PK, VV = V_VP, V_VP + 16
        TMP = V_QACC + 16 if QE == 0 else V_KP
        KVR = V_HACC; KVO = V_HF
        oth = 1 - rw
        for hh in (oth, rw):
            regs = [acc(Tl, hh, 0) + r for Tl in range(4) for r in range(4)]
            S1 += phi_list(regs, TMP, opt.pk)
            for Tl in range(4):
                k = acc(Tl, hh, 0); v = acc(Tl, hh, 1)
                P(f"v_cvt_pk_bf16_f32 v{PK+hh*8+Tl*2}, v{k}, v{k+1}"); P(f"v_cvt_pk_bf16_f32 v{PK+hh*8+Tl*2+1}, v{k+2}, v{k+3}")
                P(f"v_cvt_pk_bf16_f32 v{VV+hh*8+Tl*2}, v{v}, v{v+1}"); P(f"v_cvt_pk_bf16_f32 v{VV+hh*8+Tl*2+1}, v{v+2}, v{v+3}")
            R = KVR if hh == rw else KVO
            d = vr(R); z = vr(R + 4)
            P(f"v_mfma_f32_16x16x32_bf16 {d}, {vr(PK+hh*8)}, {vr(VV+hh*8)}, 0")
            P(f"v_mfma_f32_16x16x32_bf16 {z}, {vr(PK+hh*8)}, {vr(V_ONES)}, 0")
            P(f"v_mfma_f32_16x16x32_bf16 {d}, {vr(PK+hh*8+4)}, {vr(VV+hh*8+4)}, {d}")
            P(f"v_mfma_f32_16x16x32_bf16 {z}, {vr(PK+hh*8+4)}, {vr(V_ONES)}, {z}")
            if hh == oth: wr_pos = len(S1) + 12
        S1.insert(wr_pos, ("lds", "xw", f"ds_write_b128 v{V_XA}, {vr(KVO)} offset:{rw*2048}"))
        S1.insert(wr_pos + 1, ("lds", "xw", f"ds_write_b128 v{V_XA}, {vr(KVO+4)} offset:{rw*2048+1024}"))
        S1b = [("lds", "xr", f"ds_read_b128 {vr(V_ACC)}, v{V_XA} offset:{oth*2048}"),
               ("lds", "xr", f"ds_read_b128 {vr(V_ACC+4)}, v{V_XA} offset:{oth*2048+1024}"),
               f"s_add_u32 s{S_TAG}, s{S_EK}, 1", f"s_and_b32 s{S_TAG}, s{S_TAG}, 0x7f", f"s_or_b32 s{S_TAG}, s{S_TAG}, 0x80",
               f"v_mov_b32 v4, s{S_TAG}", "v_mov_b32 v5, 0xff",
               f"v_lshrrev_b32 v3, 4, v{V_L}", "v_lshlrev_b32 v3, 4, v3",
               ("need", "xr")]
        for r in range(0, 8, 2): S1b.append(f"v_pk_add_f32 v[{KVR+r}:{KVR+r+1}], v[{KVR+r}:{KVR+r+1}], v[{V_ACC+r}:{V_ACC+r+1}]")
        for r in range(0, 8, opt.tagstep): S1b.append(f"v_bfi_b32 v{KVR+r}, v5, v4, v{KVR+r}")
        S1b.append(("vm", "kvst", [f"buffer_store_dwordx4 {vr(KVR)}, v{V_L16}, {sWS}, s{S_KVS} offen sc1"]))
        S1b.append(("vm", "kvst", ["s_mov_b32 s68, 0x00010001", "s_mov_b32 s69, 0x00010001", "s_mov_b64 exec, s[68:69]",
                    f"buffer_store_dwordx4 {vr(KVR+4)}, v3, {sWS}, s{S_ZS} offen sc1", "s_mov_b64 exec, -1"]))
        S1b.append(("stamp", 4))
    OUTR = V_ACC + 48
    def attention(hh):
        o_ = []; P = o_.append
        U = lambda u: V_ACC + 12*u
        QP = V_HACC
        for u in range(4):
            q = V_QACC + (hh*4 + u)*4
            P(f"v_cvt_pk_bf16_f32 v{QP+2*u}, v{q}, v{q+1}"); P(f"v_cvt_pk_bf16_f32 v{QP+2*u+1}, v{q+2}, v{q+3}")
        P(("need", "xr"))
        for u in range(4):
            tl, p = u >> 1, u & 1
            ko = V_KP + (u*2 + hh)*2
            if tl == 1: kpv, mp = V_KP + ((u-2)*2 + hh)*2, V_MPREV
            elif rw == 1: kpv, mp = V_KPREV + (p*2 + hh)*2, V_MPREV
            else: kpv, mp = V_KPREV + hh*2, V_MHALO + 4*p
            P(f"v_mfma_f32_16x16x16_bf16 {vr(U(u))}, v[{ko}:{ko+1}], v[{QP+2*u}:{QP+2*u+1}], {vr(V_MOWN)}")
            P(f"v_mfma_f32_16x16x16_bf16 {vr(U(u)+4)}, v[{kpv}:{kpv+1}], v[{QP+2*u}:{QP+2*u+1}], {vr(mp)}")
        for u in range(4):
            for r in range(4): P(f"v_max_f32 v{U(u)+r}, v{U(u)+r}, v{U(u)+4+r}")
        for u in range(4): P(f"v_max3_f32 v{U(u)+4}, v{U(u)}, v{U(u)+1}, v{U(u)+2}")
        for u in range(4): P(f"v_max_f32 v{U(u)+4}, v{U(u)+4}, v{U(u)+3}")
        for sw in ("v_permlane32_swap_b32", "v_permlane16_swap_b32"):
            for u in range(4): P(f"v_mov_b32 v{U(u)+5}, v{U(u)+4}")
            for u in range(4): P(f"{sw} v{U(u)+4}, v{U(u)+5}")
            for u in range(4): P(f"v_max_f32 v{U(u)+4}, v{U(u)+4}, v{U(u)+5}")
        for u in range(4): P(f"v_mul_f32 v{U(u)+4}, s{S_NC}, v{U(u)+4}")
        pk = opt.pk and (hh == 1 or opt.pk > 1)
        for u in range(4):
            if pk:
                for r in (0, 2): P(f"v_pk_fma_f32 v[{U(u)+r}:{U(u)+r+1}], v[{U(u)+r}:{U(u)+r+1}], s[96:97], v[{U(u)+4}:{U(u)+5}] op_sel_hi:[1,1,0]")
            else:
                for r in range(4): P(f"v_fma_f32 v{U(u)+r}, v{U(u)+r}, s{S_C}, v{U(u)+4}")
        for u in range(4):
            for r in range(4): P(f"v_exp_f32 v{U(u)+r}, v{U(u)+r}")
        for u in range(4):
            P(f"v_cvt_pk_bf16_f32 v{U(u)+4}, v{U(u)}, v{U(u)+1}"); P(f"v_cvt_pk_bf16_f32 v{U(u)+5}, v{U(u)+2}, v{U(u)+3}")
        for u in range(4):
            P(f"v_and_b32 v{U(u)+10}, v{U(u)+4}, v{V_BM}"); P(f"v_and_b32 v{U(u)+11}, v{U(u)+5}, v{V_BM+1}")
            P(f"v_xor_b32 v{U(u)+8}, v{U(u)+4}, v{U(u)+10}"); P(f"v_xor_b32 v{U(u)+9}, v{U(u)+5}, v{U(u)+11}")
        for u in range(4):
            q = V_QACC + (hh*4 + u)*4
            P(f"v_mfma_f32_16x16x16_bf16 {vr(q)}, v[{V_ONES}:{V_ONES+1}], v[{U(u)+4}:{U(u)+5}], 0")
        for u in range(4):
            tl, p = u >> 1, u & 1
            vp = V_VP + (p*2 + hh)*6 + 2*tl
            P(f"v_mfma_f32_16x16x32_bf16 {vr(U(u))}, {vr(vp)}, {vr(U(u)+8)}, 0")
        for u in range(4):
            q = V_QACC + (hh*4 + u)*4
            P(f"v_rcp_f32 v{q}, v{q}")
        for u in range(4):
            q = V_QACC + (hh*4 + u)*4
            if pk:
                for r in (0, 2): P(f"v_pk_mul_f32 v[{U(u)+r}:{U(u)+r+1}], v[{U(u)+r}:{U(u)+r+1}], v[{q}:{q+1}] op_sel_hi:[1,0]")
            else:
                for r in range(4): P(f"v_mul_f32 v{U(u)+r}, v{U(u)+r}, v{q}")
        for u in range(4):
            o = OUTR + u*4 + hh*2
            P(f"v_cvt_pk_bf16_f32 v{o}, v{U(u)}, v{U(u)+1}"); P(f"v_cvt_pk_bf16_f32 v{o+1}, v{U(u)+2}, v{U(u)+3}")
        return o_
    PQ = V_KP
    def phi_q(hh, tmp):
        o_ = phi_list([V_QACC + hh*16 + i for i in range(16)], tmp, opt.pk and (hh == 1 or opt.pk > 1))
        for Tl in range(4):
            q = V_QACC + (hh*4 + Tl)*4
            o_.append(f"v_cvt_pk_bf16_f32 v{PQ+hh*8+Tl*2}, v{q}, v{q+1}"); o_.append(f"v_cvt_pk_bf16_f32 v{PQ+hh*8+Tl*2+1}, v{q+2}, v{q+3}")
        return o_
    PB = V_ACC
    def gather_items():
        it = []
        for j in range(16):
            pre = [f"s_add_u32 s{S_T2}, s{S_T0}, {j*1024}"] if j % 4 == 0 else []
            it.append(("vm", ("gat", j), pre + [f"buffer_load_dwordx4 {vr(PB+4*j)}, v{V_L16}, {sWS}, s{S_T2} offen offset:{(j%4)*1024} sc1"]))
        it.append(("vm", ("gat", 16), [f"buffer_load_dwordx4 {vr(V_HACC)}, v3, {sWS}, s{S_T1} offen sc1"]))
        return it
    gat_setup = [f"s_lshl_b32 s{S_T0}, s{S_HEAD}, 14", f"s_add_u32 s{S_T0}, s{S_T0}, {WS_KV}",
                 f"s_lshl_b32 s{S_T1}, s{S_HEAD}, 10", f"s_add_u32 s{S_T1}, s{S_T1}, {WS_Z}",
                 f"v_and_b32 v3, 15, v{V_L}", "v_lshlrev_b32 v3, 6, v3",
                 f"v_lshrrev_b32 v4, 4, v{V_L}", "v_lshl_add_u32 v3, v4, 4, v3"]
    S2 = attention(0) if br == 0 else phi_q(0, V_VP)

    K0 = 2*QE
    NH = 16 - K0
    seq = [(hh, ks) for hh in range(2) for ks in range(K0, 16)]
    PRE = 3
    B9 = 8 - PRE
    side = list(S1)
    sync_done = False
    capA = -(-sum(cost(x) for x in S1) // (4 * B9)) + 1
    gq = []
    for n, (hh, ks) in enumerate(seq):
        slot = n % 8
        if n == NH:
            for it in side: g.emit(it)
            side = list(S2)
        if n == B9:
            if br == 0:
                for it in side: g.emit(it)
                side = list(S1b)
            while dq and dq[0][1][1] <= 9: g.emit(dq.pop(0))
            g.ldsall()
            g.vmwait(("c", 9))
            A("s_barrier")
        if br == 1 and not sync_done and ((not side and (n > B9 or opt.early_sync)) or n == NH - 1):
            for it in side: g.emit(it)
            g.ldsall()
            A("s_barrier")
            side = list(S1b); sync_done = True
        if br == 1 and n == opt.gat_at:
            for it in side: g.emit(it)
            side = []
            for it in gat_setup: g.emit(it)
            gq = gather_items()
        rd = q_read(*seq[n + PRE], (n + PRE) % 8) if n + PRE < len(seq) else []
        mf = []
        for Tl in range(4):
            d = vr(V_QACC + (hh*4 + Tl)*4)
            c = "0" if ks == 0 else d
            mf.append((f"v_mfma_f32_16x16x32_bf16 {d}, {vr(V_WF + slot*4)}, {vr(xf(Tl, ks), 4, 'a')}, {c}", [("q", hh, ks)]))
        cap = (capA if br == 0 else opt.b_cap) if n < NH else opt.cap2
        if gq: run_slots(g, mf, [rd, side], cap=cap, dma=gq, dma_every=opt.gat_every, dma_phase=0)
        else: run_slots(g, mf, [rd, side], cap=cap, dma=dq, dma_every=4, dma_phase=3)
        for it in rd: g.emit(it)
    for it in side: g.emit(it)
    for it in dq: g.emit(it)
    for it in gq: g.emit(it)
    gq = []
    g.stamp(5)
    if opt.d2late:
        d2 = []
    else:
        g.ldsall()
        g.vmwait(("c", 11))
        A("s_barrier")
        d2 = chunk_dmas(g, 12, False) + chunk_dmas(g, 13, False)
        if opt.d2defer:
            d2_tail = d2[16 - opt.d2defer:]; d2 = d2[:16 - opt.d2defer]
    def with_dma(items, every):
        k = 0
        for it in items:
            g.emit(it); k += 1
            if k % every == 0 and d2: g.emit(d2.pop(0))
    def spin_guard(lbl_out):
        A(f"s_sub_u32 s{S_SPIN}, s{S_SPIN}, 1")
        A(f"s_cbranch_scc1 {lbl_out}")
    if br == 0:
        with_dma(attention(1), opt.d2every)
        for it in d2: g.emit(it)
    else:
        if opt.gat_at >= 2*NH:
            for it in gat_setup: g.emit(it)
            for it in gather_items(): g.emit(it)
        A(f"v_mov_b32 v6, s{S_TAG}")
        with_dma(phi_q(1, V_WF), opt.d2every)
        g.stamp(6)
        SUM = V_WF + 16
        def chk_sum(first):
            for j in range(16):
                if first: g.vmwait(("gat", j))
                b = PB + 4*j
                for k_, r in enumerate(range(0, 4, opt.tagstep)):
                    a_ = "0" if (j == 0 and k_ < 2) else f"v{4+(k_&1)}"
                    A(f"v_msad_u8 v{4+(k_&1)}, v{b+r}, v6, {a_}")
                for r in range(0, 4, 2):
                    if j == 0: A(f"v_pk_add_f32 v[{SUM+r}:{SUM+r+1}], v[{b+r}:{b+r+1}], v[{b+4+r}:{b+5+r}]") if False else None
                    if j == 1: A(f"v_pk_add_f32 v[{SUM+r}:{SUM+r+1}], v[{PB+r}:{PB+r+1}], v[{b+r}:{b+r+1}]")
                    elif j > 1: A(f"v_pk_add_f32 v[{SUM+r}:{SUM+r+1}], v[{SUM+r}:{SUM+r+1}], v[{b+r}:{b+r+1}]")
                if first and d2 and j % opt.d2j == opt.d2j - 1: g.emit(d2.pop(0))
            if first: g.vmwait(("gat", 16))
            for k_, r in enumerate(range(0, 4, opt.tagstep)): A(f"v_msad_u8 v{4+(k_&1)}, v{V_HACC+r}, v6, v{4+(k_&1)}")
            A("v_or_b32 v4, v4, v5")
            A("v_cmp_ne_u32 vcc, 0, v4")
        chk_sum(True)
        for it in d2: g.emit(it)
        A(f"s_cbranch_vccz L_kvok_{tag}")
        g.label(f"L_kvretry_{tag}")
        spin_guard(f"L_kvok_{tag}")
        A(f"s_sleep {opt.kv_sleep}")
        sv = g.vm; g.vm = VM()
        for it in gather_items(): g.emit(it)
        g.vm = sv
        A("s_waitcnt vmcnt(0)")
        chk_sum(False)
        A(f"s_cbranch_vccnz L_kvretry_{tag}")
        g.label(f"L_kvok_{tag}")
        g.stamp(7)
        for rot in (8, 4, 2, 1):
            for r in range(4):
                A(f"v_add_f32_dpp v{V_HACC+r}, v{V_HACC+r}, v{V_HACC+r} row_ror:{rot} row_mask:0xf bank_mask:0xf")
        KZ = V_WF
        A(f"v_cvt_pk_bf16_f32 v{KZ+rw*4}, v{SUM}, v{SUM+1}"); A(f"v_cvt_pk_bf16_f32 v{KZ+rw*4+1}, v{SUM+2}, v{SUM+3}")
        A(f"v_cvt_pk_bf16_f32 v{KZ+rw*4+2}, v{V_HACC}, v{V_HACC+1}"); A(f"v_cvt_pk_bf16_f32 v{KZ+rw*4+3}, v{V_HACC+2}, v{V_HACC+3}")
        A(f"ds_write_b128 v{V_XA}, {vr(KZ+rw*4)} offset:{4096 + rw*1024}")
        NUM = V_ACC; DEN = V_QACC
        def omf(hh):
            for Tl in range(4):
                u = hh*4 + Tl; pq = PQ + hh*8 + Tl*2
                A(f"v_mfma_f32_16x16x16_bf16 {vr(DEN+4*u)}, v[{KZ+hh*4+2}:{KZ+hh*4+3}], v[{pq}:{pq+1}], 0")
                A(f"v_mfma_f32_16x16x16_bf16 {vr(NUM+4*u)}, v[{KZ+hh*4}:{KZ+hh*4+1}], v[{pq}:{pq+1}], 0")
        def ofin(us):
            for u in us: A(f"v_add_f32 v{DEN+4*u}, s{S_EPS}, v{DEN+4*u}")
            for u in us: A(f"v_rcp_f32 v{DEN+4*u}, v{DEN+4*u}")
            for u in us:
                for r in (0, 2): A(f"v_pk_mul_f32 v[{NUM+4*u+r}:{NUM+4*u+r+1}], v[{NUM+4*u+r}:{NUM+4*u+r+1}], v[{DEN+4*u}:{DEN+4*u+1}] op_sel_hi:[1,0]")
            for u in us:
                hh, Tl = u >> 2, u & 3
                o = OUTR + Tl*4 + hh*2
                A(f"v_cvt_pk_bf16_f32 v{o}, v{NUM+4*u}, v{NUM+4*u+1}"); A(f"v_cvt_pk_bf16_f32 v{o+1}, v{NUM+4*u+2}, v{NUM+4*u+3}")
        omf(rw)
        A("s_waitcnt lgkmcnt(0)")
        A("s_barrier")
        A(f"ds_read_b128 {vr(KZ+(1-rw)*4)}, v{V_XA} offset:{4096 + (1-rw)*1024}")
        ofin([rw*4 + i for i in range(4)])
        A("s_waitcnt lgkmcnt(0)")
        omf(1 - rw)
        if rw == 0:
            A(f"s_or_b32 s{S_T2}, s{S_RB}, s{S_CW}")
            A(f"s_cmp_lg_u32 s{S_T2}, 0")
            A(f"s_cbranch_scc1 L_nobk_{tag}")
            A(f"s_add_u32 s{S_T2}, s{S_EK}, 1")
            A(f"v_mov_b32 v4, s{S_T2}"); A("v_mov_b32 v5, 0")
            A("s_mov_b64 exec, 1")
            A(f"buffer_store_dword v4, v5, {sWS}, s{S_EKA} offen sc1")
            A("s_mov_b64 exec, -1")
            g.label(f"L_nobk_{tag}")
        ofin([(1-rw)*4 + i for i in range(4)])
    for Tl in range(4):
        A(f"s_add_u32 s{S_T2}, s{S_OST}, {Tl*16384}")
        A(f"buffer_store_dwordx4 {vr(OUTR+4*Tl)}, v{V_L16}, {sWS}, s{S_T2} offen sc1")
    g.stamp(8)
    if opt.d2defer and not opt.d2late:
        for it in d2_tail: g.emit(it)
    A("s_branch L_phase2")

def phase2(g):
    A = g.A
    opt = g.opt
    g.label("L_phase2")
    g.lds = []; g.vm = VM()
    OF = 64; ACC = 128; VR0 = 20
    l = f"v{V_L}"
    A(f"v_and_b32 v2, 15, {l}"); A(f"v_lshrrev_b32 v3, 4, {l}")
    A("v_lshrrev_b32 v4, 2, v2"); A("v_and_b32 v5, 3, v2")
    A("v_lshl_add_u32 v6, v3, 2, v4")
    A("v_and_b32 v7, 7, v6")
    A("v_lshlrev_b32 v6, 8, v6"); A("v_lshl_add_u32 v6, v5, 3, v6"); A("v_lshl_add_u32 v6, v7, 5, v6")
    for c in range(8):
        A(f"v_xor_b32 v{VR0+2*c}, {c*32}, v6")
        A(f"v_add_u32 v{VR0+2*c+1}, 65536, v{VR0+2*c}")
    NV = opt.p2_nv
    def freg(hp, c):
        if hp < 8: return ("a", (hp*8 + c)*4)
        if hp < 8 + NV: return ("v", 160 + ((hp - 8)*8 + c)*4)
        return ("a", ((hp - 8 - NV)*8 + c)*4)
    def rd(hp, c):
        out = []
        k_, a = freg(hp, c)
        for t in range(2):
            const = WOB[hp >> 2] + (hp & 3)*8192 + t*4096
            out.append(("lds", ("o", hp, c), f"ds_read_b64_tr_b16 {k_}[{a+2*t}:{a+2*t+1}], v{VR0 + 2*c + (const >> 16)} offset:{const & 0xffff}"))
        return out
    def preload(hps):
        for hp in hps:
            for c in range(8):
                for it in rd(hp, c): g.emit(it)
                if len(g.lds) >= 12: g.need(g.lds[3])
    A(f"s_add_u32 s{S_T0}, s{S_EO}, 1")
    A(f"v_mov_b32 v6, s{S_T0}"); A(f"v_mov_b32 v7, s{S_EO+1}")
    A("v_mov_b32 v5, 0")
    A("v_lshlrev_b32 v8, 3, v2")
    A("v_lshlrev_b32 v2, 12, v2")
    A("v_and_b32 v4, 1, v3"); A("v_lshl_add_u32 v2, v4, 5, v2")
    A("v_lshrrev_b32 v4, 1, v3"); A("v_lshl_add_u32 v2, v4, 4, v2")
    A(f"s_lshl_b32 s{S_XB}, s{S_RB}, 18")
    A(rh_(g, S_T1)); A(f"s_lshl_b32 s{S_T1}, s{S_T1}, 17"); A(f"s_add_u32 s{S_XB}, s{S_XB}, s{S_T1}")
    A(f"s_lshl_b32 s{S_T1}, s{S_RW}, 16"); A(f"s_add_u32 s{S_XB}, s{S_XB}, s{S_T1}")
    A(f"s_lshl_b32 s{S_T1}, s{S_CW}, 11"); A(f"s_add_u32 s{S_XB}, s{S_XB}, s{S_T1}")
    A(f"s_lshl_b32 s{S_T1}, s{S_BR}, 10"); A(f"s_add_u32 s{S_XB}, s{S_XB}, s{S_T1}")
    A(cs_(g, S_T1)); A(f"s_lshl_b32 s{S_T1}, s{S_T1}, 8"); A(f"s_add_u32 s{S_XB}, s{S_XB}, s{S_T1}")
    if opt.d2late:
        A("s_waitcnt vmcnt(4)")
        A("s_barrier")
        d2 = chunk_dmas(g, 12, False) + chunk_dmas(g, 13, False)
        preload(range(opt.p2_pre1))
        A("s_waitcnt vmcnt(0)")
        A("s_mov_b64 exec, 1")
        A(f"buffer_store_dwordx2 v[6:7], v5, {sWS}, s{S_FLO} offen sc1")
        A("s_mov_b64 exec, -1")
        g.stamp(9)
        for hp in range(opt.p2_pre1, 8):
            for c in range(8):
                for it in rd(hp, c): g.emit(it)
                if d2: g.emit(d2.pop(0))
                if len(g.lds) >= 12: g.need(g.lds[3])
        for it in d2: g.emit(it)
        A("s_waitcnt vmcnt(0)")
        A("s_barrier")
        preload(range(8, 8 + NV))
        g.ldsall()
    else:
        preload(range(opt.p2_pre1))
        A(f"s_waitcnt vmcnt({opt.d2defer})")
        A("s_mov_b64 exec, 1")
        A(f"buffer_store_dwordx2 v[6:7], v5, {sWS}, s{S_FLO} offen sc1")
        A("s_mov_b64 exec, -1")
        g.stamp(9)
        preload(range(opt.p2_pre1, 8))
        A("s_waitcnt vmcnt(1)")
        A("s_barrier")
        preload(range(8, 8 + NV))
        g.ldsall()
    A(f"s_cmp_lg_u32 s{S_WV}, 0")
    A("s_cbranch_scc1 L_ook")
    if opt.poll0: A(f"s_sleep {opt.poll0}")
    A("s_branch L_opoll1")
    g.label("L_opoll")
    A(f"s_sub_u32 s{S_SPIN}, s{S_SPIN}, 1")
    A("s_cbranch_scc1 L_ook")
    A(f"s_sleep {opt.poll1}")
    g.label("L_opoll1")
    A(f"buffer_load_dwordx2 v[10:11], v8, {sWS}, s{S_FLN} offen sc1")
    A("s_waitcnt vmcnt(0)")
    A("v_cmp_ne_u64 vcc, v[10:11], v[6:7]")
    A("s_cbranch_vccnz L_opoll")
    g.label("L_ook")
    A("s_waitcnt vmcnt(0)")
    g.vm = VM()
    A("s_barrier")
    g.stamp(10)
    lq = []
    for hp in range(16):
        pre = [f"s_add_u32 s{S_T2}, s{S_OLD}, {hp*1024}"] if hp % 4 == 0 else []
        lq.append(("vm", ("of", hp), pre + [f"buffer_load_dwordx4 {vr(OF + 4*hp)}, v{V_L16}, {sWS}, s{S_T2} offen offset:{(hp % 4)*1024} sc1"]))
    for it in lq[:opt.p2_first]: g.emit(it)
    lq = lq[opt.p2_first:]
    rq = []
    for hp in range(16):
        while lq and lq[0][1][1] <= hp: g.emit(lq.pop(0))
        while rq and rq[0][1][1] <= hp: g.emit(rq.pop(0))
        g.vmwait(("of", hp))
        if hp % 4 == 0: g.stamp(3 + hp//4, kv="p2")
        mf = []
        for c in range(8):
            d = vr(ACC + 4*c)
            k_, a = freg(hp, c)
            mf.append((f"v_mfma_f32_16x16x32_bf16 {d}, {vr(a, 4, k_)}, {vr(OF + 4*hp)}, {'0' if hp == 0 else d}", [("o", hp, c)]))
        if hp >= 1 and hp - 1 + 8 + NV < 16:
            for c in range(8): rq += rd(hp - 1 + 8 + NV, c)
        run_slots(g, mf, [rq], cap=opt.p2_cap, dma=lq, dma_every=opt.p2_every, dma_phase=0)
    g.stamp(7, kv="p2")
    A(f"s_or_b32 s{S_T2}, s{S_HG}, s{S_WV}")
    A(f"s_cmp_lg_u32 s{S_T2}, 0")
    A("s_cbranch_scc1 L_nobo")
    A("s_mov_b64 exec, 1")
    A(f"buffer_store_dword v6, v5, {sWS}, s{S_EOA} offen sc1")
    A("s_mov_b64 exec, -1")
    g.label("L_nobo")
    for cp in range(4):
        o = 64 + cp*4
        for h in range(2):
            a = ACC + (2*cp + h)*4
            A(f"v_cvt_pk_bf16_f32 v{o+2*h}, v{a}, v{a+1}"); A(f"v_cvt_pk_bf16_f32 v{o+2*h+1}, v{a+2}, v{a+3}")
    for cp in range(4):
        o = 64 + cp*4
        A(f"v_permlane16_swap_b32 v{o}, v{o+2}")
        A(f"v_permlane16_swap_b32 v{o+1}, v{o+3}")
        A(f"buffer_store_dwordx4 {vr(o)}, v2, {sOUT}, s{S_XB} offen offset:{cp*64}{opt.outpol}")
    if opt.stamps:
        A("s_waitcnt vmcnt(0)")
        g.stamp(11)
        A("s_waitcnt lgkmcnt(0)")
        A(f"s_cmp_lg_u32 s{S_WV}, {opt.stamp_wave}")
        A("s_cbranch_scc1 L_end")
        if opt.dbgstamps:
            A("s_load_dwordx2 s[16:17], s[0:1], 56")
            A("v_mov_b32 v100, 0")
            for j in range(12):
                if opt.dbgbr >= 0 or j not in (4, 6, 7):
                    A(f"v_writelane_b32 v100, s{72+2*j}, {j}")
            for j, src in ((12, 0), (13, 2), (14, 3), (15, 11)):
                A(f"s_not_b32 s{S_T0}, s{72+2*src}")
                A(f"v_writelane_b32 v100, s{S_T0}, {j}")
            A("s_waitcnt lgkmcnt(0)")
            A("s_mov_b32 s18, 256"); A("s_mov_b32 s19, 0x20000")
            if opt.dbgbr >= 0:
                A(f"s_cmp_lg_u32 s{S_BR}, {opt.dbgbr}")
                A("s_cbranch_scc1 L_end")
            A(f"v_lshlrev_b32 v3, 2, v{V_L}")
            A("s_mov_b64 exec, 0xffff")
            A("buffer_atomic_umax v100, v3, s[16:19], 0 offen sc1")
            A("s_branch L_end")
        for j in range(24): A(f"v_mov_b32 v{100+j}, s{72+j}")
        A(f"s_mul_i32 s{S_T0}, s2, 96")
        A(f"s_add_u32 s{S_T0}, s{S_T0}, {WS_STAMP}")
        A("v_mov_b32 v3, 0")
        A("s_mov_b64 exec, 1")
        for j in range(6):
            A(f"buffer_store_dwordx4 v[{100+4*j}:{103+4*j}], v3, {sWS}, s{S_T0} offen offset:{16*j}")

def main():
    ap = argparse.ArgumentParser()
    ap.add_argument("-o", default="out.s")
    ap.add_argument("--stamps", type=int, default=0)
    ap.add_argument("--kvstamps", type=int, default=0)
    ap.add_argument("--p2stamps", type=int, default=0)
    ap.add_argument("--dbgstamps", type=int, default=0)
    ap.add_argument("--dbgbr", type=int, default=-1)
    ap.add_argument("--bfirst", type=int, default=0)
    ap.add_argument("--stamp-wave", type=int, default=0)
    ap.add_argument("--bar-after", type=int, default=4)
    ap.add_argument("--nt", type=int, default=0)
    ap.add_argument("--pfnt", type=int, default=0)
    ap.add_argument("--pf", type=int, default=0)
    ap.add_argument("--pre3", type=int, default=0)
    ap.add_argument("--pf-first", type=int, default=2)
    ap.add_argument("--pf-pos", type=int, default=0)
    ap.add_argument("--pf-init", type=int, default=2)
    ap.add_argument("--warmcode", type=int, default=0)
    ap.add_argument("--warmoff", type=int, default=0)
    ap.add_argument("--dma-every", type=int, default=4)
    ap.add_argument("--dma-fast", type=int, default=2)
    ap.add_argument("--cap", type=int, default=2)
    ap.add_argument("--cap-even", type=int, default=1)
    ap.add_argument("--b-cap", type=int, default=5)
    ap.add_argument("--cap2", type=int, default=3)
    ap.add_argument("--gat-at", type=int, default=27)
    ap.add_argument("--gat-every", type=int, default=1)
    ap.add_argument("--kv-sleep", type=int, default=4)
    ap.add_argument("--poll0", type=int, default=8)
    ap.add_argument("--poll1", type=int, default=6)
    ap.add_argument("--outpol", default="")
    ap.add_argument("--p2-first", type=int, default=6)
    ap.add_argument("--p2-every", type=int, default=4)
    ap.add_argument("--early-sync", type=int, default=1)
    ap.add_argument("--rot", type=int, default=7)
    ap.add_argument("--d2late", type=int, default=0)
    ap.add_argument("--qearly", type=int, default=0)
    ap.add_argument("--cmap", type=int, default=1)
    ap.add_argument("--d2defer", type=int, default=0)
    ap.add_argument("--d2every", type=int, default=9)
    ap.add_argument("--d2j", type=int, default=2)
    ap.add_argument("--common", type=int, default=2)
    ap.add_argument("--pk", type=int, default=1)
    ap.add_argument("--tagstep", type=int, default=2)
    ap.add_argument("--p2-nv", type=int, default=3)
    ap.add_argument("--p2-pre1", type=int, default=6)
    ap.add_argument("--p2-cap", type=int, default=1)
    ap.add_argument("--wo-at", type=int, default=4)
    ap.add_argument("--wc-at", type=int, default=0)
    opt = ap.parse_args()
    if opt.outpol: opt.outpol = " " + opt.outpol.replace(",", " ")
    g = G(opt)
    global QE
    QE = opt.qearly
    global PFPOL
    PFPOL = " nt" if opt.pfnt else ""
    K = NAME + "_kernel"
    head = ["; generated by gen/gen8.py  " + " ".join(sys.argv[1:]),
            "; @launch grid=(256,1,1) block=(256,1,1) lds=163840",
            '.amdgcn_target "amdgcn-amd-amdhsa--gfx950"', ".text",
            f".globl {K}", ".p2align 8", f".type {K},@function", f"{K}:"]
    A = g.A
    g.stamp(0)
    decode(g)
    if opt.common:
        for c in range(opt.common):
            items = chunk_dmas(g, c, True)
            for it in items[:-1]:
                for x_ in it[2]: A(x_)
            A(f"s_cmp_lg_u32 s{S_BR}, 0"); A(f"s_cbranch_scc1 L_nohalo{c}")
            for x_ in items[-1][2]: A(x_)
            g.label(f"L_nohalo{c}")
        if opt.warmcode:
            A("s_getpc_b64 s[68:69]"); g.label("L_wc")
            A(f"s_lshl_b32 s{S_T0}, s{S_BR}, 1"); A(f"s_add_u32 s{S_T0}, s{S_T0}, s{S_RW}")
            A(f"s_mov_b32 s{S_T1}, L_path0-L_wc")
            for v in (1, 2, 3):
                A(f"s_cmp_eq_u32 s{S_T0}, {v}"); A(f"s_cselect_b32 s{S_T1}, L_path{v}-L_wc, s{S_T1}")
            A(f"s_lshl_b32 s{S_T0}, s{S_CW}, 13"); A(f"s_add_u32 s{S_T1}, s{S_T1}, s{S_T0}")
            A(f"v_lshlrev_b32 v2, 7, v{V_L}"); A(f"v_add_u32 v3, s{S_T1}, v2"); A("v_min_u32 v3, L_end-L_wc, v3")
            A(f"global_load_dword v{V_PF0}, v3, s[68:69]")
            A("v_add_u32 v3, L_phase2-L_wc, v2"); A("v_min_u32 v3, L_end-L_wc, v3")
            A(f"global_load_dword v{V_PF1}, v3, s[68:69]")
    A(f"s_lshl_b32 s{S_T0}, s{S_BR}, 1")
    A(f"s_add_u32 s{S_T0}, s{S_T0}, s{S_RW}")
    for v in (1, 2, 3):
        A(f"s_cmp_eq_u32 s{S_T0}, {v}")
        A(f"s_cbranch_scc1 L_path{v}")
    for v in range(4):
        g.label(f"L_path{v}")
        phase1_path(g, v >> 1, v & 1)
    phase2(g)
    g.label("L_end")
    A("s_endpgm")
    body, n = fix_hazards(g.L)
    tail = ['.section .rodata,"a"', ".p2align 6", f".amdhsa_kernel {K}", "  .amdhsa_next_free_vgpr 512", "  .amdhsa_next_free_sgpr 102",
            "  .amdhsa_accum_offset 256", "  .amdhsa_group_segment_fixed_size 0", "  .amdhsa_kernarg_size 72",
            "  .amdhsa_user_sgpr_count 2", "  .amdhsa_user_sgpr_kernarg_segment_ptr 1",
            "  .amdhsa_system_sgpr_workgroup_id_x 1", ".end_amdhsa_kernel"]
    open(opt.o, "w").write("\n".join(head + body + tail) + "\n")
    print(f"wrote {opt.o}: {len(body)} lines, {n} nops inserted")

main()
```

```python
import sys, argparse
from asmlib import fix_hazards, VM

NAME = "concat_heads__sliding_local_dilated__linear_attn_block__prompt"
STAGE = 34816
WOFF = 18432
XCH = 4 * STAGE
WS_KV = 0x400000
WS_Z = 0x480000
WS_EO = 0x500000
WS_EK = 0x501000
WS_FL = 0x502000
WS_STAMP = 0x8000000
NEG = 0xF149F2CA
LOG2E = 0x3FB8AA3B
CSC = 0x3EB8AA3B
NCSC = 0xBEB8AA3B
EPS = 0x358637BD
SPIN = 300000

sX, sW, sWS, sWO, sOUT = "s[24:27]", "s[28:31]", "s[32:35]", "s[40:43]", "s[44:47]"
S_BR, S_RB, S_HG, S_WV, S_RW, S_CW = 48, 49, 50, 51, 52, 53
S_XB, S_HB, S_WB, S_LW, S_T0, S_T1, S_T2, S_C, S_NC, S_L2E, S_EPS, S_WOB, S_LWH = 54, 55, 56, 57, 58, 59, 60, 61, 62, 63, 64, 65, 67
S_HEAD, S_SPIN = 70, 71
S_WB1 = 66
S_OST, S_KVS, S_ZS, S_LWO, S_OLD, S_IDX, S_XCD = 4, 5, 6, 7, 8, 23, 22
S_PFX, S_PFW, S_FLN, S_FLO, S_EOA, S_EKA, S_TAG = 9, 10, 11, 12, 13, 14, 15
S_EO, S_EK = 36, 38
S_ROT, S_RC = 16, 17
V_L = 1
V_XD = 10
V_WD = 14
V_XH, V_WO = 18, 19
V_XR = 20
V_HR = 26
V_WR = 32
V_OR = 38
V_L16 = 46
V_L8 = 47
V_MOWN, V_MPREV, V_MHALO, V_BM, V_ONES = 48, 52, 56, 64, 66
V_PF0, V_PF1 = 70, 71
V_ACC = 72
V_HACC = 136
V_WF = 144
V_HF = 176
V_QACC = 184
V_VP = 216
V_KP = 240
V_KPREV = 176
V_XA = 9
V_QF = 216
QE = 0
def wq_base(cq):
    if cq < QE: return None
    r = cq - QE
    st = ((8 + (r >> 2)) % 4) * STAGE
    return st + ((r & 3) >> 1)*16384 + (r & 1)*1024
PFPOL = ""
V_WO4 = [12, 13, 16, 17]
WOB = [67584, 100352, 0, 32768]

def vr(b, n=4, k="v"): return f"{k}[{b}:{b+n-1}]"
def ldsaddr(base_reg, const):
    return f"v{base_reg + (const >> 16)}", const & 0xFFFF

class G:
    def __init__(self, opt):
        self.L = []; self.opt = opt; self.lds = []; self.vm = VM()
    def A(self, s):
        if s.endswith(":"): self.L.append(s)
        else: self.L.append("    " + s)
    def label(self, s): self.L.append(s + ":")
    def stamp(self, i, kv=False):
        o = self.opt
        if not o.stamps: return
        if o.kvstamps and i >= 3 and not kv and i != 11: return
        if kv is True and not o.kvstamps: return
        if o.p2stamps and 3 <= i <= 7 and kv != "p2": return
        if kv == "p2" and not o.p2stamps: return
        self.A(f"s_memrealtime s[{72+2*i}:{73+2*i}]")
    def emit(self, it):
        if isinstance(it, str): self.A(it)
        elif isinstance(it, list):
            for s in it: self.emit(s)
        elif it[0] == "lds":
            self.lds.append(it[1]); self.A(it[2])
        elif it[0] == "vm":
            self.vm.add(it[1])
            for s in it[2]: self.A(s)
        elif it[0] == "need": self.need(it[1])
        elif it[0] == "ldsall": self.ldsall()
        elif it[0] == "stamp": self.stamp(it[1])
        else: raise ValueError(it)
    def need(self, tag):
        idx = max((i for i, t in enumerate(self.lds) if t == tag), default=None)
        if idx is None: return
        n = len(self.lds) - 1 - idx
        self.lds = self.lds[idx + 1:]
        self.A(f"s_waitcnt lgkmcnt({min(n, 15)})")
    def ldsall(self):
        self.lds = []
        self.A("s_waitcnt lgkmcnt(0)")
    def vmwait(self, tag):
        n = self.vm.wait_n(tag)
        if n is not None: self.A(f"s_waitcnt vmcnt({n})")

def cost(it):
    if isinstance(it, str): return 1
    if isinstance(it, list): return sum(cost(x) for x in it)
    if it[0] == "vm": return len(it[2])
    return 1

def run_slots(g, mf, queues, cap=2, dma=None, dma_every=4, dma_phase=0):
    for i, (m, needs) in enumerate(mf):
        for t in needs: g.need(t)
        g.A(m)
        room = cap
        if dma and (i % dma_every) == dma_phase:
            it = dma.pop(0); g.emit(it); room -= min(cost(it), 2)
        for q in queues:
            while q and room > 0:
                it = q.pop(0); g.emit(it); room -= cost(it)

def cs_(g, r): return f"s_and_b32 s{r}, s{S_HG}, 3" if g.opt.cmap else f"s_lshr_b32 s{r}, s{S_HG}, 1"
def rh_(g, r): return f"s_lshr_b32 s{r}, s{S_HG}, 2" if g.opt.cmap else f"s_and_b32 s{r}, s{S_HG}, 1"

def decode(g):
    A = g.A
    A("s_cmp_ge_u32 s2, 256")
    A("s_cbranch_scc1 L_end")
    A("s_load_dwordx16 s[4:19], s[0:1], 0")
    A("s_load_dwordx2 s[20:21], s[0:1], 64")
    A("v_lshrrev_b32 v2, 6, v0")
    A(f"v_and_b32 v{V_L}, 63, v0")
    A(f"v_readfirstlane_b32 s{S_WV}, v2")
    A("s_and_b32 s22, s2, 7")
    A("s_lshr_b32 s23, s2, 3")
    A(f"s_lshr_b32 s{S_BR}, s22, 2")
    if g.opt.bfirst: A(f"s_xor_b32 s{S_BR}, s{S_BR}, 1")
    A(f"s_bfe_u32 s{S_RB}, s22, 0x10001")
    A(f"s_lshl_b32 s{S_RB}, s{S_RB}, 3")
    A(f"s_and_b32 s{S_T0}, s23, 7")
    A(f"s_add_u32 s{S_RB}, s{S_RB}, s{S_T0}")
    A(f"s_and_b32 s{S_HG}, s22, 1")
    A(f"s_lshl_b32 s{S_HG}, s{S_HG}, 2")
    A(f"s_lshr_b32 s{S_T0}, s23, 3")
    A(f"s_add_u32 s{S_T0}, s{S_T0}, s23")
    A(f"s_and_b32 s{S_T0}, s{S_T0}, 3")
    A(f"s_add_u32 s{S_HG}, s{S_HG}, s{S_T0}")
    A(f"s_lshr_b32 s{S_RW}, s{S_WV}, 1")
    A(f"s_and_b32 s{S_CW}, s{S_WV}, 1")
    l = f"v{V_L}"
    A(f"v_lshrrev_b32 v2, 3, {l}")
    A(f"v_and_b32 v3, 7, {l}")
    A(f"v_lshrrev_b32 v4, 4, {l}")
    A("v_xor_b32 v5, v3, v4")
    A("v_lshlrev_b32 v6, 11, v2")
    A(f"v_lshl_add_u32 v{V_XD}, v5, 4, v6")
    A(f"v_xor_b32 v7, 64, v{V_XD}")
    A(f"v_add_u32 v{V_XD+1}, {14*1024}, v7")
    A("v_and_b32 v5, 1, v4")
    A("v_lshlrev_b32 v5, 1, v5")
    A("v_xor_b32 v5, v3, v5")
    A("v_mul_u32_u24 v7, 3072, v2")
    A(f"v_lshl_add_u32 v{V_WD}, v5, 4, v7")
    A(f"v_xor_b32 v7, 64, v{V_WD}")
    A(f"v_add_u32 v{V_WD+1}, 22528, v7")
    A(f"s_lshl_b32 s{S_T0}, s{S_WV}, 1")
    A(f"v_add_u32 v5, s{S_T0}, v4")
    A("v_xor_b32 v5, v3, v5")
    A(f"v_lshl_add_u32 v{V_XH}, v5, 4, v6")
    A(f"s_lshl_b32 s{S_XB}, s{S_RB}, 17")
    A(f"s_lshl_b32 s{S_T0}, s{S_WV}, 15")
    A(f"s_add_u32 s{S_XB}, s{S_XB}, s{S_T0}")
    A(f"s_lshl_b32 s{S_HB}, s{S_RB}, 7")
    A(f"s_sub_i32 s{S_HB}, s{S_HB}, 16")
    A(f"s_max_i32 s{S_HB}, s{S_HB}, 0")
    A(f"s_lshl_b32 s{S_T0}, s{S_CW}, 3")
    A(f"s_add_u32 s{S_HB}, s{S_HB}, s{S_T0}")
    A(f"s_add_u32 s{S_HB}, s{S_HB}, s{S_RW}")
    A(f"s_lshl_b32 s{S_HB}, s{S_HB}, 10")
    A(f"s_mul_i32 s{S_WB}, s{S_WV}, 49152")
    A(f"s_lshl_b32 s{S_T0}, s{S_HG}, 7")
    A(f"s_add_u32 s{S_WB}, s{S_WB}, s{S_T0}")
    A(f"s_add_u32 s{S_WB1}, s{S_WB}, 1024")
    A(f"s_lshl_b32 s{S_LW}, s{S_WV}, 12")
    A(f"s_lshl_b32 s{S_LWH}, s{S_WV}, 9")
    A(f"s_lshl_b32 s{S_WOB}, s{S_WV}, 15")
    A(cs_(g, S_T0))
    A(f"s_lshl_b32 s{S_T0}, s{S_T0}, 8")
    A(f"s_add_u32 s{S_WOB}, s{S_WOB}, s{S_T0}")
    if g.opt.pf == 4: pf4_pre(g)
    A("s_waitcnt lgkmcnt(0)")
    A(f"s_cmp_eq_u32 s{S_BR}, 0")
    A("s_cselect_b32 s24, s4, s10"); A("s_cselect_b32 s25, s5, s11"); A("s_mov_b32 s26, 0x200000"); A("s_mov_b32 s27, 0x20000")
    A("s_cselect_b32 s28, s6, s12"); A("s_cselect_b32 s29, s7, s13"); A("s_mov_b32 s30, 0x180000"); A("s_mov_b32 s31, 0x20000")
    A("s_cselect_b32 s40, s8, s14"); A("s_cselect_b32 s41, s9, s15"); A("s_mov_b32 s42, 0x80000"); A("s_mov_b32 s43, 0x20000")
    A("s_mov_b32 s32, s20"); A("s_mov_b32 s33, s21"); A("s_mov_b32 s34, 0x10000000"); A("s_mov_b32 s35, 0x20000")
    A("s_mov_b32 s44, s16"); A("s_mov_b32 s45, s17"); A("s_mov_b32 s46, 0x400000"); A("s_mov_b32 s47, 0x20000")
    if g.opt.rot == 3: A(f"s_lshl_b32 s{S_ROT}, s{S_HG}, 1")
    elif g.opt.rot == 4: A(f"s_mov_b32 s{S_ROT}, s{S_RB}")
    elif g.opt.rot == 5: A(f"s_mov_b32 s{S_ROT}, s{S_HG}")
    elif g.opt.rot == 6: A(f"s_lshl_b32 s{S_ROT}, s{S_HG}, 2")
    elif g.opt.rot == 7: A(f"s_lshl_b32 s{S_ROT}, s{S_RB}, 2")
    elif g.opt.rot == 8:
        A(f"s_xor_b32 s{S_ROT}, s{S_RB}, s{S_HG}"); A(f"s_lshl_b32 s{S_ROT}, s{S_ROT}, 2")
    elif g.opt.rot == 10: A(f"s_lshl_b32 s{S_ROT}, s{S_RB}, 1")
    elif g.opt.rot == 11:
        A(f"s_lshl_b32 s{S_ROT}, s{S_HG}, 2"); A(f"s_add_u32 s{S_ROT}, s{S_ROT}, s{S_RB}")
    elif g.opt.rot == 9: A(f"s_mov_b32 s{S_ROT}, 4")
    elif g.opt.rot:
        A(f"s_lshl_b32 s{S_ROT}, s{S_HG}, 1")
        A(f"s_add_u32 s{S_ROT}, s{S_ROT}, s{S_RB}")
        if g.opt.rot == 2:
            A(f"s_lshr_b32 s{S_T0}, s{S_HG}, 2"); A(f"s_add_u32 s{S_ROT}, s{S_ROT}, s{S_T0}")
            A(f"s_lshr_b32 s{S_T0}, s{S_RB}, 3"); A(f"s_lshl_b32 s{S_T0}, s{S_T0}, 2"); A(f"s_add_u32 s{S_ROT}, s{S_ROT}, s{S_T0}")
    else:
        A(f"s_mov_b32 s{S_ROT}, 0")

def chunk_dmas(g, c, halo):
    st = (c % 4) * STAGE
    nt = " nt" if g.opt.nt else ""
    tag = ("c", c)
    out = []
    if c < 8:
        rc = [f"s_add_u32 s{S_RC}, s{S_ROT}, {c}", f"s_and_b32 s{S_RC}, s{S_RC}, 7"]
        for i in range(4):
            pre = rc + [f"s_add_u32 m0, s{S_LW}, {st}", f"s_lshl_b32 s{S_T2}, s{S_RC}, 7", f"s_add_u32 s{S_T2}, s{S_T2}, s{S_XB}"] if i == 0 else []
            out.append(("vm", tag, pre + [f"buffer_load_dwordx4 v{V_XD+(i>>1)}, {sX}, s{S_T2} offen offset:{i*1024}{nt} lds"]))
        for j in range(4):
            pre = [f"s_add_u32 m0, s{S_LW}, {st + WOFF}", f"s_mul_i32 s{S_T2}, s{S_RC}, 196608", f"s_add_u32 s{S_T2}, s{S_T2}, s{S_WB1}"] if j == 0 else []
            out.append(("vm", tag, pre + [f"buffer_load_dwordx4 v{V_WD+(j>>1)}, {sW}, s{S_T2} offen offset:{j*1024}{nt} lds"]))
        if c < QE:
            for bb in range(2):
                pre = [f"s_lshl_b32 s{S_T2}, s{S_WV}, 11", f"s_add_u32 m0, s{S_T2}, {XCH + c*8192 - 1024}",
                       f"s_mul_i32 s{S_T2}, s{S_RC}, 196608", f"s_add_u32 s{S_T2}, s{S_T2}, s{S_WB}"] if bb == 0 else []
                pre = [f"s_lshl_b32 s{S_T1}, s{S_WV}, 11", f"s_add_u32 m0, s{S_T1}, {XCH + c*8192 + bb*1024 - bb*2048}"] + \
                      ([f"s_mul_i32 s{S_T2}, s{S_RC}, 196608", f"s_add_u32 s{S_T2}, s{S_T2}, s{S_WB}"] if bb == 0 else [])
                out.append(("vm", tag, pre + [f"buffer_load_dwordx4 v{V_WD+bb}, {sW}, s{S_T2} offen offset:{bb*2048}{nt} lds"]))
        if halo:
            out.append(("vm", tag, [f"s_add_u32 m0, s{S_LWH}, {st + 16384}", f"s_lshl_b32 s{S_T2}, s{S_RC}, 7", f"s_add_u32 s{S_T2}, s{S_T2}, s{S_HB}",
                        "s_mov_b32 exec_hi, 0", f"buffer_load_dwordx4 v{V_XH}, {sX}, s{S_T2} offen{nt} lds", "s_mov_b32 exec_hi, -1"]))
    elif c < 10:
        h = c - 8
        for cq in range(QE + 4*h, min(QE + 4*h + 4, 8)):
            for bb in range(2):
                pre = []
                if bb == 0:
                    pre = [f"s_add_u32 s{S_RC}, s{S_ROT}, {cq}", f"s_and_b32 s{S_RC}, s{S_RC}, 7",
                           f"s_add_u32 m0, s{S_LW}, {wq_base(cq)}",
                           f"s_mul_i32 s{S_T2}, s{S_RC}, 196608", f"s_add_u32 s{S_T2}, s{S_T2}, s{S_WB}"]
                out.append(("vm", tag, pre + [f"buffer_load_dwordx4 v{V_WD+bb}, {sW}, s{S_T2} offen offset:{bb*2048}{nt} lds"]))
    else:
        h = c - 10
        for b in range(8):
            pre = [f"s_add_u32 m0, s{S_LWO}, {WOB[h] + (b >> 2)*4096}",
                   f"s_add_u32 s{S_T2}, s{S_WOB}, {(128*h + 16*(b >> 2))*1024}"] if (b & 3) == 0 else []
            out.append(("vm", tag, pre + [f"buffer_load_dwordx4 v{V_WO4[b & 3]}, {sWO}, s{S_T2} offen offset:{(b & 3)*1024}{nt} lds"]))
    return out

def setup2(g, br, rw):
    A = g.A
    halo = br == 0
    l = f"v{V_L}"
    A(f"s_lshl_b32 s{S_T0}, s{S_BR}, 4"); A(f"s_add_u32 s{S_T0}, s{S_T0}, s{S_RB}")
    A(f"s_lshl_b32 s{S_EOA}, s{S_T0}, 7"); A(f"s_add_u32 s{S_EOA}, s{S_EOA}, {WS_EO}")
    A(f"s_lshl_b32 s{S_FLN}, s{S_T0}, 8"); A(f"s_add_u32 s{S_FLN}, s{S_FLN}, {WS_FL}")
    A(f"s_lshl_b32 s{S_EKA}, s{S_HG}, 7"); A(f"s_add_u32 s{S_EKA}, s{S_EKA}, {WS_EK}")
    A(f"s_load_dwordx2 s[{S_EO}:{S_EO+1}], s[20:21], s{S_EOA}")
    if br == 1: A(f"s_load_dwordx2 s[{S_EK}:{S_EK+1}], s[20:21], s{S_EKA}")
    A(f"s_lshl_b32 s{S_T1}, s{S_HG}, 1"); A(f"s_add_u32 s{S_T1}, s{S_T1}, s{S_CW}")
    A(f"s_lshl_b32 s{S_FLO}, s{S_T1}, 3"); A(f"s_add_u32 s{S_FLO}, s{S_FLO}, s{S_FLN}"); A(f"s_add_u32 s{S_FLO}, s{S_FLO}, {rw*128}")
    A(rh_(g, S_T2)); A(f"s_lshl_b32 s{S_T2}, s{S_T2}, 7"); A(f"s_add_u32 s{S_FLN}, s{S_FLN}, s{S_T2}")
    A(f"v_lshrrev_b32 v2, 4, {l}"); A(f"v_and_b32 v3, 15, {l}")
    A("v_lshlrev_b32 v5, 1, v2"); A("v_xor_b32 v5, v3, v5"); A("v_lshlrev_b32 v6, 10, v2")
    A(f"v_lshl_add_u32 v{V_WO4[0]}, v5, 4, v6")
    A(f"v_xor_b32 v6, 128, v{V_WO4[0]}")
    A(f"v_add_u32 v{V_WO4[1]}, 3072, v6")
    A(f"v_add_u32 v{V_WO4[2]}, 6144, v{V_WO4[0]}")
    A(f"v_add_u32 v{V_WO4[3]}, 9216, v6")
    A(f"v_and_b32 v2, 15, {l}")
    A(f"v_lshrrev_b32 v3, 4, {l}")
    A("v_lshrrev_b32 v4, 1, v2")
    A("v_xor_b32 v5, v3, v4")
    A("v_lshlrev_b32 v6, 7, v2")
    A("v_lshl_add_u32 v6, v5, 4, v6")
    A("v_lshrrev_b32 v7, 3, v2")
    A("v_lshl_add_u32 v7, v7, 10, v6")
    A(f"v_add_u32 v{V_XR}, {rw*8192}, v7")
    A(f"v_xor_b32 v{V_XR+3}, 64, v{V_XR}")
    for kk in range(2):
        for b in (1, 2): A(f"v_add_u32 v{V_XR+3*kk+b}, {b<<16}, v{V_XR+3*kk}")
    if halo:
        A(f"v_add_u32 v{V_HR}, 16384, v6")
        A(f"v_xor_b32 v{V_HR+3}, 64, v{V_HR}")
        for kk in range(2):
            for b in (1, 2): A(f"v_add_u32 v{V_HR+3*kk+b}, {b<<16}, v{V_HR+3*kk}")
    A("v_lshrrev_b32 v4, 2, v2")
    A("v_and_b32 v5, 3, v2")
    A("v_lshrrev_b32 v8, 3, v2")
    A("v_and_b32 v7, 1, v3")
    A("v_lshl_or_b32 v8, v7, 1, v8")
    A("v_lshrrev_b32 v6, 1, v3")
    A("v_lshlrev_b32 v6, 12, v6")
    A("v_lshl_add_u32 v6, v7, 11, v6")
    A("v_lshl_add_u32 v6, v4, 7, v6")
    A("v_lshl_add_u32 v6, v5, 3, v6")
    A(f"s_lshl_b32 s{S_T0}, s{S_CW}, 1")
    A(f"v_xor_b32 v7, s{S_T0}, v8")
    A(f"v_lshl_add_u32 v{V_WR}, v7, 5, v6")
    A(f"v_xor_b32 v{V_WR+3}, 32, v{V_WR}")
    for hh in range(2):
        for b in (1, 2): A(f"v_add_u32 v{V_WR+3*hh+b}, {b<<16}, v{V_WR+3*hh}")
    if QE:
        A("v_lshlrev_b32 v6, 10, v3")
        A(f"v_sub_u32 v38, v{V_WR+2}, v6"); A(f"v_sub_u32 v39, v{V_WR+5}, v6")
    A(f"v_lshlrev_b32 v{V_L16}, 4, {l}")
    A(f"v_lshlrev_b32 v{V_L8}, 3, {l}")
    A(f"s_mov_b32 s{S_C}, {CSC:#x}"); A(f"s_mov_b32 s{S_NC}, {NCSC:#x}")
    A(f"s_mov_b32 s{S_L2E}, {LOG2E:#x}"); A(f"s_mov_b32 s{S_EPS}, {EPS:#x}")
    A(f"s_mov_b32 s{S_SPIN}, {SPIN}")
    A(f"s_mov_b32 s18, {LOG2E:#x}"); A(f"s_mov_b32 s19, {LOG2E:#x}"); A(f"s_mov_b32 s96, {CSC:#x}"); A(f"s_mov_b32 s97, {CSC:#x}")
    for i in range(4): A(f"v_mov_b32 v{V_ONES+i}, 0x3f803f80")
    A(f"s_lshl_b32 s{S_T0}, s{S_RB}, 3")
    A(f"s_add_u32 s{S_OLD}, s{S_T0}, {br*128}")
    A(f"s_add_u32 s{S_OST}, s{S_OLD}, {4*rw}")
    A(f"s_lshl_b32 s{S_OST}, s{S_OST}, 4")
    A(f"s_add_u32 s{S_OST}, s{S_OST}, s{S_T1}")
    A(f"s_lshl_b32 s{S_OST}, s{S_OST}, 10")
    A(rh_(g, S_T1)); A(f"s_lshl_b32 s{S_T1}, s{S_T1}, 2")
    A(f"s_add_u32 s{S_OLD}, s{S_OLD}, s{S_T1}")
    A(f"s_add_u32 s{S_OLD}, s{S_OLD}, s{S_WV}")
    A(f"s_lshl_b32 s{S_OLD}, s{S_OLD}, 14")
    A(f"s_lshl_b32 s{S_LWO}, s{S_WV}, 13")
    A(f"s_lshl_b32 s{S_T0}, s{S_CW}, 13")
    A(f"v_add_u32 v{V_XA}, s{S_T0}, v{V_L16 if br else V_L8}")
    A(f"v_add_u32 v{V_XA}, {XCH}, v{V_XA}")
    if br == 1:
        A(f"s_lshl_b32 s{S_T0}, s{S_HG}, 2")
        A(f"s_lshl_b32 s{S_T1}, s{S_CW}, 1")
        A(f"s_add_u32 s{S_T0}, s{S_T0}, s{S_T1}")
        A(f"s_add_u32 s{S_HEAD}, s{S_T0}, {rw}")
        A(f"s_lshl_b32 s{S_T0}, s{S_HEAD}, 4")
        A(f"s_add_u32 s{S_T0}, s{S_T0}, s{S_RB}")
        A(f"s_lshl_b32 s{S_KVS}, s{S_T0}, 10")
        A(f"s_add_u32 s{S_KVS}, s{S_KVS}, {WS_KV}")
        A(f"s_lshl_b32 s{S_ZS}, s{S_T0}, 6")
        A(f"s_add_u32 s{S_ZS}, s{S_ZS}, {WS_Z}")
    else:
        A(f"v_and_b32 v2, 15, {l}")
        A(f"v_lshrrev_b32 v3, 4, {l}")
        A("v_lshlrev_b32 v3, 2, v3")
        A(f"v_mov_b32 v8, {NEG:#x}")
        for r in range(4):
            A(f"v_add_u32 v4, {r}, v3")
            A("v_sub_u32 v5, v2, v4")
            A("v_cmp_gt_u32 vcc, 8, v5")
            A(f"v_mov_b32 v7, {0xffff if r % 2 == 0 else 0xffff0000:#x}")
            A(f"v_cndmask_b32 v{V_MOWN+r}, v8, 0, vcc")
            A("v_cndmask_b32 v6, 0, v7, vcc")
            if r % 2 == 0: A(f"v_mov_b32 v{V_BM + r//2}, v6")
            else: A(f"v_or_b32 v{V_BM + r//2}, v{V_BM + r//2}, v6")
            A("v_add_u32 v5, 9, v2")
            A("v_cmp_ge_u32 vcc, v4, v5")
            A(f"v_cndmask_b32 v{V_MPREV+r}, v8, 0, vcc")
            if rw == 0:
                for p in range(2):
                    A(f"v_subrev_u32 v5, {8*p}, v4")
                    A("v_cmp_gt_u32 vcc, 8, v5")
                    A("v_cmp_gt_u32 s[68:69], v5, v2")
                    A("s_and_b64 vcc, vcc, s[68:69]")
                    A(f"s_cmp_eq_u32 s{S_RB}, 0")
                    A("s_cselect_b64 vcc, 0, vcc")
                    A(f"v_cndmask_b32 v{V_MHALO+4*p+r}, v8, 0, vcc")

def pf_setup(g):
    A = g.A
    l = f"v{V_L}"
    A(f"v_and_b32 v2, 31, {l}")
    A("v_lshlrev_b32 v2, 10, v2")
    A(f"v_lshrrev_b32 v3, 5, {l}")
    A(f"v_lshl_add_u32 v{V_PF0}, v3, 7, v2")
    A(f"s_lshr_b32 s{S_PFX}, s{S_RB}, 3")
    A(f"s_lshl_b32 s{S_PFX}, s{S_PFX}, 20")
    A(f"s_lshl_b32 s{S_T0}, s{S_IDX}, 15")
    A(f"s_add_u32 s{S_PFX}, s{S_PFX}, s{S_T0}")
    A(f"s_lshl_b32 s{S_T0}, s{S_WV}, 8")
    A(f"s_add_u32 s{S_PFX}, s{S_PFX}, s{S_T0}")
    A(f"v_and_b32 v4, 15, {l}")
    A("v_lshrrev_b32 v5, 2, v4")
    A("v_and_b32 v6, 3, v4")
    A(f"v_bfe_u32 v7, {l}, 4, 1")
    A("v_mul_u32_u24 v7, 3072, v7")
    A("v_mul_u32_u24 v8, 196608, v3")
    A("v_add_u32 v7, v7, v8")
    A("v_lshl_add_u32 v7, v5, 10, v7")
    A("v_lshl_add_u32 v7, v6, 7, v7")
    A("v_cmp_gt_u32 vcc, 3, v5")
    A("v_mov_b32 v8, 0x7fffffff")
    A(f"v_cndmask_b32 v{V_PF1}, v8, v7, vcc")
    A(f"s_mul_i32 s{S_PFW}, s{S_IDX}, 6144")
    A(f"s_and_b32 s{S_T0}, s{S_XCD}, 1")
    A(f"s_lshl_b32 s{S_T0}, s{S_T0}, 9")
    A(f"s_add_u32 s{S_PFW}, s{S_PFW}, s{S_T0}")
    A(f"s_mul_i32 s{S_T0}, s{S_WV}, 393216")
    A(f"s_add_u32 s{S_PFW}, s{S_PFW}, s{S_T0}")

V_PA = 252
def pf3_setup(g):
    A = g.A
    l = f"v{V_L}"
    A(f"s_lshr_b32 s{S_T0}, s{S_RB}, 3")
    A(f"s_lshl_b32 s{S_T0}, s{S_T0}, 20")
    A(f"s_lshl_b32 s{S_T1}, s{S_IDX}, 15")
    A(f"s_add_u32 s{S_T0}, s{S_T0}, s{S_T1}")
    A(f"s_lshl_b32 s{S_T1}, s{S_WV}, 13")
    A(f"s_add_u32 s{S_T0}, s{S_T0}, s{S_T1}")
    A(f"s_add_u32 s{S_PFX}, s24, s{S_T0}"); A(f"s_addc_u32 s{S_PFX+1}, s25, 0")
    A(f"v_lshlrev_b32 v2, 10, {l}")
    A(f"v_mov_b32 v3, s{S_PFX+1}")
    A(f"v_add_co_u32 v{V_PA}, vcc, s{S_PFX}, v2")
    A(f"v_addc_co_u32 v{V_PA+1}, vcc, 0, v3, vcc")
    A(f"s_mul_i32 s{S_T0}, s{S_CW}, 6")
    A(f"v_subrev_u32 v4, 8, {l}")
    A(f"v_add_u32 v4, s{S_T0}, v4")
    A("v_lshrrev_b32 v5, 2, v4"); A("v_and_b32 v4, 3, v4")
    A("v_lshlrev_b32 v5, 10, v5"); A("v_lshl_add_u32 v4, v4, 7, v5")
    A(f"s_lshl_b32 s{S_T0}, s{S_IDX}, 1"); A(f"s_add_u32 s{S_T0}, s{S_T0}, s{S_RW}")
    A(f"s_mul_i32 s{S_T0}, s{S_T0}, 3072")
    A(f"s_and_b32 s{S_T1}, s{S_XCD}, 1"); A(f"s_lshl_b32 s{S_T1}, s{S_T1}, 9")
    A(f"s_add_u32 s{S_T0}, s{S_T0}, s{S_T1}")
    A(f"s_add_u32 s{S_PFX}, s28, s{S_T0}"); A(f"s_addc_u32 s{S_PFX+1}, s29, 0")
    A(f"v_mov_b32 v3, s{S_PFX+1}")
    A(f"v_add_co_u32 v4, vcc, s{S_PFX}, v4")
    A("v_addc_co_u32 v5, vcc, 0, v3, vcc")
    A(f"v_cmp_gt_u32 vcc, 8, {l}")
    A(f"v_cndmask_b32 v{V_PA}, v4, v{V_PA}, vcc")
    A(f"v_cndmask_b32 v{V_PA+1}, v5, v{V_PA+1}, vcc")
    A("v_mov_b32 v4, 196608"); A("v_mov_b32 v5, 128")
    A(f"v_cndmask_b32 v{V_PA+2}, v4, v5, vcc")
    for _ in range(g.opt.pf_first):
        A(f"v_add_co_u32 v{V_PA}, vcc, v{V_PA}, v{V_PA+2}")
        A(f"v_addc_co_u32 v{V_PA+1}, vcc, 0, v{V_PA+1}, vcc")
def pf3_item():
    return ("vm", "pf", ["s_mov_b64 exec, 0x3fff", f"global_load_dword v{V_PA+3}, v[{V_PA}:{V_PA+1}], off{PFPOL}", "s_mov_b64 exec, -1",
                         f"v_add_co_u32 v{V_PA}, vcc, v{V_PA}, v{V_PA+2}", f"v_addc_co_u32 v{V_PA+1}, vcc, 0, v{V_PA+1}, vcc"])

def pf4_pre(g):
    A = g.A
    l = f"v{V_L}"
    A(f"s_lshr_b32 s{S_T0}, s{S_RB}, 3")
    A(f"s_lshl_b32 s{S_T0}, s{S_T0}, 20")
    A(f"s_lshl_b32 s{S_T1}, s{S_IDX}, 15")
    A(f"s_add_u32 s{S_T0}, s{S_T0}, s{S_T1}")
    A(f"s_lshl_b32 s{S_T1}, s{S_WV}, 13")
    A(f"s_add_u32 s{S_T0}, s{S_T0}, s{S_T1}")
    A(f"v_lshlrev_b32 v2, 10, {l}")
    A(f"v_add_u32 v2, s{S_T0}, v2")
    A(f"s_lshl_b32 s{S_T0}, s{S_IDX}, 1"); A(f"s_add_u32 s{S_T0}, s{S_T0}, s{S_RW}")
    A(f"s_mul_i32 s{S_T0}, s{S_T0}, 3072")
    A(f"s_and_b32 s{S_T1}, s{S_XCD}, 1"); A(f"s_lshl_b32 s{S_T1}, s{S_T1}, 9")
    A(f"s_add_u32 s{S_T0}, s{S_T0}, s{S_T1}")
    A(f"s_lshl_b32 s{S_T1}, s{S_CW}, 10"); A(f"s_add_u32 s{S_T0}, s{S_T0}, s{S_T1}")
    A(f"s_add_u32 s{S_T0}, s{S_T0}, {1024 - 8*128}")
    A(f"v_lshlrev_b32 v3, 7, {l}")
    A(f"v_add_u32 v3, s{S_T0}, v3")
    A(f"v_cmp_gt_u32 s[68:69], 8, {l}")
    A("v_mov_b32 v4, 196608"); A("v_mov_b32 v5, 128")
    A(f"v_cndmask_b32 v{V_PA+2}, v4, v5, s[68:69]")
    A(f"v_cndmask_b32 v{V_PA}, v3, v2, s[68:69]")
    for _ in range(g.opt.pf_first): A(f"v_add_u32 v{V_PA}, v{V_PA}, v{V_PA+2}")
def pf4_post(g):
    A = g.A
    A("v_mov_b32 v2, s28"); A("v_mov_b32 v3, s29"); A("v_mov_b32 v4, s24"); A("v_mov_b32 v5, s25")
    A("v_cndmask_b32 v2, v2, v4, s[68:69]"); A("v_cndmask_b32 v3, v3, v5, s[68:69]")
    A(f"v_add_co_u32 v{V_PA}, vcc, v{V_PA}, v2")
    A(f"v_addc_co_u32 v{V_PA+1}, vcc, 0, v3, vcc")
def pf4_item():
    return ("vm", "pf", ["s_mov_b64 exec, 0xfff", f"global_load_dword v{V_PA+3}, v[{V_PA}:{V_PA+1}], off{PFPOL}", "s_mov_b64 exec, -1",
                         f"v_add_co_u32 v{V_PA}, vcc, v{V_PA}, v{V_PA+2}", f"v_addc_co_u32 v{V_PA+1}, vcc, 0, v{V_PA+1}, vcc"])

def acc(Tl, hh, kv): return V_ACC + ((Tl * 2 + hh) * 2 + kv) * 4
def xf(Tl, ks): return (Tl * 16 + ks) * 4

def kv_reads(ks, halo):
    c = ks >> 1; kk = ks & 1; st = (c % 4) * STAGE; buf = ks & 1
    w = []
    for hh in range(2):
        for seg in range(2):
            for t in range(2):
                reg, off = ldsaddr(V_WR + 3*hh, st + WOFF + kk*8192 + seg*1024 + t*512)
                d = V_WF + buf*16 + (hh*2 + seg)*4 + t*2
                w.append(("lds", ("w", ks, hh, seg), f"ds_read_b64_tr_b16 v[{d}:{d+1}], {reg} offset:{off}"))
    xr = []
    for Tl in range(4):
        reg, off = ldsaddr(V_XR + 3*kk, st + (Tl >> 1)*4096 + (Tl & 1)*1024)
        xr.append(("lds", ("x", ks, Tl), f"ds_read_b128 {vr(xf(Tl, ks), 4, 'a')}, {reg} offset:{off}"))
    if halo:
        reg, off = ldsaddr(V_HR + 3*kk, st)
        xr.append(("lds", ("x", ks, 4), f"ds_read_b128 {vr(V_HF + buf*4)}, {reg} offset:{off}"))
    qr = []
    if c < QE:
        for hh in range(2):
            for t in range(2):
                d = V_QF + buf*8 + hh*4 + t*2
                qr.append(("lds", ("q", hh, ks), f"ds_read_b64_tr_b16 v[{d}:{d+1}], v{38+hh} offset:{XCH - 131072 + c*8192 + kk*4096 + t*512}"))
    return [xr[0]] + w + xr[1:] + qr

def kv_mfmas(ks, br, rw):
    buf = ks & 1
    out = []
    for Tl in range(4):
        for hh in range(2):
            for seg in range(2):
                w = vr(V_WF + buf*16 + (hh*2 + seg)*4)
                x = vr(xf(Tl, ks), 4, "a")
                d = vr(acc(Tl, hh, seg))
                c = "0" if ks == 0 else d
                a, b = (w, x) if (br == 0 and seg == 0) else (x, w)
                out.append((f"v_mfma_f32_16x16x32_bf16 {d}, {a}, {b}, {c}", [("x", ks, Tl), ("w", ks, hh, seg)]))
    if br == 0:
        for hh in range(2):
            seg = rw
            w = vr(V_WF + buf*16 + (hh*2 + seg)*4)
            x = vr(V_HF + buf*4)
            d = vr(V_HACC + hh*4)
            c = "0" if ks == 0 else d
            a, b = (w, x) if seg == 0 else (x, w)
            out.append((f"v_mfma_f32_16x16x32_bf16 {d}, {a}, {b}, {c}", [("x", ks, 4)]))
    if (ks >> 1) < QE:
        for hh in range(2):
            for Tl in range(4):
                d = vr(V_QACC + (hh*4 + Tl)*4)
                out.append((f"v_mfma_f32_16x16x32_bf16 {d}, {vr(V_QF + buf*8 + hh*4)}, {vr(xf(Tl, ks), 4, 'a')}, {'0' if ks == 0 else d}", [("q", hh, ks)]))
    return out

def q_read(hh, ks, slot):
    out = []
    for t in range(2):
        reg, off = ldsaddr(V_WR + 3*hh, wq_base(ks >> 1) + (ks & 1)*8192 + t*512)
        d = V_WF + slot*4 + t*2
        out.append(("lds", ("q", hh, ks), f"ds_read_b64_tr_b16 v[{d}:{d+1}], {reg} offset:{off}"))
    return out

def phi_list(regs, tmp, pk=False):
    out = []
    if pk:
        for i in range(0, len(regs), 2): out.append(f"v_pk_mul_f32 v[{tmp+i}:{tmp+i+1}], v[{regs[i]}:{regs[i]+1}], s[18:19]")
        for i, r in enumerate(regs):
            out.append(f"v_exp_f32 v{tmp+i}, v{tmp+i} clamp")
            out.append(f"v_max_f32 v{r}, s{S_EPS}, v{r}")
        for i in range(0, len(regs), 2): out.append(f"v_pk_add_f32 v[{regs[i]}:{regs[i]+1}], v[{regs[i]}:{regs[i]+1}], v[{tmp+i}:{tmp+i+1}]")
        return out
    for i, r in enumerate(regs): out.append(f"v_mul_f32 v{tmp+i}, s{S_L2E}, v{r}")
    for i, r in enumerate(regs):
        out.append(f"v_exp_f32 v{tmp+i}, v{tmp+i} clamp")
        out.append(f"v_max_f32 v{r}, s{S_EPS}, v{r}")
    for i, r in enumerate(regs): out.append(f"v_add_f32 v{r}, v{r}, v{tmp+i}")
    return out

def npf_left(opt, c):
    return opt.pf_first + opt.pf_init + 1 + c < 8

def phase1_path(g, br, rw):
    A = g.A
    opt = g.opt
    halo = (br == 0)
    tag = f"{br}{rw}"
    g.vm = VM(); g.lds = []
    if opt.common:
        for c in range(opt.common):
            for it in chunk_dmas(g, c, halo): g.vm.add(it[1])
        if opt.warmcode: g.vm.add("pf"); g.vm.add("pf")
    else:
        for c in range(2):
            for it in chunk_dmas(g, c, halo): g.emit(it)
    g.stamp(1)
    if opt.pf == 3:
        pf3_setup(g)
        for _ in range(opt.pf_init): g.emit(pf3_item())
    if opt.warmcode and not opt.common:
        A("s_getpc_b64 s[68:69]")
        g.label(f"L_wc_{tag}")
        A(f"s_lshl_b32 s{S_T0}, s{S_CW}, 13")
        A(f"v_lshlrev_b32 v2, 7, v{V_L}")
        A(f"v_add_u32 v3, s{S_T0}, v2")
        A(f"v_min_u32 v3, L_end-L_wc_{tag}, v3")
        g.emit(("vm", "pf", [f"global_load_dword v{V_PF0}, v3, s[68:69]"]))
        A(f"v_add_u32 v3, L_phase2-L_wc_{tag}, v2")
        A(f"v_min_u32 v3, L_end-L_wc_{tag}, v3")
        g.emit(("vm", "pf", [f"global_load_dword v{V_PF1}, v3, s[68:69]"]))
    if opt.pf == 4:
        for it in chunk_dmas(g, 1, halo): g.emit(it)
    setup2(g, br, rw)
    if opt.pf in (1, 2): pf_setup(g)
    npf = opt.pf_first
    if opt.common == 1:
        for it in chunk_dmas(g, 1, halo): g.emit(it)
    if opt.pre3 and opt.common < 3:
        for it in chunk_dmas(g, 2, halo): g.emit(it)
        if opt.pre3 >= 2:
            for it in chunk_dmas(g, 3, halo): g.emit(it)
    g.vmwait(("c", 0))
    A("s_barrier")
    g.stamp(2)
    for it in kv_reads(0, halo): g.emit(it)
    dq = []
    late_q = []
    if not opt.pre3: dq += chunk_dmas(g, 2, halo)
    if opt.pre3 < 2: dq += chunk_dmas(g, 3, halo)
    pfi = [("vm", "pf", [f"buffer_load_dword v{V_PF0}, v{V_PF0}, {sX}, s{S_PFX} offen{PFPOL}"]),
           ("vm", "pf", [f"buffer_load_dword v{V_PF1}, v{V_PF1}, {sW}, s{S_PFW} offen{PFPOL}"])]
    if opt.pf == 3 and opt.pf_first + opt.pf_init < 8: dq.insert(0, pf3_item())
    if opt.pf == 4 and opt.pf_first + opt.pf_init < 8: dq.insert(opt.pf_pos, pf4_item())
    if opt.pf == 1: dq = pfi + dq
    if opt.pf == 2: dq = dq[:9] + pfi + dq[9:]
    for ks in range(16):
        c = ks >> 1
        mf = kv_mfmas(ks, br, rw)
        ev = opt.dma_every if len(dq) <= 10 else opt.dma_fast
        if ks & 1:
            run_slots(g, mf[:opt.bar_after], [], dma=dq, dma_every=ev, dma_phase=1)
            while dq and (dq[0][1] == "pf" or dq[0][1][1] <= c + 1): g.emit(dq.pop(0))
            g.ldsall()
            g.vmwait(("c", c + 1))
            A("s_barrier")
            g.stamp(3 + c, kv=True)
            rd = kv_reads(ks + 1, halo) if ks < 15 else q_read(0, 2*QE, 0) + q_read(0, 2*QE + 1, 1) + q_read(0, 2*QE + 2, 2)
            nc = c + 4
            if c + 1 == opt.wo_at:
                dq.insert(0, ("vm", "pf", [f"v_lshrrev_b32 v2, 2, v{V_L}", "v_lshlrev_b32 v2, 10, v2", f"v_and_b32 v3, 3, v{V_L}",
                    "v_lshl_add_u32 v2, v3, 7, v2",
                    f"s_lshl_b32 s{S_T0}, s{S_IDX}, 14", f"s_lshl_b32 s{S_T1}, s{S_WV}, 12", f"s_add_u32 s{S_T0}, s{S_T0}, s{S_T1}",
                    f"s_and_b32 s{S_T1}, s{S_XCD}, 1", f"s_lshl_b32 s{S_T1}, s{S_T1}, 9", f"s_add_u32 s{S_T0}, s{S_T0}, s{S_T1}",
                    "s_mov_b64 exec, 0xffff", f"buffer_load_dword v{V_WO}, v2, {sWO}, s{S_T0} offen{PFPOL}", "s_mov_b64 exec, -1"]))
            if c + 1 == opt.wc_at:
                dq.insert(0, ("vm", "pf", ["s_getpc_b64 s[68:69]", f"L_wc_{tag}:", f"v_lshlrev_b32 v2, 7, v{V_L}",
                    f"s_lshl_b32 s{S_T0}, s{S_CW}, 13", f"v_add_u32 v2, s{S_T0}, v2",
                    f"v_add_u32 v3, L_q_{tag}-L_wc_{tag}, v2", f"v_add_u32 v2, {'L_phase2-L_wc_' + tag}-8192, v2",
                    f"s_cmp_eq_u32 s{S_CW}, 0", "s_cselect_b64 vcc, -1, 0", "v_cndmask_b32 v3, v2, v3, vcc",
                    f"v_min_u32 v3, L_end-L_wc_{tag}, v3",
                    f"global_load_dword v{V_PF0}, v3, s[68:69]"]))
            if opt.pf == 3 and npf_left(opt, c): dq.insert(0, pf3_item())
            if nc >= 8: nc -= (opt.late_b if br else opt.late_a)
            if nc < 12 and (nc >= 8 or c + 4 < 8): dq += chunk_dmas(g, nc, halo)
            if ks == 15:
                for n2 in range(nc + 1, 12): late_q.extend(chunk_dmas(g, n2, halo))
            if opt.pf == 4 and npf_left(opt, c): dq.insert(min(opt.pf_pos, len(dq)), pf4_item())
            run_slots(g, mf[opt.bar_after:], [rd], cap=opt.cap, dma=dq, dma_every=ev, dma_phase=ev - 1)
            for it in rd: g.emit(it)
        else:
            rd = kv_reads(ks + 1, halo)
            run_slots(g, mf, [rd], cap=opt.cap_even, dma=dq, dma_every=ev, dma_phase=ev - 1)
            for it in rd: g.emit(it)
    g.stamp(3)
    dq += late_q
    g.label(f"L_q_{tag}")
    S1 = []; P = S1.append
    if br == 0:
        order = [2, 3, 0, 1] if rw == 0 else [0, 1, 2, 3]
        if rw == 1:
            for hh in range(2):
                h = V_HACC + hh*4
                P(f"v_cvt_pk_bf16_f32 v{4+hh*2}, v{h}, v{h+1}"); P(f"v_cvt_pk_bf16_f32 v{5+hh*2}, v{h+2}, v{h+3}")
                P(("lds", "xw", f"ds_write_b64 v{V_XA}, v[{4+hh*2}:{5+hh*2}] offset:{4096 + hh*512}"))
        for Tl in order:
            for hh in range(2):
                k = acc(Tl, hh, 0); v = acc(Tl, hh, 1)
                kp = V_KP + (Tl*2 + hh)*2
                vp = V_VP + ((Tl & 1)*2 + hh)*6 + 2 + (Tl >> 1)*2
                P(f"v_cvt_pk_bf16_f32 v{kp}, v{k}, v{k+1}"); P(f"v_cvt_pk_bf16_f32 v{kp+1}, v{k+2}, v{k+3}")
                P(f"v_cvt_pk_bf16_f32 v{vp}, v{v}, v{v+1}"); P(f"v_cvt_pk_bf16_f32 v{vp+1}, v{v+2}, v{v+3}")
                if rw == 0 and Tl >= 2:
                    p = Tl & 1
                    P(("lds", "xw", f"ds_write_b64 v{V_XA}, v[{kp}:{kp+1}] offset:{(p*2+hh)*1024}"))
                    P(("lds", "xw", f"ds_write_b64 v{V_XA}, v[{vp}:{vp+1}] offset:{(p*2+hh)*1024+512}"))
        if rw == 0:
            for hh in range(2):
                h = V_HACC + hh*4
                P(f"v_cvt_pk_bf16_f32 v{V_KPREV+hh*2}, v{h}, v{h+1}"); P(f"v_cvt_pk_bf16_f32 v{V_KPREV+hh*2+1}, v{h+2}, v{h+3}")
        S1b = []
        for p in range(2):
            for hh in range(2):
                vp = V_VP + (p*2 + hh)*6
                if rw == 0:
                    S1b.append(("lds", "xr", f"ds_read_b64 v[{vp}:{vp+1}], v{V_XA} offset:{4096 + hh*512}"))
                else:
                    kp = V_KPREV + (p*2 + hh)*2
                    S1b.append(("lds", "xr", f"ds_read_b64 v[{kp}:{kp+1}], v{V_XA} offset:{(p*2+hh)*1024}"))
                    S1b.append(("lds", "xr", f"ds_read_b64 v[{vp}:{vp+1}], v{V_XA} offset:{(p*2+hh)*1024+512}"))
    else:
        PK, VV = V_VP, V_VP + 16
        TMP = V_QACC + 16 if QE == 0 else V_KP
        KVR = V_HACC; KVO = V_HF
        oth = 1 - rw
        for hh in (oth, rw):
            regs = [acc(Tl, hh, 0) + r for Tl in range(4) for r in range(4)]
            S1 += phi_list(regs, TMP, opt.pk)
            for Tl in range(4):
                k = acc(Tl, hh, 0); v = acc(Tl, hh, 1)
                P(f"v_cvt_pk_bf16_f32 v{PK+hh*8+Tl*2}, v{k}, v{k+1}"); P(f"v_cvt_pk_bf16_f32 v{PK+hh*8+Tl*2+1}, v{k+2}, v{k+3}")
                P(f"v_cvt_pk_bf16_f32 v{VV+hh*8+Tl*2}, v{v}, v{v+1}"); P(f"v_cvt_pk_bf16_f32 v{VV+hh*8+Tl*2+1}, v{v+2}, v{v+3}")
            R = KVR if hh == rw else KVO
            d = vr(R); z = vr(R + 4)
            P(f"v_mfma_f32_16x16x32_bf16 {d}, {vr(PK+hh*8)}, {vr(VV+hh*8)}, 0")
            P(f"v_mfma_f32_16x16x32_bf16 {z}, {vr(PK+hh*8)}, {vr(V_ONES)}, 0")
            P(f"v_mfma_f32_16x16x32_bf16 {d}, {vr(PK+hh*8+4)}, {vr(VV+hh*8+4)}, {d}")
            P(f"v_mfma_f32_16x16x32_bf16 {z}, {vr(PK+hh*8+4)}, {vr(V_ONES)}, {z}")
            if hh == oth: wr_pos = len(S1) + 12
        S1.insert(wr_pos, ("lds", "xw", f"ds_write_b128 v{V_XA}, {vr(KVO)} offset:{rw*2048}"))
        S1.insert(wr_pos + 1, ("lds", "xw", f"ds_write_b128 v{V_XA}, {vr(KVO+4)} offset:{rw*2048+1024}"))
        S1b = [("lds", "xr", f"ds_read_b128 {vr(V_ACC)}, v{V_XA} offset:{oth*2048}"),
               ("lds", "xr", f"ds_read_b128 {vr(V_ACC+4)}, v{V_XA} offset:{oth*2048+1024}"),
               f"s_add_u32 s{S_TAG}, s{S_EK}, 1", f"s_and_b32 s{S_TAG}, s{S_TAG}, 0x7f", f"s_or_b32 s{S_TAG}, s{S_TAG}, 0x80",
               f"v_mov_b32 v4, s{S_TAG}", "v_mov_b32 v5, 0xff",
               f"v_lshrrev_b32 v3, 4, v{V_L}", "v_lshlrev_b32 v3, 4, v3",
               ("need", "xr")]
        for r in range(0, 8, 2): S1b.append(f"v_pk_add_f32 v[{KVR+r}:{KVR+r+1}], v[{KVR+r}:{KVR+r+1}], v[{V_ACC+r}:{V_ACC+r+1}]")
        for r in range(0, 8, opt.tagstep): S1b.append(f"v_bfi_b32 v{KVR+r}, v5, v4, v{KVR+r}")
        S1b.append(("vm", "kvst", [f"buffer_store_dwordx4 {vr(KVR)}, v{V_L16}, {sWS}, s{S_KVS} offen sc1"]))
        S1b.append(("vm", "kvst", ["s_mov_b32 s68, 0x00010001", "s_mov_b32 s69, 0x00010001", "s_mov_b64 exec, s[68:69]",
                    f"buffer_store_dwordx4 {vr(KVR+4)}, v3, {sWS}, s{S_ZS} offen sc1", "s_mov_b64 exec, -1"]))
        S1b.append(("stamp", 4))
    OUTR = V_ACC + 48
    def attention(hh):
        o_ = []; P = o_.append
        U = lambda u: V_ACC + 12*u
        QP = V_HACC
        for u in range(4):
            q = V_QACC + (hh*4 + u)*4
            P(f"v_cvt_pk_bf16_f32 v{QP+2*u}, v{q}, v{q+1}"); P(f"v_cvt_pk_bf16_f32 v{QP+2*u+1}, v{q+2}, v{q+3}")
        P(("need", "xr"))
        for u in range(4):
            tl, p = u >> 1, u & 1
            ko = V_KP + (u*2 + hh)*2
            if tl == 1: kpv, mp = V_KP + ((u-2)*2 + hh)*2, V_MPREV
            elif rw == 1: kpv, mp = V_KPREV + (p*2 + hh)*2, V_MPREV
            else: kpv, mp = V_KPREV + hh*2, V_MHALO + 4*p
            P(f"v_mfma_f32_16x16x16_bf16 {vr(U(u))}, v[{ko}:{ko+1}], v[{QP+2*u}:{QP+2*u+1}], {vr(V_MOWN)}")
            P(f"v_mfma_f32_16x16x16_bf16 {vr(U(u)+4)}, v[{kpv}:{kpv+1}], v[{QP+2*u}:{QP+2*u+1}], {vr(mp)}")
        for u in range(4):
            for r in range(4): P(f"v_max_f32 v{U(u)+r}, v{U(u)+r}, v{U(u)+4+r}")
        for u in range(4): P(f"v_max3_f32 v{U(u)+4}, v{U(u)}, v{U(u)+1}, v{U(u)+2}")
        for u in range(4): P(f"v_max_f32 v{U(u)+4}, v{U(u)+4}, v{U(u)+3}")
        for sw in ("v_permlane32_swap_b32", "v_permlane16_swap_b32"):
            for u in range(4): P(f"v_mov_b32 v{U(u)+5}, v{U(u)+4}")
            for u in range(4): P(f"{sw} v{U(u)+4}, v{U(u)+5}")
            for u in range(4): P(f"v_max_f32 v{U(u)+4}, v{U(u)+4}, v{U(u)+5}")
        for u in range(4): P(f"v_mul_f32 v{U(u)+4}, s{S_NC}, v{U(u)+4}")
        pk = opt.pk and (hh == 1 or opt.pk > 1)
        for u in range(4):
            if pk:
                for r in (0, 2): P(f"v_pk_fma_f32 v[{U(u)+r}:{U(u)+r+1}], v[{U(u)+r}:{U(u)+r+1}], s[96:97], v[{U(u)+4}:{U(u)+5}] op_sel_hi:[1,1,0]")
            else:
                for r in range(4): P(f"v_fma_f32 v{U(u)+r}, v{U(u)+r}, s{S_C}, v{U(u)+4}")
        for u in range(4):
            for r in range(4): P(f"v_exp_f32 v{U(u)+r}, v{U(u)+r}")
        for u in range(4):
            P(f"v_cvt_pk_bf16_f32 v{U(u)+4}, v{U(u)}, v{U(u)+1}"); P(f"v_cvt_pk_bf16_f32 v{U(u)+5}, v{U(u)+2}, v{U(u)+3}")
        for u in range(4):
            P(f"v_and_b32 v{U(u)+10}, v{U(u)+4}, v{V_BM}"); P(f"v_and_b32 v{U(u)+11}, v{U(u)+5}, v{V_BM+1}")
            P(f"v_xor_b32 v{U(u)+8}, v{U(u)+4}, v{U(u)+10}"); P(f"v_xor_b32 v{U(u)+9}, v{U(u)+5}, v{U(u)+11}")
        for u in range(4):
            q = V_QACC + (hh*4 + u)*4
            P(f"v_mfma_f32_16x16x16_bf16 {vr(q)}, v[{V_ONES}:{V_ONES+1}], v[{U(u)+4}:{U(u)+5}], 0")
        for u in range(4):
            tl, p = u >> 1, u & 1
            vp = V_VP + (p*2 + hh)*6 + 2*tl
            P(f"v_mfma_f32_16x16x32_bf16 {vr(U(u))}, {vr(vp)}, {vr(U(u)+8)}, 0")
        for u in range(4):
            q = V_QACC + (hh*4 + u)*4
            P(f"v_rcp_f32 v{q}, v{q}")
        for u in range(4):
            q = V_QACC + (hh*4 + u)*4
            if pk:
                for r in (0, 2): P(f"v_pk_mul_f32 v[{U(u)+r}:{U(u)+r+1}], v[{U(u)+r}:{U(u)+r+1}], v[{q}:{q+1}] op_sel_hi:[1,0]")
            else:
                for r in range(4): P(f"v_mul_f32 v{U(u)+r}, v{U(u)+r}, v{q}")
        for u in range(4):
            o = OUTR + u*4 + hh*2
            P(f"v_cvt_pk_bf16_f32 v{o}, v{U(u)}, v{U(u)+1}"); P(f"v_cvt_pk_bf16_f32 v{o+1}, v{U(u)+2}, v{U(u)+3}")
        return o_
    PQ = V_KP
    def phi_q(hh, tmp):
        o_ = phi_list([V_QACC + hh*16 + i for i in range(16)], tmp, opt.pk and (hh == 1 or opt.pk > 1))
        for Tl in range(4):
            q = V_QACC + (hh*4 + Tl)*4
            o_.append(f"v_cvt_pk_bf16_f32 v{PQ+hh*8+Tl*2}, v{q}, v{q+1}"); o_.append(f"v_cvt_pk_bf16_f32 v{PQ+hh*8+Tl*2+1}, v{q+2}, v{q+3}")
        return o_
    PB = V_ACC
    def gather_items():
        it = []
        for j in range(16):
            pre = [f"s_add_u32 s{S_T2}, s{S_T0}, {j*1024}"] if j % 4 == 0 else []
            it.append(("vm", ("gat", j), pre + [f"buffer_load_dwordx4 {vr(PB+4*j)}, v{V_L16}, {sWS}, s{S_T2} offen offset:{(j%4)*1024} sc1"]))
        it.append(("vm", ("gat", 16), [f"buffer_load_dwordx4 {vr(V_HACC)}, v3, {sWS}, s{S_T1} offen sc1"]))
        return it
    gat_setup = [f"s_lshl_b32 s{S_T0}, s{S_HEAD}, 14", f"s_add_u32 s{S_T0}, s{S_T0}, {WS_KV}",
                 f"s_lshl_b32 s{S_T1}, s{S_HEAD}, 10", f"s_add_u32 s{S_T1}, s{S_T1}, {WS_Z}",
                 f"v_and_b32 v3, 15, v{V_L}", "v_lshlrev_b32 v3, 6, v3",
                 f"v_lshrrev_b32 v4, 4, v{V_L}", "v_lshl_add_u32 v3, v4, 4, v3"]
    S2 = attention(0) if br == 0 else phi_q(0, V_VP)

    K0 = 2*QE
    NH = 16 - K0
    seq = [(hh, ks) for hh in range(2) for ks in range(K0, 16)]
    PRE = 3
    B9 = 8 - PRE
    side = list(S1)
    sync_done = False
    capA = -(-sum(cost(x) for x in S1) // (4 * B9)) + 1
    gq = []
    for n, (hh, ks) in enumerate(seq):
        slot = n % 8
        if n == NH:
            for it in side: g.emit(it)
            side = list(S2)
        if n == B9:
            if br == 0:
                for it in side: g.emit(it)
                side = list(S1b)
            while dq and dq[0][1][1] <= 9: g.emit(dq.pop(0))
            g.ldsall()
            g.vmwait(("c", 9))
            A("s_barrier")
        if br == 1 and not sync_done and ((not side and (n > B9 or opt.early_sync)) or n == NH - 1):
            for it in side: g.emit(it)
            g.ldsall()
            A("s_barrier")
            side = list(S1b); sync_done = True
        if br == 1 and n == opt.gat_at:
            for it in side: g.emit(it)
            side = []
            for it in gat_setup: g.emit(it)
            gq = gather_items()
        rd = q_read(*seq[n + PRE], (n + PRE) % 8) if n + PRE < len(seq) else []
        mf = []
        for Tl in range(4):
            d = vr(V_QACC + (hh*4 + Tl)*4)
            c = "0" if ks == 0 else d
            mf.append((f"v_mfma_f32_16x16x32_bf16 {d}, {vr(V_WF + slot*4)}, {vr(xf(Tl, ks), 4, 'a')}, {c}", [("q", hh, ks)]))
        cap = (capA if br == 0 else opt.b_cap) if n < NH else opt.cap2
        if gq: run_slots(g, mf, [rd, side], cap=cap, dma=gq, dma_every=opt.gat_every, dma_phase=0)
        else: run_slots(g, mf, [rd, side], cap=cap, dma=dq, dma_every=4, dma_phase=3)
        for it in rd: g.emit(it)
    for it in side: g.emit(it)
    for it in dq: g.emit(it)
    for it in gq: g.emit(it)
    gq = []
    g.stamp(5)
    if opt.d2late:
        d2 = []
    else:
        g.ldsall()
        g.vmwait(("c", 11))
        A("s_barrier")
        d2 = chunk_dmas(g, 12, False) + chunk_dmas(g, 13, False)
        if opt.d2defer:
            d2_tail = d2[16 - opt.d2defer:]; d2 = d2[:16 - opt.d2defer]
    def with_dma(items, every):
        k = 0
        for it in items:
            g.emit(it); k += 1
            if k % every == 0 and d2: g.emit(d2.pop(0))
    def spin_guard(lbl_out):
        A(f"s_sub_u32 s{S_SPIN}, s{S_SPIN}, 1")
        A(f"s_cbranch_scc1 {lbl_out}")
    if br == 0:
        with_dma(attention(1), opt.d2every)
        for it in d2: g.emit(it)
    else:
        if opt.gat_at >= 2*NH:
            for it in gat_setup: g.emit(it)
            for it in gather_items(): g.emit(it)
        A(f"v_mov_b32 v6, s{S_TAG}")
        with_dma(phi_q(1, V_WF), opt.d2every)
        g.stamp(6)
        SUM = V_WF + 16
        def chk_sum(first):
            for j in range(16):
                if first: g.vmwait(("gat", j))
                b = PB + 4*j
                for k_, r in enumerate(range(0, 4, opt.tagstep)):
                    a_ = "0" if (j == 0 and k_ < 2) else f"v{4+(k_&1)}"
                    A(f"v_msad_u8 v{4+(k_&1)}, v{b+r}, v6, {a_}")
                for r in range(0, 4, 2):
                    if j == 0: A(f"v_pk_add_f32 v[{SUM+r}:{SUM+r+1}], v[{b+r}:{b+r+1}], v[{b+4+r}:{b+5+r}]") if False else None
                    if j == 1: A(f"v_pk_add_f32 v[{SUM+r}:{SUM+r+1}], v[{PB+r}:{PB+r+1}], v[{b+r}:{b+r+1}]")
                    elif j > 1: A(f"v_pk_add_f32 v[{SUM+r}:{SUM+r+1}], v[{SUM+r}:{SUM+r+1}], v[{b+r}:{b+r+1}]")
                if first and d2 and j % opt.d2j == opt.d2j - 1: g.emit(d2.pop(0))
            if first: g.vmwait(("gat", 16))
            for k_, r in enumerate(range(0, 4, opt.tagstep)): A(f"v_msad_u8 v{4+(k_&1)}, v{V_HACC+r}, v6, v{4+(k_&1)}")
            A("v_or_b32 v4, v4, v5")
            A("v_cmp_ne_u32 vcc, 0, v4")
        chk_sum(True)
        for it in d2: g.emit(it)
        A(f"s_cbranch_vccz L_kvok_{tag}")
        g.label(f"L_kvretry_{tag}")
        spin_guard(f"L_kvok_{tag}")
        A(f"s_sleep {opt.kv_sleep}")
        sv = g.vm; g.vm = VM()
        for it in gather_items(): g.emit(it)
        g.vm = sv
        A("s_waitcnt vmcnt(0)")
        chk_sum(False)
        A(f"s_cbranch_vccnz L_kvretry_{tag}")
        g.label(f"L_kvok_{tag}")
        g.stamp(7)
        for rot in (8, 4, 2, 1):
            for r in range(4):
                A(f"v_add_f32_dpp v{V_HACC+r}, v{V_HACC+r}, v{V_HACC+r} row_ror:{rot} row_mask:0xf bank_mask:0xf")
        KZ = V_WF
        A(f"v_cvt_pk_bf16_f32 v{KZ+rw*4}, v{SUM}, v{SUM+1}"); A(f"v_cvt_pk_bf16_f32 v{KZ+rw*4+1}, v{SUM+2}, v{SUM+3}")
        A(f"v_cvt_pk_bf16_f32 v{KZ+rw*4+2}, v{V_HACC}, v{V_HACC+1}"); A(f"v_cvt_pk_bf16_f32 v{KZ+rw*4+3}, v{V_HACC+2}, v{V_HACC+3}")
        A(f"ds_write_b128 v{V_XA}, {vr(KZ+rw*4)} offset:{4096 + rw*1024}")
        NUM = V_ACC; DEN = V_QACC
        def omf(hh):
            for Tl in range(4):
                u = hh*4 + Tl; pq = PQ + hh*8 + Tl*2
                A(f"v_mfma_f32_16x16x16_bf16 {vr(DEN+4*u)}, v[{KZ+hh*4+2}:{KZ+hh*4+3}], v[{pq}:{pq+1}], 0")
                A(f"v_mfma_f32_16x16x16_bf16 {vr(NUM+4*u)}, v[{KZ+hh*4}:{KZ+hh*4+1}], v[{pq}:{pq+1}], 0")
        def ofin(us):
            for u in us: A(f"v_add_f32 v{DEN+4*u}, s{S_EPS}, v{DEN+4*u}")
            for u in us: A(f"v_rcp_f32 v{DEN+4*u}, v{DEN+4*u}")
            for u in us:
                for r in (0, 2): A(f"v_pk_mul_f32 v[{NUM+4*u+r}:{NUM+4*u+r+1}], v[{NUM+4*u+r}:{NUM+4*u+r+1}], v[{DEN+4*u}:{DEN+4*u+1}] op_sel_hi:[1,0]")
            for u in us:
                hh, Tl = u >> 2, u & 3
                o = OUTR + Tl*4 + hh*2
                A(f"v_cvt_pk_bf16_f32 v{o}, v{NUM+4*u}, v{NUM+4*u+1}"); A(f"v_cvt_pk_bf16_f32 v{o+1}, v{NUM+4*u+2}, v{NUM+4*u+3}")
        omf(rw)
        A("s_waitcnt lgkmcnt(0)")
        A("s_barrier")
        A(f"ds_read_b128 {vr(KZ+(1-rw)*4)}, v{V_XA} offset:{4096 + (1-rw)*1024}")
        ofin([rw*4 + i for i in range(4)])
        A("s_waitcnt lgkmcnt(0)")
        omf(1 - rw)
        if rw == 0:
            A(f"s_or_b32 s{S_T2}, s{S_RB}, s{S_CW}")
            A(f"s_cmp_lg_u32 s{S_T2}, 0")
            A(f"s_cbranch_scc1 L_nobk_{tag}")
            A(f"s_add_u32 s{S_T2}, s{S_EK}, 1")
            A(f"v_mov_b32 v4, s{S_T2}"); A("v_mov_b32 v5, 0")
            A("s_mov_b64 exec, 1")
            A(f"buffer_store_dword v4, v5, {sWS}, s{S_EKA} offen sc1")
            A("s_mov_b64 exec, -1")
            g.label(f"L_nobk_{tag}")
        ofin([(1-rw)*4 + i for i in range(4)])
    for Tl in range(4):
        A(f"s_add_u32 s{S_T2}, s{S_OST}, {Tl*16384}")
        A(f"buffer_store_dwordx4 {vr(OUTR+4*Tl)}, v{V_L16}, {sWS}, s{S_T2} offen sc1")
    g.stamp(8)
    if opt.d2defer and not opt.d2late:
        for it in d2_tail: g.emit(it)
    A("s_branch L_phase2")

def phase2(g):
    A = g.A
    opt = g.opt
    g.label("L_phase2")
    g.lds = []; g.vm = VM()
    OF = 64; ACC = 128; VR0 = 20
    l = f"v{V_L}"
    A(f"v_and_b32 v2, 15, {l}"); A(f"v_lshrrev_b32 v3, 4, {l}")
    A("v_lshrrev_b32 v4, 2, v2"); A("v_and_b32 v5, 3, v2")
    A("v_lshl_add_u32 v6, v3, 2, v4")
    A("v_and_b32 v7, 7, v6")
    A("v_lshlrev_b32 v6, 8, v6"); A("v_lshl_add_u32 v6, v5, 3, v6"); A("v_lshl_add_u32 v6, v7, 5, v6")
    for c in range(8):
        A(f"v_xor_b32 v{VR0+2*c}, {c*32}, v6")
        A(f"v_add_u32 v{VR0+2*c+1}, 65536, v{VR0+2*c}")
    NV = opt.p2_nv
    def freg(hp, c):
        if hp < 8: return ("a", (hp*8 + c)*4)
        if hp < 8 + NV: return ("v", 160 + ((hp - 8)*8 + c)*4)
        return ("a", ((hp - 8 - NV)*8 + c)*4)
    def rd(hp, c):
        out = []
        k_, a = freg(hp, c)
        for t in range(2):
            const = WOB[hp >> 2] + (hp & 3)*8192 + t*4096
            out.append(("lds", ("o", hp, c), f"ds_read_b64_tr_b16 {k_}[{a+2*t}:{a+2*t+1}], v{VR0 + 2*c + (const >> 16)} offset:{const & 0xffff}"))
        return out
    def preload(hps):
        for hp in hps:
            for c in range(8):
                for it in rd(hp, c): g.emit(it)
                if len(g.lds) >= 12: g.need(g.lds[3])
    A(f"s_add_u32 s{S_T0}, s{S_EO}, 1")
    A(f"v_mov_b32 v6, s{S_T0}"); A(f"v_mov_b32 v7, s{S_EO+1}")
    A("v_mov_b32 v5, 0")
    A("v_lshlrev_b32 v8, 3, v2")
    A("v_lshlrev_b32 v2, 12, v2")
    A("v_and_b32 v4, 1, v3"); A("v_lshl_add_u32 v2, v4, 5, v2")
    A("v_lshrrev_b32 v4, 1, v3"); A("v_lshl_add_u32 v2, v4, 4, v2")
    A(f"s_lshl_b32 s{S_XB}, s{S_RB}, 18")
    A(rh_(g, S_T1)); A(f"s_lshl_b32 s{S_T1}, s{S_T1}, 17"); A(f"s_add_u32 s{S_XB}, s{S_XB}, s{S_T1}")
    A(f"s_lshl_b32 s{S_T1}, s{S_RW}, 16"); A(f"s_add_u32 s{S_XB}, s{S_XB}, s{S_T1}")
    A(f"s_lshl_b32 s{S_T1}, s{S_CW}, 11"); A(f"s_add_u32 s{S_XB}, s{S_XB}, s{S_T1}")
    A(f"s_lshl_b32 s{S_T1}, s{S_BR}, 10"); A(f"s_add_u32 s{S_XB}, s{S_XB}, s{S_T1}")
    A(cs_(g, S_T1)); A(f"s_lshl_b32 s{S_T1}, s{S_T1}, 8"); A(f"s_add_u32 s{S_XB}, s{S_XB}, s{S_T1}")
    if opt.d2late:
        A("s_waitcnt vmcnt(4)")
        A("s_barrier")
        d2 = chunk_dmas(g, 12, False) + chunk_dmas(g, 13, False)
        preload(range(opt.p2_pre1))
        A("s_waitcnt vmcnt(0)")
        A("s_mov_b64 exec, 1")
        A(f"buffer_store_dwordx2 v[6:7], v5, {sWS}, s{S_FLO} offen sc1")
        A("s_mov_b64 exec, -1")
        g.stamp(9)
        for hp in range(opt.p2_pre1, 8):
            for c in range(8):
                for it in rd(hp, c): g.emit(it)
                if d2: g.emit(d2.pop(0))
                if len(g.lds) >= 12: g.need(g.lds[3])
        for it in d2: g.emit(it)
        A("s_waitcnt vmcnt(0)")
        A("s_barrier")
        preload(range(8, 8 + NV))
        g.ldsall()
    else:
        preload(range(opt.p2_pre1))
        A(f"s_waitcnt vmcnt({opt.d2defer})")
        A("s_mov_b64 exec, 1")
        A(f"buffer_store_dwordx2 v[6:7], v5, {sWS}, s{S_FLO} offen sc1")
        A("s_mov_b64 exec, -1")
        g.stamp(9)
        preload(range(opt.p2_pre1, 8))
        A("s_waitcnt vmcnt(1)")
        A("s_barrier")
        preload(range(8, 8 + NV))
        g.ldsall()
    A(f"s_cmp_lg_u32 s{S_WV}, 0")
    A("s_cbranch_scc1 L_ook")
    if opt.poll0: A(f"s_sleep {opt.poll0}")
    A("s_branch L_opoll1")
    g.label("L_opoll")
    A(f"s_sub_u32 s{S_SPIN}, s{S_SPIN}, 1")
    A("s_cbranch_scc1 L_ook")
    A(f"s_sleep {opt.poll1}")
    g.label("L_opoll1")
    A(f"buffer_load_dwordx2 v[10:11], v8, {sWS}, s{S_FLN} offen sc1")
    A("s_waitcnt vmcnt(0)")
    A("v_cmp_ne_u64 vcc, v[10:11], v[6:7]")
    A("s_cbranch_vccnz L_opoll")
    g.label("L_ook")
    A("s_waitcnt vmcnt(0)")
    g.vm = VM()
    A("s_barrier")
    g.stamp(10)
    lq = []
    for hp in range(16):
        pre = [f"s_add_u32 s{S_T2}, s{S_OLD}, {hp*1024}"] if hp % 4 == 0 else []
        lq.append(("vm", ("of", hp), pre + [f"buffer_load_dwordx4 {vr(OF + 4*hp)}, v{V_L16}, {sWS}, s{S_T2} offen offset:{(hp % 4)*1024} sc1"]))
    for it in lq[:opt.p2_first]: g.emit(it)
    lq = lq[opt.p2_first:]
    rq = []
    for hp in range(16):
        while lq and lq[0][1][1] <= hp: g.emit(lq.pop(0))
        while rq and rq[0][1][1] <= hp: g.emit(rq.pop(0))
        g.vmwait(("of", hp))
        if hp % 4 == 0: g.stamp(3 + hp//4, kv="p2")
        mf = []
        for c in range(8):
            d = vr(ACC + 4*c)
            k_, a = freg(hp, c)
            mf.append((f"v_mfma_f32_16x16x32_bf16 {d}, {vr(a, 4, k_)}, {vr(OF + 4*hp)}, {'0' if hp == 0 else d}", [("o", hp, c)]))
        if hp >= 1 and hp - 1 + 8 + NV < 16:
            for c in range(8): rq += rd(hp - 1 + 8 + NV, c)
        run_slots(g, mf, [rq], cap=opt.p2_cap, dma=lq, dma_every=opt.p2_every, dma_phase=0)
    g.stamp(7, kv="p2")
    A(f"s_or_b32 s{S_T2}, s{S_HG}, s{S_WV}")
    A(f"s_cmp_lg_u32 s{S_T2}, 0")
    A("s_cbranch_scc1 L_nobo")
    A("s_mov_b64 exec, 1")
    A(f"buffer_store_dword v6, v5, {sWS}, s{S_EOA} offen sc1")
    A("s_mov_b64 exec, -1")
    g.label("L_nobo")
    for cp in range(4):
        o = 64 + cp*4
        for h in range(2):
            a = ACC + (2*cp + h)*4
            A(f"v_cvt_pk_bf16_f32 v{o+2*h}, v{a}, v{a+1}"); A(f"v_cvt_pk_bf16_f32 v{o+2*h+1}, v{a+2}, v{a+3}")
    for cp in range(4):
        o = 64 + cp*4
        A(f"v_permlane16_swap_b32 v{o}, v{o+2}")
        A(f"v_permlane16_swap_b32 v{o+1}, v{o+3}")
        A(f"buffer_store_dwordx4 {vr(o)}, v2, {sOUT}, s{S_XB} offen offset:{cp*64}{opt.outpol}")
    if opt.stamps:
        A("s_waitcnt vmcnt(0)")
        g.stamp(11)
        A("s_waitcnt lgkmcnt(0)")
        A(f"s_cmp_lg_u32 s{S_WV}, {opt.stamp_wave}")
        A("s_cbranch_scc1 L_end")
        if opt.dbgstamps:
            A("s_load_dwordx2 s[16:17], s[0:1], 56")
            A("v_mov_b32 v100, 0")
            for j in range(12):
                if opt.dbgbr >= 0 or j not in (4, 6, 7):
                    A(f"v_writelane_b32 v100, s{72+2*j}, {j}")
            for j, src in ((12, 0), (13, 2), (14, 3), (15, 11)):
                A(f"s_not_b32 s{S_T0}, s{72+2*src}")
                A(f"v_writelane_b32 v100, s{S_T0}, {j}")
            A("s_waitcnt lgkmcnt(0)")
            A("s_mov_b32 s18, 256"); A("s_mov_b32 s19, 0x20000")
            if opt.dbgbr >= 0:
                A(f"s_cmp_lg_u32 s{S_BR}, {opt.dbgbr}")
                A("s_cbranch_scc1 L_end")
            A(f"v_lshlrev_b32 v3, 2, v{V_L}")
            A("s_mov_b64 exec, 0xffff")
            A("buffer_atomic_umax v100, v3, s[16:19], 0 offen sc1")
            A("s_branch L_end")
        for j in range(24): A(f"v_mov_b32 v{100+j}, s{72+j}")
        A(f"s_mul_i32 s{S_T0}, s2, 96")
        A(f"s_add_u32 s{S_T0}, s{S_T0}, {WS_STAMP}")
        A("v_mov_b32 v3, 0")
        A("s_mov_b64 exec, 1")
        for j in range(6):
            A(f"buffer_store_dwordx4 v[{100+4*j}:{103+4*j}], v3, {sWS}, s{S_T0} offen offset:{16*j}")

def main():
    ap = argparse.ArgumentParser()
    ap.add_argument("-o", default="out.s")
    ap.add_argument("--stamps", type=int, default=0)
    ap.add_argument("--kvstamps", type=int, default=0)
    ap.add_argument("--p2stamps", type=int, default=0)
    ap.add_argument("--dbgstamps", type=int, default=0)
    ap.add_argument("--dbgbr", type=int, default=-1)
    ap.add_argument("--bfirst", type=int, default=0)
    ap.add_argument("--stamp-wave", type=int, default=0)
    ap.add_argument("--bar-after", type=int, default=4)
    ap.add_argument("--nt", type=int, default=0)
    ap.add_argument("--pfnt", type=int, default=0)
    ap.add_argument("--pf", type=int, default=0)
    ap.add_argument("--pre3", type=int, default=0)
    ap.add_argument("--pf-first", type=int, default=2)
    ap.add_argument("--pf-pos", type=int, default=0)
    ap.add_argument("--pf-init", type=int, default=2)
    ap.add_argument("--warmcode", type=int, default=0)
    ap.add_argument("--warmoff", type=int, default=0)
    ap.add_argument("--dma-every", type=int, default=4)
    ap.add_argument("--dma-fast", type=int, default=2)
    ap.add_argument("--cap", type=int, default=2)
    ap.add_argument("--cap-even", type=int, default=1)
    ap.add_argument("--b-cap", type=int, default=5)
    ap.add_argument("--cap2", type=int, default=3)
    ap.add_argument("--gat-at", type=int, default=27)
    ap.add_argument("--gat-every", type=int, default=1)
    ap.add_argument("--kv-sleep", type=int, default=4)
    ap.add_argument("--poll0", type=int, default=8)
    ap.add_argument("--poll1", type=int, default=6)
    ap.add_argument("--outpol", default="")
    ap.add_argument("--p2-first", type=int, default=6)
    ap.add_argument("--p2-every", type=int, default=4)
    ap.add_argument("--early-sync", type=int, default=1)
    ap.add_argument("--rot", type=int, default=7)
    ap.add_argument("--d2late", type=int, default=0)
    ap.add_argument("--qearly", type=int, default=0)
    ap.add_argument("--cmap", type=int, default=1)
    ap.add_argument("--late-a", type=int, default=0)
    ap.add_argument("--late-b", type=int, default=0)
    ap.add_argument("--d2defer", type=int, default=0)
    ap.add_argument("--d2every", type=int, default=9)
    ap.add_argument("--d2j", type=int, default=2)
    ap.add_argument("--common", type=int, default=2)
    ap.add_argument("--pk", type=int, default=1)
    ap.add_argument("--tagstep", type=int, default=2)
    ap.add_argument("--p2-nv", type=int, default=3)
    ap.add_argument("--p2-pre1", type=int, default=6)
    ap.add_argument("--p2-cap", type=int, default=1)
    ap.add_argument("--wo-at", type=int, default=4)
    ap.add_argument("--wc-at", type=int, default=0)
    opt = ap.parse_args()
    if opt.outpol: opt.outpol = " " + opt.outpol.replace(",", " ")
    g = G(opt)
    global QE
    QE = opt.qearly
    global PFPOL
    PFPOL = " nt" if opt.pfnt else ""
    K = NAME + "_kernel"
    head = ["; generated by gen/gen8.py  " + " ".join(sys.argv[1:]),
            "; @launch grid=(256,1,1) block=(256,1,1) lds=163840",
            '.amdgcn_target "amdgcn-amd-amdhsa--gfx950"', ".text",
            f".globl {K}", ".p2align 8", f".type {K},@function", f"{K}:"]
    A = g.A
    g.stamp(0)
    decode(g)
    if opt.common:
        for c in range(opt.common):
            items = chunk_dmas(g, c, True)
            for it in items[:-1]:
                for x_ in it[2]: A(x_)
            A(f"s_cmp_lg_u32 s{S_BR}, 0"); A(f"s_cbranch_scc1 L_nohalo{c}")
            for x_ in items[-1][2]: A(x_)
            g.label(f"L_nohalo{c}")
        if opt.warmcode:
            A("s_getpc_b64 s[68:69]"); g.label("L_wc")
            A(f"s_lshl_b32 s{S_T0}, s{S_BR}, 1"); A(f"s_add_u32 s{S_T0}, s{S_T0}, s{S_RW}")
            A(f"s_mov_b32 s{S_T1}, L_path0-L_wc")
            for v in (1, 2, 3):
                A(f"s_cmp_eq_u32 s{S_T0}, {v}"); A(f"s_cselect_b32 s{S_T1}, L_path{v}-L_wc, s{S_T1}")
            A(f"s_lshl_b32 s{S_T0}, s{S_CW}, 13"); A(f"s_add_u32 s{S_T1}, s{S_T1}, s{S_T0}")
            A(f"v_lshlrev_b32 v2, 7, v{V_L}"); A(f"v_add_u32 v3, s{S_T1}, v2"); A("v_min_u32 v3, L_end-L_wc, v3")
            A(f"global_load_dword v{V_PF0}, v3, s[68:69]")
            A("v_add_u32 v3, L_phase2-L_wc, v2"); A("v_min_u32 v3, L_end-L_wc, v3")
            A(f"global_load_dword v{V_PF1}, v3, s[68:69]")
    A(f"s_lshl_b32 s{S_T0}, s{S_BR}, 1")
    A(f"s_add_u32 s{S_T0}, s{S_T0}, s{S_RW}")
    for v in (1, 2, 3):
        A(f"s_cmp_eq_u32 s{S_T0}, {v}")
        A(f"s_cbranch_scc1 L_path{v}")
    for v in range(4):
        g.label(f"L_path{v}")
        phase1_path(g, v >> 1, v & 1)
    phase2(g)
    g.label("L_end")
    A("s_endpgm")
    body, n = fix_hazards(g.L)
    tail = ['.section .rodata,"a"', ".p2align 6", f".amdhsa_kernel {K}", "  .amdhsa_next_free_vgpr 512", "  .amdhsa_next_free_sgpr 102",
            "  .amdhsa_accum_offset 256", "  .amdhsa_group_segment_fixed_size 0", "  .amdhsa_kernarg_size 72",
            "  .amdhsa_user_sgpr_count 2", "  .amdhsa_user_sgpr_kernarg_segment_ptr 1",
            "  .amdhsa_system_sgpr_workgroup_id_x 1", ".end_amdhsa_kernel"]
    open(opt.o, "w").write("\n".join(head + body + tail) + "\n")
    print(f"wrote {opt.o}: {len(body)} lines, {n} nops inserted")

main()
```
